```python
import torch

def _softmax(x, axis=-1):
    return torch.softmax(x, dim=axis)
def _gelu(x):
    return torch.nn.functional.gelu(x, approximate="tanh")
def _silu(x):
    return torch.nn.functional.silu(x)
def _sigmoid(x):
    return torch.sigmoid(x)
def _layernorm(x, axis=-1, eps=1e-5):
    m = x.mean(dim=axis, keepdim=True)
    v = x.var(dim=axis, keepdim=True, unbiased=False)
    return (x - m) / torch.sqrt(v + eps)
def _scatter_add(tgt, idx, src, axis=0):
    return tgt.clone().index_add_(axis, idx, src)
def _segment_sum(src, seg, n):
    out = torch.zeros((n,) + src.shape[1:], dtype=src.dtype)
    return out.index_add_(0, seg, src)
def _pad(x, pw):
    flat = tuple(v for pair in reversed(pw) for v in pair)
    return torch.nn.functional.pad(x, flat)

kernel_name = 'interleave_layers__spectral_fnet__moe_arch_mod__prompt'

def setup_inputs():

    _w = (lambda a: (lambda t: t.to(torch.bfloat16) if t.is_floating_point() else t)(torch.as_tensor(a)))
    def _A_setup():
        B, S, D = 1, 2048, 512
        ns = torch.arange(S)[:, None] * torch.arange(S)[None, :]
        nd = torch.arange(D)[:, None] * torch.arange(D)[None, :]
        Ws_re = torch.cos(-2.0 * torch.pi * ns / S).to(float)
        Ws_im = torch.sin(-2.0 * torch.pi * ns / S).to(float)
        Wd_re = torch.cos(-2.0 * torch.pi * nd / D).to(float)
        Wd_im = torch.sin(-2.0 * torch.pi * nd / D).to(float)
        return {
            "x": _w((lambda *s: torch.randn(*s, dtype=torch.bfloat16) * 0.05)(B, S, D)),
            "dft_seq_re": _w(Ws_re),
            "dft_seq_im": _w(Ws_im),
            "dft_hid_re": _w(Wd_re),
            "dft_hid_im": _w(Wd_im),
        }
    _A_in = _A_setup()

    def _B_setup():
        B, S, D, F, C = 1, 2048, 512, 1792, 2
        return {
            "x": _w((lambda *s: torch.randn(*s, dtype=torch.bfloat16) * 0.05)(B, S, D)),
            "w_r": _w((lambda *s: torch.randn(*s, dtype=torch.bfloat16) * 1.6)(D)),
            "w_gate": _w((lambda *s: torch.randn(*s, dtype=torch.bfloat16) * 0.4)(D, F)),
            "w_up": _w((lambda *s: torch.randn(*s, dtype=torch.bfloat16) * 0.4)(D, F)),
            "w_down": _w((lambda *s: torch.randn(*s, dtype=torch.bfloat16) * 0.4)(F, D)),
        }
    _B_in = _B_setup()

    return {
        "A_x": _A_in["x"],
        "A_dft_seq_re": _A_in["dft_seq_re"],
        "A_dft_seq_im": _A_in["dft_seq_im"],
        "A_dft_hid_re": _A_in["dft_hid_re"],
        "A_dft_hid_im": _A_in["dft_hid_im"],
        "B_x": _B_in["x"],
        "B_w_r": _B_in["w_r"],
        "B_w_gate": _B_in["w_gate"],
        "B_w_up": _B_in["w_up"],
        "B_w_down": _B_in["w_down"],
    }

def reference(A_x, A_dft_seq_re, A_dft_seq_im, A_dft_hid_re, A_dft_hid_im, B_x, B_w_r, B_w_gate, B_w_up, B_w_down):
    def _A_ref(x, dft_seq_re, dft_seq_im, dft_hid_re, dft_hid_im):
        a = torch.einsum("bsd,ed->bse", x, dft_hid_re)
        b = torch.einsum("bsd,ed->bse", x, dft_hid_im)
        y = torch.einsum("ts,bse->bte", dft_seq_re, a) - torch.einsum("ts,bse->bte", dft_seq_im, b)
        return y

    def _B_ref(x, w_r, w_gate, w_up, w_down):
        B, S, D = x.shape
        C = 2
        r = x @ w_r
        idx = torch.argsort(-r, axis=-1)[:, :C]
        idx_e = (lambda x, n, axis: torch.repeat_interleave(x, n, dim=axis))(idx.reshape(B, C, 1), D, axis=2)
        x_sel = (lambda x, i, axis: torch.take_along_dim(x, i, dim=axis))(x, idx_e, axis=1)
        g = _silu(x_sel @ w_gate)
        u = x_sel @ w_up
        y = (g * u) @ w_down
        r_sel = _sigmoid((lambda x, i, axis: torch.take_along_dim(x, i, dim=axis))(r, idx, axis=1))
        y = y * r_sel.reshape(B, C, 1)
        b_off = (torch.arange(B) * S).reshape(B, 1)
        flat_idx = (idx + b_off).reshape(B * C)
        zero = (x * 0.0).reshape(B * S, D)
        upd = _scatter_add(zero, flat_idx, y.reshape(B * C, D), axis=0)
        return x + upd.reshape(B, S, D)

    x = A_x
    x = x + _A_ref(_layernorm(x, axis=-1), A_dft_seq_re, A_dft_seq_im, A_dft_hid_re, A_dft_hid_im)
    x = x + _B_ref(_layernorm(x, axis=-1), B_w_r, B_w_gate, B_w_up, B_w_down)
    x = x + _A_ref(_layernorm(x, axis=-1), A_dft_seq_re, A_dft_seq_im, A_dft_hid_re, A_dft_hid_im)
    x = x + _B_ref(_layernorm(x, axis=-1), B_w_r, B_w_gate, B_w_up, B_w_down)
    return x
```

```python
import re
TRANS = ('v_exp_f32','v_log_f32','v_rcp_f32','v_rsq_f32','v_sqrt_f32','v_sin_f32','v_cos_f32','v_rcp_iflag_f32')
def regs_of(tok):
    tok = tok.strip()
    out = set()
    t = tok.lstrip('-')
    m = re.fullmatch(r'abs\((.*)\)', t) or re.fullmatch(r'\|(.*)\|', t)
    if m: t = m.group(1)
    m = re.fullmatch(r'([vsa])(\d+)', t)
    if m: out.add((m.group(1), int(m.group(2)))); return out
    m = re.fullmatch(r'([vsa])\[(\d+):(\d+)\]', t)
    if m:
        for i in range(int(m.group(2)), int(m.group(3))+1): out.add((m.group(1), i))
        return out
    if t in ('vcc','vcc_lo','vcc_hi'): out.add(('vcc',0))
    if t in ('exec','exec_lo','exec_hi'): out.add(('exec',0))
    if t == 'm0': out.add(('m0',0))
    return out

class Ins:
    def __init__(self, text):
        self.text = text
        s = text.split(';')[0].strip()
        self.is_label = s.endswith(':')
        self.is_dir = s.startswith('.') or s == ''
        self.mn = s.split()[0] if s else ''
        rest = s[len(self.mn):].strip()
        ops, depth, cur = [], 0, ''
        for ch in rest:
            if ch in '[(': depth += 1
            if ch in '])': depth -= 1
            if ch == ',' and depth == 0: ops.append(cur); cur = ''
            else: cur += ch
        if cur.strip(): ops.append(cur)
        mods = ''
        if ops:
            last = ops[-1].strip().split(None, 1)
            ops[-1] = last[0]
            mods = last[1] if len(last) > 1 else ''
        self.ops = [o.strip() for o in ops]
        self.mods = mods
        mn = self.mn
        self.valu = mn.startswith('v_') and not mn.startswith('v_mfma')
        self.mfma = mn.startswith('v_mfma')
        self.salu = mn.startswith('s_')
        self.vmem = mn.startswith(('buffer_','global_','flat_'))
        self.ds = mn.startswith('ds_')
        base = re.sub(r'_(e32|e64|dpp|sdwa)$', '', mn)
        self.base = base
        self.trans = base in TRANS
        self.dpp = mn.endswith('_dpp')
        self.perml = mn.startswith('v_permlane')
        self.rdlane = base in ('v_readlane_b32','v_readfirstlane_b32')
        self.opsel = ('sdwa' in mn and 'dst_sel:DWORD' not in mods) or (base in ('v_fma_mixlo_f16','v_fma_mixhi_f16'))
        W, R = set(), set()
        o = [regs_of(x) for x in self.ops]
        if self.valu or self.mfma:
            W |= o[0]
            k = 1
            if base in ('v_add_co_u32','v_sub_co_u32','v_addc_co_u32','v_subb_co_u32','v_div_scale_f32','v_mad_u64_u32'):
                W |= o[1]; k = 2
            for x in o[k:]: R |= x
            if base in ('v_fmac_f32','v_dot2c_f32_bf16','v_writelane_b32','v_fma_mixlo_f16','v_fma_mixhi_f16') or self.dpp: R |= o[0]
            if self.perml: W |= o[1]; R |= o[0]
            if base.startswith('v_cmpx'): W.add(('exec',0))
            if self.mfma:
                self.D, self.A, self.B, self.C = o[0], o[1], o[2], o[3]
                self.passes = 8 if '32x32' in mn else 4
        elif self.vmem:
            if 'store' in mn or ('atomic' in mn):
                for x in o: R |= x
                if 'atomic' in mn and 'sc0' in mods: W |= o[0]
            elif ' lds' in (' '+mods) or '_lds_' in mn:
                for x in o: R |= x
                R.add(('m0',0))
            elif o:
                W |= o[0]
                for x in o[1:]: R |= x
            self.wide_store = ('store' in mn and ('x3' in mn or 'x4' in mn))
            if self.wide_store:
                self.sdata = o[0] if mn.startswith('buffer') else o[1]
        elif self.ds:
            if 'write' in mn:
                for x in o: R |= x
            else:
                W |= o[0]
                for x in o[1:]: R |= x
        elif self.salu and o:
            if mn.startswith(('s_cmp','s_cbranch','s_branch','s_waitcnt','s_nop','s_barrier','s_sleep','s_setprio','s_endpgm','s_bitcmp')):
                for x in o: R |= x
            else:
                W |= o[0]
                for x in o[1:]: R |= x
                if 'saveexec' in mn: W.add(('exec',0))
        self.W, self.R = W, R
    def states(self):
        if self.is_label or self.is_dir: return 0
        if self.mn == 's_nop': return int(self.ops[0], 0) + 1
        return 1

def need(p, c):
    n = 0
    pv = {r for r in p.W if r[0] in 'va' and len(r[0]) == 1}
    ps = {r for r in p.W if r[0] in ('s','vcc')}
    if p.valu:
        if c.mfma and pv & c.R: n = max(n, 2)
        if c.dpp and pv & c.R: n = max(n, 2)
        if c.perml and pv & (c.R | c.W): n = max(n, 2)
        if c.rdlane and pv & c.R: n = max(n, 1)
        if p.trans and (c.valu or c.mfma) and not c.trans and pv & c.R: n = max(n, 1)
        if p.trans and c.trans and pv & c.R: n = max(n, 1)
        if p.opsel and c.valu and pv & (c.R | c.W): n = max(n, 1)
        if ps:
            if (c.valu or c.mfma) and ps & c.R: n = max(n, 4 if c.base in ('v_readlane_b32','v_writelane_b32','v_div_fmas_f32') else 2)
            if c.vmem and ps & c.R: n = max(n, 5)
            if c.salu and ps & c.R: n = max(n, 1)
        if ('exec',0) in p.W:
            if c.dpp: n = max(n, 5)
            if c.rdlane or c.perml or c.mfma or c.base == 'v_writelane_b32': n = max(n, 4)
            if c.valu and ('exec',0) in c.R: n = max(n, 2)
    if p.mfma:
        big = {4: 8, 8: 12}[p.passes]
        if c.mfma:
            if p.D & (c.A | c.B): n = max(n, big)
            if p.D & c.C:
                if not (p.D == c.C and p.passes == c.passes): n = max(n, big - 2)
            elif p.D & c.D: n = max(n, big)
        elif (c.valu or c.vmem or c.ds) and p.D & (c.R | c.W): n = max(n, big)
        if c.valu and p.C & c.W: n = max(n, {4: 3, 8: 7}[p.passes])
    if p.vmem and getattr(p, 'wide_store', False) and p.sdata & c.W:
        n = max(n, 2)
    if p.salu and ('m0',0) in p.W and ('m0',0) in c.R and (c.vmem or c.ds): n = max(n, 1)
    return n

def fix_hazards(lines):
    out = []
    for t in lines:
        c = Ins(t)
        if not (c.is_label or c.is_dir):
            dist, req = 0, 0
            for p in reversed(out):
                if p.is_dir: continue
                if p.mn in ('s_endpgm', 's_branch'): break
                if dist >= 12: break
                if not p.is_label:
                    req = max(req, need(p, c) - dist)
                dist += p.states()
            if req > 0: out.append(Ins(f'  s_nop {req-1}'))
        out.append(c)
    return [i.text for i in out]

class K:
    def __init__(self, name):
        self.name = name; self.L = []; self.nv = 1; self.names = {}
    def __call__(self, s):
        for ln in s.strip('\n').split('\n'):
            if ln.strip(): self.L.append('  ' + ln.strip())
    def lab(self, l): self.L.append(f'{l}:')
    def v(self, n=1, al=None):
        if al is None: al = 1 if n == 1 else 2
        b = (self.nv + al - 1) // al * al
        self.nv = b + n
        self.maxv = max(getattr(self, 'maxv', 0), self.nv)
        return b
def vr(b, n): return f'v[{b}:{b+n-1}]' if n > 1 else f'v{b}'
def sr(b, n): return f's[{b}:{b+n-1}]' if n > 1 else f's{b}'
```

```python
import sys, struct
from asmlib import *
NAME = 'interleave_layers__spectral_fnet__moe_arch_mod__prompt'
def fl(x): return hex(struct.unpack('<I', struct.pack('<f', x))[0])
PITCH = 8320
Q1, U1, Q2, U2 = 0x000000, 0x110000, 0x220000, 0x330000
X2 = 0x440000
KEY1, KEY2 = 0x640000, 0x642000
ST1, ST2 = 0x648000, 0x650000
H1, H2 = 0x658000, 0x65A000
AB = 0x660000
SEL = 0x662000
WS_BYTES = 0x10000000
DPP = 'row_mask:0xf bank_mask:0xf'

def srd(k, d, base, nbytes):
    k(f's_mov_b32 s{d}, s{base}\ns_mov_b32 s{d+1}, s{base+1}\ns_mov_b32 s{d+2}, {hex(nbytes)}\ns_mov_b32 s{d+3}, 0x20000')

def red_half(k, regs):
    for m in ('quad_perm:[1,0,3,2]', 'quad_perm:[2,3,0,1]', 'row_half_mirror', 'row_mirror'):
        for r in regs: k(f'v_add_f32_dpp v{r}, v{r}, v{r} {m} {DPP}')
    for r in regs: k(f'v_add_f32_dpp v{r}, v{r}, v{r} row_bcast:15 row_mask:0xa bank_mask:0xf')

def merge(k, a, b):
    k(f'v_permlane32_swap_b32 v{a}, v{b}\nv_add_f32 v{a}, v{a}, v{b}')

def unpack_direct(k, dst, src):
    for i in range(4):
        k(f'v_lshlrev_b32 v{dst+2*i}, 16, v{src+i}\nv_and_b32 v{dst+2*i+1}, 0xffff0000, v{src+i}')
def unpack_mirror(k, dst, src, src0):
    k(f'v_lshlrev_b32 v{dst}, 16, v{src0}')
    for i in range(1, 8):
        e = 8 - i
        if e & 1: k(f'v_and_b32 v{dst+i}, 0xffff0000, v{src+e//2}')
        else: k(f'v_lshlrev_b32 v{dst+i}, 16, v{src+e//2}')

def row_kernel(name, mode):
    k = K(name)
    k(f's_load_dwordx2 s[30:31], s[0:1], 96')
    if mode != 5: k('s_load_dwordx2 s[32:33], s[0:1], 0')
    else: k('s_load_dwordx2 s[32:33], s[0:1], 80')
    if mode != 1: k('s_load_dwordx2 s[34:35], s[0:1], 48')
    k(f'''s_cmp_gt_u32 s2, 256
s_cbranch_scc1 {name}_end
v_lshrrev_b32 v1, 6, v0
s_and_b32 s20, s2, 7
s_lshr_b32 s21, s2, 6
v_readfirstlane_b32 s22, v1
s_lshl_b32 s21, s21, 3
s_add_u32 s20, s20, s21
s_bfe_u32 s21, s2, 0x30003
s_cmp_eq_u32 s20, 0
s_cselect_b32 s26, s21, 0
s_cmp_ge_u32 s26, 4
s_cselect_b32 s20, 32, s20
s_cselect_b32 s26, 4, 0
s_sub_u32 s21, s21, s26
s_cmp_eq_u32 s2, 256
s_cselect_b32 s20, 0, s20
s_cselect_b32 s21, 4, s21
s_lshl_b32 s23, s21, 2
s_add_u32 s23, s23, s22
s_lshl_b32 s23, s23, 6
s_add_u32 s23, s23, s20
s_sub_u32 s24, 2048, s23
s_and_b32 s24, s24, 2047
s_add_u32 s25, s20, 63
s_and_b32 s25, s25, 63
s_lshl_b32 s25, s25, 7
s_lshl_b32 s26, s21, 4
s_add_u32 s25, s25, s26
s_sub_u32 s27, 63, s20
s_lshl_b32 s27, s27, 7
s_sub_u32 s27, s27, s26
s_add_u32 s27, s27, 112
s_cmp_eq_u32 s20, 0
s_cselect_b32 s26, 4, 0
s_add_u32 s27, s27, s26
s_cmp_ge_u32 s22, 2
s_cselect_b32 s25, s27, s25
s_lshl_b32 s28, s23, 10
s_lshl_b32 s29, s24, 10''')
    k.nv = 1
    vl = k.v(); vn = k.v(); vg = k.v(); vch = k.v(); vod = k.v(); vom = k.v(); vom0 = k.v(); vp = k.v(); vt = k.v(); vt2 = k.v()
    k(f'''v_and_b32 v{vl}, 63, v0
v_and_b32 v{vn}, 15, v0
v_bfe_u32 v{vg}, v0, 4, 2
v_lshl_add_u32 v{vch}, v{vn}, 2, v{vg}
v_lshlrev_b32 v{vod}, 4, v{vch}
v_sub_u32 v{vom}, 1008, v{vod}
v_sub_u32 v{vom0}, 1024, v{vod}
v_and_b32 v{vom0}, 1023, v{vom0}
v_and_b32 v{vp}, 127, v0
v_mul_u32_u24 v{vp}, {PITCH}, v{vp}
s_waitcnt lgkmcnt(0)''')
    srd(k, 4, 30, WS_BYTES)
    xd = k.v(4, 4); xm = k.v(4, 4); xm0 = k.v()
    if mode != 1:
        ug = k.v(4, 4)
        k(f's_add_u32 s36, s25, {hex(U1 if mode == 3 else U2)}')
        k(f'buffer_load_dwordx4 {vr(ug,4)}, v{vp}, s[4:7], s36 offen')
    if mode == 5:
        k(f's_add_u32 s40, s30, {hex(SEL)}\ns_addc_u32 s41, s31, 0\ns_load_dwordx2 s[42:43], s[40:41], 0')
        ab = k.v(32, 4)
        k(f'v_lshlrev_b32 v{vt}, 5, v{vl}\ns_mov_b32 s36, {hex(AB)}\ns_mov_b32 s37, {hex(AB+4096)}')
        for a in range(4):
            for h in range(2):
                k(f'buffer_load_dwordx4 {vr(ab+8*a+4*h,4)}, v{vt}, s[4:7], s{36+a//2} offen offset:{(a&1)*2048+16*h}')
        srd(k, 16, 32, 2048*1024)
        k(f's_add_u32 s36, s28, {hex(X2)}\ns_add_u32 s37, s29, {hex(X2)}')
        rs, o1, o2 = 4, 36, 37
    else:
        srd(k, 8, 32, 2048*1024)
        rs, o1, o2 = 8, 28, 29
    k(f'''buffer_load_dwordx4 {vr(xd,4)}, v{vod}, s[{rs}:{rs+3}], s{o1} offen
buffer_load_dwordx4 {vr(xm,4)}, v{vom}, s[{rs}:{rs+3}], s{o2} offen
buffer_load_ushort v{xm0}, v{vom0}, s[{rs}:{rs+3}], s{o2} offen''')
    if mode != 1:
        wd = k.v(4, 4); wm = k.v(4, 4); wm0 = k.v()
        srd(k, 12, 34, 1024)
        k(f'''buffer_load_dwordx4 {vr(wd,4)}, v{vod}, s[12:15], 0 offen
buffer_load_dwordx4 {vr(wm,4)}, v{vom}, s[12:15], 0 offen
buffer_load_ushort v{wm0}, v{vom0}, s[12:15], 0 offen''')
    if mode == 1:
        cl = k.v(4, 4)
        k(f's_cmp_ge_u32 s2, 4\ns_cbranch_scc1 {name}_noclr')
        k(f'''v_mov_b32 v{cl}, -1\nv_mov_b32 v{cl+1}, -1\nv_mov_b32 v{cl+2}, -1\nv_mov_b32 v{cl+3}, -1
v_lshlrev_b32 v{vt}, 4, v0
s_lshl_b32 s36, s2, 12
s_add_u32 s36, s36, {hex(H1)}
buffer_store_dwordx4 {vr(cl,4)}, v{vt}, s[4:7], s36 offen''')
        k.lab(f'{name}_noclr')
    def lane_of(dst, chreg):
        k(f'v_and_b32 v{vt2}, 3, v{chreg}\nv_and_b32 v{dst}, 60, v{chreg}\nv_lshl_add_u32 v{dst}, v{vt2}, 6, v{dst}')
    if mode != 5:
        bpf = k.v(); vqw = k.v(); vqr = k.v()
        k(f'''v_cmp_lt_u32 s[44:45], 31, v{vch}
v_add_u32 v{vt}, 1, v{vch}
v_cndmask_b32 v{vt}, v{vch}, v{vt}, s[44:45]
v_and_b32 v{vt}, 63, v{vt}
v_cmp_eq_u32 vcc, 0, v{vt}
v_cndmask_b32 v{vt}, v{vt}, 32, vcc''')
        lane_of(bpf, vt)
        k(f'''v_sub_u32 v{vt}, 95, v{vch}
v_cndmask_b32 v{vt}, v{vch}, v{vt}, s[44:45]
s_lshl_b32 s36, s22, 2
s_sub_u32 s37, 12, s36
v_mov_b32 v{vt2}, s36
v_mov_b32 v{vqw}, s37
v_cndmask_b32 v{vqw}, v{vt2}, v{vqw}, s[44:45]
v_lshl_add_u32 v{vqw}, v{vt}, 6, v{vqw}''')
    if mode != 1:
        bpm = k.v()
        k(f'v_add_u32 v{vt}, 1, v{vch}\nv_and_b32 v{vt}, 63, v{vt}')
        lane_of(bpm, vt)
    vt16 = k.v()
    k(f'v_lshlrev_b32 v{vt16}, 4, v0')
    a = k.v(8); b = k.v(8)
    if mode != 1:
        B1 = k.v(16, 4)
        TW = k.v(16)
        B2 = k.v(4, 4)
        fe = k.v(); fg = k.v(); c = k.v(); s = k.v(); ang = k.v(); f1 = k.v()
        vra = k.v(); vrb = k.v(); vsg = k.v()
        k(f'''v_lshrrev_b32 v{vt}, 2, v{vn}
v_and_b32 v{vt2}, 3, v{vn}
v_lshl_add_u32 v{vt}, v{vt}, 3, v{vt2}
v_cvt_f32_u32 v{fe}, v{vt}
v_lshlrev_b32 v{vt}, 2, v{vg}
v_cvt_f32_u32 v{fg}, v{vt}
s_mov_b32 s36, {fl(1/32)}
s_mov_b32 s37, {fl(0.25)}''')
        for h in range(2):
            if h: k(f'v_add_f32 v{fe}, 4.0, v{fe}')
            k(f'v_mul_f32 v{f1}, s36, v{fe}\nv_mul_f32 v{ang}, v{fg}, v{f1}')
            for r in range(4):
                if r: k(f'v_add_f32 v{ang}, v{ang}, v{f1}')
                k(f'''v_cos_f32 v{c}, v{ang}
v_sin_f32 v{s}, v{ang}
v_mul_f32 v{vt}, {fl(1/16)}, v{ang}''')
                if r & 1: k(f'v_add_f32 v{vt}, s37, v{vt}')
                k(f'''v_cvt_pk_f16_f32 v{B1+8*h+r}, v{c}, v{s}
v_cvt_pk_f16_f32 v{B1+8*h+4+r}, -v{s}, v{c}
v_cos_f32 v{c}, v{vt}
v_sin_f32 v{s}, v{vt}
v_mul_f32 v{TW+8*h+2*r}, s37, v{c}
v_mul_f32 v{TW+8*h+2*r+1}, s37, v{s}''')
        k(f'v_cvt_f32_u32 v{f1}, v{vn}\nv_mul_f32 v{f1}, {fl(1/16)}, v{f1}\nv_mul_f32 v{ang}, v{fg}, v{f1}')
        for r in range(4):
            if r: k(f'v_add_f32 v{ang}, v{ang}, v{f1}')
            k(f'v_cos_f32 v{c}, v{ang}\nv_sin_f32 v{s}, v{ang}\nv_cvt_pk_f16_f32 v{B2+r}, v{c}, v{s}')
        k(f'''v_lshrrev_b32 v{vt}, 1, v{vn}
v_lshl_add_u32 v{vt}, v{vg}, 5, v{vt}
s_lshl_b32 s36, s22, 2
s_sub_u32 s37, {2048+12}, s36
v_lshl_add_u32 v{vra}, v{vt}, 4, s36
v_lshl_add_u32 v{vrb}, v{vt}, 4, s37
v_and_b32 v{vt}, 1, v0
v_cmp_eq_u32 s[46:47], 1, v{vt}
v_mov_b32 v{vt}, 0xbc003c00
v_mov_b32 v{vt2}, 0x3c00bc00
v_cndmask_b32 v{vsg}, v{vt}, v{vt2}, s[46:47]''')
        nload_after_u = 6 + (8 if mode == 5 else 0)
        k(f's_waitcnt vmcnt({nload_after_u})\nds_write_b128 v{vt16}, {vr(ug,4)}')
        if mode == 5:
            k('s_waitcnt vmcnt(6)')
            sa = k.v(); qa = k.v(); sb = k.v(); qb = k.v()
            for (S_, Q_, base) in ((sa, qa, ab), (sb, qb, ab+16)):
                k(f'v_add_f32 v{S_}, v{base}, v{base+1}\nv_mul_f32 v{Q_}, v{base}, v{base}')
                for i in range(1, 8):
                    if i > 1: k(f'v_add_f32 v{S_}, v{S_}, v{base+i}')
                    k(f'v_fmac_f32 v{Q_}, v{base+i}, v{base+i}')
            merge(k, sa, sb); merge(k, qa, qb)
            red_half(k, [sa, qa])
            k(f'''v_mul_f32 v{sa}, {fl(1/512)}, v{sa}
v_mul_f32 v{qa}, {fl(1/512)}, v{qa}
v_fma_f32 v{qa}, -v{sa}, v{sa}, v{qa}
v_max_f32 v{qa}, 0, v{qa}
v_add_f32 v{qa}, {fl(1e-5)}, v{qa}
v_rsq_f32 v{qa}, v{qa}
v_mul_f32 v{sa}, v{sa}, v{qa}
v_readlane_b32 s48, v{qa}, 16
v_readlane_b32 s49, v{qa}, 48
v_readlane_b32 s50, v{sa}, 16
v_readlane_b32 s51, v{sa}, 48
s_waitcnt lgkmcnt(0)
s_mul_i32 s42, s42, s23
s_mul_i32 s43, s43, s23
s_and_b32 s42, s42, 2047
s_and_b32 s43, s43, 2047
v_cvt_f32_u32 v{sa}, s42
v_cvt_f32_u32 v{qa}, s43
v_mul_f32 v{sa}, {fl(1/2048)}, v{sa}
v_mul_f32 v{qa}, {fl(1/2048)}, v{qa}
v_cmp_eq_u32 vcc, 0, v{vl}
v_sin_f32 v{sb}, v{sa}
v_sin_f32 v{qb}, v{qa}
v_cos_f32 v{sa}, v{sa}
v_cos_f32 v{qa}, v{qa}''')
            for rg in (sa, sb, qa, qb): k(f'v_mul_f32 v{rg}, {fl(0.25)}, v{rg}')
            for j in range(2):
                A_ = ab + 16*j; B_ = A_ + 8
                for i in range(8):
                    k(f'v_fma_f32 v{A_+i}, v{A_+i}, s{48+j}, -v{B_+i}\nv_subrev_f32 v{A_+i}, s{50+j}, v{A_+i}')
                k(f'v_cndmask_b32 v{A_+4}, v{A_+4}, v{A_}, vcc')
                for i in range(4):
                    k(f'v_add_f32 v{B_+i}, v{A_+i}, v{A_+4+i}\nv_sub_f32 v{B_+4+i}, v{A_+i}, v{A_+4+i}')
            cor = ab
            for i in range(4):
                k(f'''v_mul_f32 v{ab+8+i}, v{ab+8+i}, v{sa}
v_mul_f32 v{ab+12+i}, v{ab+12+i}, v{sb}
v_fmac_f32 v{ab+8+i}, v{ab+24+i}, v{qa}
v_fmac_f32 v{ab+12+i}, v{ab+28+i}, v{qb}
v_cndmask_b32 v{ab+4}, v{ab+8+i}, v{ab+12+i}, s[46:47]
v_cndmask_b32 v{ab+5}, -v{ab+12+i}, v{ab+8+i}, s[46:47]
v_cvt_pk_f16_f32 v{cor+i}, v{ab+4}, v{ab+5}''')
        u1 = k.v(4, 4); u2 = k.v(4, 4)
        k(f'''s_waitcnt lgkmcnt(0)
s_barrier
ds_read2_b32 {vr(u1,2)}, v{vra} offset0:0 offset1:32
ds_read2_b32 {vr(u2,2)}, v{vrb} offset0:0 offset1:32
ds_read2_b32 {vr(u1+2,2)}, v{vra} offset0:64 offset1:96
ds_read2_b32 {vr(u2+2,2)}, v{vrb} offset0:64 offset1:96''')
        wa = k.v(8); wb = k.v(8); sw = k.v()
        k('s_waitcnt vmcnt(0)')
        unpack_direct(k, wa, wd); unpack_mirror(k, wb, wm, wm0)
        k('s_waitcnt lgkmcnt(0)')
        for r in range(4):
            k(f'v_pk_fma_f16 v{u1+r}, v{u2+r}, v{vsg}, v{u1+r}')
            if mode == 5: k(f'v_pk_add_f16 v{u1+r}, v{u1+r}, v{cor+r}')
        D1 = k.v(16, 4)
        for h in range(2):
            for z in range(2):
                k(f'v_mfma_f32_16x16x32_f16 {vr(D1+8*h+4*z,4)}, {vr(u1,4)}, {vr(B1+8*h+4*z,4)}, 0')
        k(f'v_cvt_f32_f16 v{vt2}, v{u1}')
        unpack_direct(k, a, xd); unpack_mirror(k, b, xm, xm0)
        k(f'v_readlane_b32 s52, v{vt2}, 0')
        A2 = k.v(8, 4); D2 = k.v(8, 4)
        for h in range(2):
            for r in range(4):
                re, im, c_, s_ = D1+8*h+r, D1+8*h+4+r, TW+8*h+2*r, TW+8*h+2*r+1
                k(f'''v_mul_f32 v{vt}, v{re}, v{c_}
v_mul_f32 v{c_}, v{im}, v{c_}
v_fmac_f32 v{vt}, v{im}, v{s_}
v_fma_f32 v{c_}, -v{re}, v{s_}, v{c_}
v_cvt_pk_f16_f32 v{A2+4*h+r}, v{vt}, v{c_}''')
            k(f'v_mfma_f32_16x16x32_f16 {vr(D2+4*h,4)}, {vr(A2+4*h,4)}, {vr(B2,4)}, 0')
        k(f'v_add_f32 v{sw}, v{wa}, v{wa+1}')
        for i in range(2, 8): k(f'v_add_f32 v{sw}, v{sw}, v{wa+i}')
        k(f'''v_mov_b32 v{vt2}, s52
s_mov_b32 s54, {fl(16.0)}
v_readlane_b32 s53, v{D2}, 0
v_mul_f32 v{vt2}, -4.0, v{vt2}
v_mov_b32 v{vt}, s53
v_mul_f32 v{vt}, {fl(-16.0)}, v{vt}
v_add_f32 v{vt2}, v{vt2}, v{vt}''')
        for i in range(8):
            k(f'''v_fma_f32 v{D2+i}, v{D2+i}, s54, v{vt2 if i & 1 else vt}
v_add_f32 v{a+i}, v{a+i}, v{D2+i}
v_add_f32 v{b+i}, v{b+i}, v{D2+i}''')
    else:
        k('s_waitcnt vmcnt(0)')
        unpack_direct(k, a, xd); unpack_mirror(k, b, xm, xm0)
    sa = k.v(); qa = k.v(); sb = k.v(); qb = k.v()
    if mode != 1: ra = k.v(); rb = k.v(); sw2 = k.v()
    for (S_, Q_, base, R_, W_) in ((sa, qa, a, 0, 0), (sb, qb, b, 1, 1)):
        k(f'v_add_f32 v{S_}, v{base}, v{base+1}\nv_mul_f32 v{Q_}, v{base}, v{base}')
        if mode != 1:
            R_ = (ra, rb)[R_]; W_ = (wa, wb)[W_]
            k(f'v_mul_f32 v{R_}, v{base}, v{W_}')
        for i in range(1, 8):
            if i > 1: k(f'v_add_f32 v{S_}, v{S_}, v{base+i}')
            k(f'v_fmac_f32 v{Q_}, v{base+i}, v{base+i}')
            if mode != 1: k(f'v_fmac_f32 v{R_}, v{base+i}, v{W_+i}')
    if mode != 1: k(f'v_mov_b32 v{sw2}, v{sw}')
    merge(k, sa, sb); merge(k, qa, qb)
    if mode != 1:
        merge(k, ra, rb); merge(k, sw, sw2)
        red_half(k, [sa, qa, ra, sw])
    else:
        red_half(k, [sa, qa])
    k(f'''v_mul_f32 v{sa}, {fl(1/512)}, v{sa}
v_mul_f32 v{qa}, {fl(1/512)}, v{qa}
v_fma_f32 v{qa}, -v{sa}, v{sa}, v{qa}
v_max_f32 v{qa}, 0, v{qa}
v_add_f32 v{qb}, {fl(1e-5)}, v{qa}
v_rsq_f32 v{qb}, v{qb}''')
    if mode == 1:
        zc = qb
    else:
        st = k.v(4, 4); one = k.v(); nb = k.v(); zc = k.v()
        k(f'''v_add_f32 v{one}, 1.0, v{qb}
v_fma_f32 v{ra}, -v{sa}, v{sw}, v{ra}
v_mul_f32 v{nb}, v{sa}, v{qb}
v_mul_f32 v{qa}, v{qa}, v{one}
v_rcp_f32 v{st+1}, v{one}
v_mul_f32 v{qa}, v{qa}, v{one}
v_mul_f32 v{st+2}, v{ra}, v{qb}
v_add_f32 v{qa}, {fl(1e-5)}, v{qa}
v_mov_b32 v{st}, v{sa}
v_rsq_f32 v{st+3}, v{qa}
v_mul_f32 v{st+1}, v{st+1}, v{qb}
v_readlane_b32 s48, v{one}, 16
v_readlane_b32 s49, v{one}, 48
v_readlane_b32 s50, v{nb}, 16
v_readlane_b32 s51, v{nb}, 48
v_mul_f32 v{zc}, v{st+3}, v{one}''')
    if mode != 5:
        k(f'''v_mul_f32 v{sb}, v{sa}, v{zc}
v_readlane_b32 s52, v{zc}, 16
v_readlane_b32 s53, v{zc}, 48
v_readlane_b32 s54, v{sb}, 16
v_readlane_b32 s55, v{sb}, 48''')
        fv = k.v(8)
        k(f'v_mov_b32 v{vt}, s54\nv_add_f32 v{vt}, s55, v{vt}')
        for i in range(8):
            k(f'v_fma_f32 v{fv+i}, v{a+i}, s52, -v{vt}\nv_fmac_f32 v{fv+i}, s53, v{b+i}')
            if i == 0: k(f'ds_bpermute_b32 v{fv}, v{bpf}, v{fv}')
        pk = k.v(4, 4); t0 = k.v(); t1 = k.v()
        def sel(dst, i):
            if i == 4: return fv + 4
            k(f'v_cndmask_b32 v{dst}, v{fv+i}, v{fv+8-i}, s[44:45]'); return dst
        for i in (1, 2, 3):
            lo = sel(t0, 2*i); hi = sel(t1, 2*i+1)
            k(f'v_cvt_pk_f16_f32 v{pk+i}, v{lo}, v{hi}')
        hi = sel(t1, 1)
        k(f'''s_waitcnt lgkmcnt(0)
v_cvt_pk_f16_f32 v{pk}, v{fv}, v{hi}''')
        qoffs = 4096 if mode == 3 else 0
        if qoffs: k(f'v_add_u32 v{vqw}, {qoffs}, v{vqw}')
        k(f'''ds_write2_b32 v{vqw}, v{pk+2}, v{pk+3} offset0:8 offset1:12
ds_write2_b32 v{vqw}, v{pk}, v{pk+1} offset0:0 offset1:4''')
    if mode != 1:
        k(f'v_mov_b32 v{vt}, s50\nv_mov_b32 v{vt2}, s51')
        for i in range(8):
            k(f'v_fma_f32 v{b+i}, v{b+i}, s49, -v{vt2}')
            if i == 0: k(f'ds_bpermute_b32 v{b}, v{bpm}, v{b}')
        for i in range(8): k(f'v_fma_f32 v{a+i}, v{a+i}, s48, -v{vt}')
        for i in range(4): k(f'v_cvt_pk_bf16_f32 v{xd+i}, v{a+2*i}, v{a+2*i+1}')
        for i in range(1, 4): k(f'v_cvt_pk_bf16_f32 v{xm+i}, v{b+8-2*i}, v{b+7-2*i}')
        if mode == 3:
            k(f's_add_u32 s36, s28, {hex(X2)}\ns_add_u32 s37, s29, {hex(X2)}')
            ds_, o1, o2 = 4, 36, 37
        else:
            ds_, o1, o2 = 16, 28, 29
        k(f'''buffer_store_dwordx4 {vr(xd,4)}, v{vod}, s[{ds_}:{ds_+3}], s{o1} offen
s_waitcnt lgkmcnt(0)
v_cvt_pk_bf16_f32 v{xm}, v{b}, v{b+7}
buffer_store_dwordx4 {vr(xm,4)}, v{vom}, s[{ds_}:{ds_+3}], s{o2} offen''')
    if mode != 5:
        k(f'''s_waitcnt lgkmcnt(0)
s_barrier
ds_read_b128 {vr(pk,4)}, v{vt16} offset:{qoffs}
s_add_u32 s38, s25, {hex(Q1 if mode == 1 else Q2)}''')
    if mode != 1:
        k(f'''v_mov_b32 v{vt}, s23
v_mov_b32 v{vt2}, s24
v_cmp_lt_u32 vcc, 31, v{vl}
v_ashrrev_i32 v{one}, 31, v{st+2}
v_or_b32 v{one}, 0x80000000, v{one}
v_cndmask_b32 v{vt}, v{vt}, v{vt2}, vcc
v_xor_b32 v{one}, v{one}, v{st+2}
v_sub_u32 v{vt2}, 2047, v{vt}
v_and_b32 v{one}, 0xfffff800, v{one}
v_or_b32 v{one}, v{one}, v{vt2}
v_lshlrev_b32 v{vt2}, 2, v{vt}
v_lshlrev_b32 v{vt}, 4, v{vt}
s_mov_b32 s36, {hex(KEY1 if mode == 3 else KEY2)}
s_mov_b32 s37, {hex(ST1 if mode == 3 else ST2)}
s_mov_b32 exec_lo, 0x10000
s_mov_b32 exec_hi, 0x10000
buffer_store_dword v{one}, v{vt2}, s[4:7], s36 offen
buffer_store_dwordx4 {vr(st,4)}, v{vt}, s[4:7], s37 offen
s_mov_b64 exec, -1''')
    if mode != 5:
        k(f's_waitcnt lgkmcnt(0)\nbuffer_store_dwordx4 {vr(pk,4)}, v{vp}, s[4:7], s38 offen')
    k.lab(f'{name}_end')
    k('s_endpgm')
    return k
```

```python
from gen import *

def col_body(k, name, Qo, Uo, pbase):
    k.nv = 1
    vn = k.v(); vg = k.v(); vt = k.v(); vt2 = k.v(); va0 = k.v(); va = k.v(); vst = k.v()
    X = k.v(32, 4)
    k(f'''v_lshrrev_b32 v{vt}, 6, v0
v_and_b32 v{vn}, 15, v0
v_bfe_u32 v{vg}, v0, 4, 2
v_readfirstlane_b32 s22, v{vt}
s_sub_u32 s20, s2, {pbase}
s_mul_i32 s20, s20, {PITCH}
v_lshlrev_b32 v{va}, 7, v{vn}
v_lshl_add_u32 v{va}, v{vg}, 5, v{va}
v_add_u32 v{va0}, {8192-128}, v{va}
v_and_b32 v{va0}, 8191, v{va0}
s_add_u32 s24, s20, {hex(Qo)}
s_add_u32 s25, s24, {2048-128}
s_add_u32 s26, s24, {4096-128}
s_add_u32 s27, s24, {6144-128}
s_waitcnt lgkmcnt(0)''')
    srd(k, 4, 30, WS_BYTES)
    for T in range(2):
        for hi in range(2):
            for half in range(2):
                q = T + 2*hi
                k(f'buffer_load_dwordx4 {vr(X+16*T+8*hi+4*half,4)}, v{va0 if q == 0 else va}, s[4:7], s{24+q} offen offset:{16*half}')
    B1 = k.v(32, 4)
    TW = k.v(16)
    A2 = k.v(32, 4)
    fk = k.v(); fg = k.v(); c = k.v(); s = k.v(); ang = k.v(); f1 = k.v(); f2 = k.v()
    k(f'''s_lshl_b32 s23, s22, 4
v_add_u32 v{vt}, s23, v{vn}
v_cvt_f32_u32 v{fk}, v{vt}
v_add_u32 v{vt}, 63, v{vt}
v_and_b32 v{vt}, 63, v{vt}
v_lshlrev_b32 v{vst}, 7, v{vt}
v_lshl_add_u32 v{vst}, v{vg}, 5, v{vst}
v_cvt_f32_u32 v{fg}, v{vg}
v_mul_f32 v{f1}, {fl(1/64)}, v{fk}
v_add_f32 v{f2}, v{f1}, v{f1}
v_mul_f32 v{vt2}, {fl(16.0)}, v{fg}
v_mul_f32 v{vt2}, v{vt2}, v{f1}''')
    for hi in range(2):
        if hi: k(f'v_add_f32 v{ang}, v{vt2}, v{f1}')
        else: k(f'v_mov_b32 v{ang}, v{vt2}')
        for half in range(2):
            for r in range(4):
                if half or r: k(f'v_add_f32 v{ang}, v{ang}, v{f2}')
                o = B1 + 16*hi + 8*half
                k(f'''v_cos_f32 v{c}, v{ang}
v_sin_f32 v{s}, v{ang}
v_cvt_pk_f16_f32 v{o+r}, v{c}, v{s}
v_cvt_pk_f16_f32 v{o+4+r}, -v{s}, v{c}''')
    k(f'''v_mul_f32 v{f1}, {fl(1/2048)}, v{fk}
v_mul_f32 v{fg}, 4.0, v{fg}
s_mov_b32 s28, {fl(0.125)}
s_mov_b32 s29, {fl(13.0)}
v_mul_f32 v{ang}, v{fg}, v{f1}''')
    for T in range(2):
        for r in range(4):
            if r: k(f'v_add_f32 v{ang}, v{ang}, v{f1}')
            elif T: k(f'v_fmac_f32 v{ang}, s29, v{f1}')
            k(f'''v_cos_f32 v{c}, v{ang}
v_sin_f32 v{s}, v{ang}
v_mul_f32 v{TW+8*T+2*r}, s28, v{c}
v_mul_f32 v{TW+8*T+2*r+1}, s28, v{s}''')
    k(f'''v_lshrrev_b32 v{vt}, 2, v{vn}
v_and_b32 v{vt2}, 3, v{vn}
v_lshl_add_u32 v{vt}, v{vt}, 3, v{vt2}
v_cvt_f32_u32 v{fk}, v{vt}''')
    for h in range(2):
        if h: k(f'v_add_f32 v{fk}, 4.0, v{fk}')
        k(f'v_mul_f32 v{f1}, {fl(1/32)}, v{fk}\nv_mul_f32 v{ang}, v{fg}, v{f1}')
        for T in range(2):
            for r in range(4):
                if r: k(f'v_add_f32 v{ang}, v{ang}, v{f1}')
                elif T: k(f'v_fmac_f32 v{ang}, s29, v{f1}')
                o = A2 + 16*h + 4*T
                k(f'''v_cos_f32 v{c}, v{ang}
v_sin_f32 v{s}, v{ang}
v_cvt_pk_f16_f32 v{o+r}, v{c}, v{s}
v_cvt_pk_f16_f32 v{o+8+r}, -v{s}, v{c}''')
    D1 = k.v(16, 4); Bd = k.v(8, 4); D2 = k.v(16, 4)
    for T in range(2):
        for kap in range(4):
            k(f's_waitcnt vmcnt({7-4*T-kap})')
            for z in range(2):
                d = vr(D1+8*T+4*z, 4)
                k(f'v_mfma_f32_16x16x32_f16 {d}, {vr(X+16*T+4*kap,4)}, {vr(B1+8*kap+4*z,4)}, {d if kap else 0}')
    for T in range(2):
        for r in range(4):
            re, im, c_, s_ = D1+8*T+r, D1+8*T+4+r, TW+8*T+2*r, TW+8*T+2*r+1
            k(f'''v_mul_f32 v{vt}, v{re}, v{c_}
v_mul_f32 v{c_}, v{im}, v{c_}
v_fmac_f32 v{vt}, v{im}, v{s_}
v_fma_f32 v{c_}, -v{re}, v{s_}, v{c_}
v_cvt_pk_f16_f32 v{Bd+4*T+r}, v{vt}, v{c_}''')
        for h in range(2):
            for z in range(2):
                d = vr(D2+8*h+4*z, 4)
                k(f'v_mfma_f32_16x16x32_f16 {d}, {vr(A2+16*h+8*z+4*T,4)}, {vr(Bd+4*T,4)}, {d if T else 0}')
    k(f's_add_u32 s24, s20, {hex(Uo)}')
    for h in range(2):
        for r in range(4): k(f'v_cvt_pk_f16_f32 v{X+4*h+r}, v{D2+8*h+r}, v{D2+8*h+4+r}')
        k(f'buffer_store_dwordx4 {vr(X+4*h,4)}, v{vst}, s[4:7], s24 offen offset:{16*h}')
    k(f'''v_cmp_eq_u32 vcc, 0, v0
s_and_b64 exec, exec, vcc
s_cbranch_execz {name}_end
buffer_store_dword v{X}, v{vst}, s[4:7], s24 offen offset:128''')

def ffn_body(k, name, layer):
    KEY, ST, H = (KEY1, ST1, H1) if layer == 1 else (KEY2, ST2, H2)
    k.nv = 1
    vl = k.v(); vn = k.v(); vg = k.v(); vt = k.v(); vt2 = k.v(); vw = k.v(); vtr = k.v(); vlw = k.v()
    ky = k.v(8, 4); m1 = k.v(); m2 = k.v(); n1 = k.v(); n2 = k.v()
    Wt = k.v(56, 4); Fr = k.v(56, 4); Af = k.v(56, 4); D = k.v(8, 4)
    k(f'''v_lshrrev_b32 v{vt}, 6, v0
v_and_b32 v{vl}, 63, v0
v_and_b32 v{vn}, 15, v0
v_bfe_u32 v{vg}, v0, 4, 2
v_readfirstlane_b32 s22, v{vt}
v_lshlrev_b32 v{vt}, 5, v0
s_mov_b32 s36, {hex(KEY)}
s_and_b32 s20, s2, 7
s_bfe_u32 s21, s2, 0x20003
s_waitcnt lgkmcnt(0)''')
    srd(k, 4, 30, WS_BYTES)
    k(f'''buffer_load_dwordx4 {vr(ky,4)}, v{vt}, s[4:7], s36 offen
buffer_load_dwordx4 {vr(ky+4,4)}, v{vt}, s[4:7], s36 offen offset:16''')
    if layer == 1:
        k(f's_add_u32 s32, s30, {hex(X2)}\ns_addc_u32 s33, s31, 0')
    srd(k, 8, 32, 2048*1024)
    k(f'''v_lshrrev_b32 v{vt}, 1, v{vl}
v_and_b32 v{vt2}, 1, v{vl}
v_lshlrev_b32 v{vt2}, 4, v{vt2}
v_lshlrev_b32 v{vtr}, 8, v{vg}
v_lshl_add_u32 v{vtr}, v{vn}, 3, v{vtr}
v_lshlrev_b32 v{vlw}, 4, v{vl}
s_cmp_ge_u32 s2, 128
s_cbranch_scc1 {name}_cons0''')
    k(f'''s_lshr_b32 s23, s2, 5
s_lshl_b32 s23, s23, 3
s_add_u32 s23, s23, s20
s_cmp_ge_u32 s23, 28
s_cbranch_scc1 {name}_end
s_lshl_b32 s23, s23, 7
s_lshl_b32 s24, s21, 5
s_add_u32 s23, s23, s24
s_mul_i32 s24, s22, {128*3584}
s_add_u32 s24, s24, s23
s_mov_b32 s25, 3584
v_mad_u32_u24 v{vw}, v{vt}, s25, v{vt2}''')
    srd(k, 12, 56, 512*3584); srd(k, 16, 58, 512*3584)
    for kap in range(4):
        k(f'''buffer_load_dwordx4 {vr(Wt+4*kap,4)}, v{vw}, s[12:15], s24 offen
buffer_load_dwordx4 {vr(Wt+16+4*kap,4)}, v{vw}, s[16:19], s24 offen''')
        if kap < 3: k(f's_add_u32 s24, s24, {32*3584}')
    k(f'''s_lshl_b32 s25, s22, 13
s_waitcnt vmcnt(8)
s_branch {name}_top2''')
    k.lab(f'{name}_cons0')
    k(f'''s_lshl_b32 s23, s20, 7
s_lshl_b32 s24, s21, 5
s_add_u32 s23, s23, s24
s_mul_i32 s24, s22, {448*1024}
s_add_u32 s24, s24, s23
v_lshl_add_u32 v{vw}, v{vt}, 10, v{vt2}''')
    srd(k, 12, 60, 1792*1024); srd(k, 16, 60, 1792*1024)
    for kap in range(14):
        k(f'buffer_load_dwordx4 {vr(Wt+4*kap,4)}, v{vw}, s[12:15], s24 offen')
        if kap < 13: k(f's_add_u32 s24, s24, {32*1024}')
    k(f's_mul_i32 s25, s22, {14*1024}\ns_waitcnt vmcnt(14)')
    k.lab(f'{name}_top2')
    RED = 57344
    k(f'''v_add_u32 v{vtr}, s25, v{vtr}
v_add_u32 v{vlw}, s25, v{vlw}
v_max_u32 v{m1}, v{ky}, v{ky+1}
v_min_u32 v{m2}, v{ky}, v{ky+1}''')
    for i in range(2, 8):
        k(f'v_med3_u32 v{m2}, v{m1}, v{m2}, v{ky+i}\nv_max_u32 v{m1}, v{m1}, v{ky+i}')
    def mergepair():
        k(f'''v_max_u32 v{m2}, v{m2}, v{n2}
v_med3_u32 v{m2}, v{m1}, v{m2}, v{n1}
v_max_u32 v{m1}, v{m1}, v{n1}''')
    for m in ('quad_perm:[1,0,3,2]', 'quad_perm:[2,3,0,1]', 'row_half_mirror', 'row_mirror'):
        k(f'v_mov_b32_dpp v{n1}, v{m1} {m} {DPP}\nv_mov_b32_dpp v{n2}, v{m2} {m} {DPP}')
        mergepair()
    k(f'''v_lshrrev_b32 v{vt}, 4, v0
v_lshlrev_b32 v{vt}, 3, v{vt}
v_lshlrev_b32 v{vt2}, 3, v{vn}
ds_write_b64 v{vt}, {vr(m1,2)} offset:{RED}
s_waitcnt lgkmcnt(0)
s_barrier
ds_read_b64 {vr(m1,2)}, v{vt2} offset:{RED}
s_waitcnt lgkmcnt(0)''')
    assert m1 % 2 == 0
    for m in ('quad_perm:[1,0,3,2]', 'quad_perm:[2,3,0,1]', 'row_half_mirror', 'row_mirror'):
        k(f'v_mov_b32_dpp v{n1}, v{m1} {m} {DPP}\nv_mov_b32_dpp v{n2}, v{m2} {m} {DPP}')
        mergepair()
    k(f'''v_readfirstlane_b32 s40, v{m1}
v_readfirstlane_b32 s41, v{m2}
s_andn2_b32 s40, 2047, s40
s_andn2_b32 s41, 2047, s41
s_lshl_b32 s42, s40, 4
s_lshl_b32 s43, s41, 4
s_add_u32 s42, s42, {hex(ST)}
s_add_u32 s43, s43, {hex(ST)}
s_buffer_load_dwordx4 s[44:47], s[4:7], s42
s_buffer_load_dwordx4 s[48:51], s[4:7], s43
s_lshl_b32 s42, s40, 10
s_lshl_b32 s43, s41, 10
v_and_b32 v{vt}, 1, v0
v_cmp_eq_u32 s[52:53], 1, v{vt}
v_cmp_gt_u32 s[54:55], 2, v{vn}
s_cmp_ge_u32 s2, 128
s_cbranch_scc1 {name}_cons1''')
    k(f'''v_mov_b32 v{vt}, s42
v_mov_b32 v{vt2}, s43
v_cndmask_b32 v{vt}, v{vt}, v{vt2}, s[52:53]
v_lshl_add_u32 v{vt}, v{vg}, 4, v{vt}
s_lshl_b32 s26, s22, 8''')
    for i in range(16): k(f'v_mov_b32 v{Af+i}, 0x3f803f80')
    k('s_mov_b64 exec, s[54:55]')
    for kap in range(4): k(f'buffer_load_dwordx4 {vr(Af+4*kap,4)}, v{vt}, s[8:11], s26 offen offset:{64*kap}')
    k('s_mov_b64 exec, -1\ns_waitcnt vmcnt(4)')
    for i in range(8): k(f'ds_write_b128 v{vlw}, {vr(Wt+4*i,4)} offset:{1024*i}')
    k('s_waitcnt lgkmcnt(0)')
    for i in range(8):
        for u in range(2): k(f'ds_read_b64_tr_b16 {vr(Fr+4*i+2*u,2)}, v{vtr} offset:{1024*i+128*u}')
    k(f'''v_lshlrev_b32 v{vt}, 4, v{vn}
s_lshl_b32 s26, s22, 9
v_add_u32 v{vt2}, s26, v{vt}
s_waitcnt vmcnt(0) lgkmcnt(0)''')
    for kap in range(4):
        for mat in range(2):
            d = vr(D+4*mat, 4)
            k(f'v_mfma_f32_16x16x32_bf16 {d}, {vr(Af+4*kap,4)}, {vr(Fr+16*mat+4*kap,4)}, {d if kap else 0}')
    k(f'''s_mov_b64 exec, 0xffff
ds_write_b128 v{vt2}, {vr(D,4)} offset:{RED+128}
ds_write_b128 v{vt2}, {vr(D+4,4)} offset:{RED+128+256}
s_waitcnt lgkmcnt(0)
s_barrier
s_cmp_lg_u32 s22, 0
s_cbranch_scc1 {name}_end''')
    for i in range(8): k(f'ds_read_b128 {vr(Wt+4*i,4)}, v{vt} offset:{RED+128+256*i}')
    k('s_waitcnt lgkmcnt(0)')
    for mat in range(2):
        for r in range(3):
            o = Wt + 4*mat + r
            k(f'v_add_f32 v{o}, v{o}, v{o+8}\nv_add_f32 v{o+16}, v{o+16}, v{o+24}\nv_add_f32 v{o}, v{o}, v{o+16}')
    k(f's_mov_b32 s26, {fl(-1.4426950408889634)}')
    for j in range(2):
        sm, sk = 44 + 4*j, 45 + 4*j
        G, U_ = Wt + j, Wt + 4 + j
        k(f'''v_fma_f32 v{G}, -v{Wt+2}, s{sm}, v{G}
v_fma_f32 v{U_}, -v{Wt+6}, s{sm}, v{U_}
v_mul_f32 v{G}, s{sk}, v{G}
v_mul_f32 v{U_}, s{sk}, v{U_}
v_mul_f32 v{n1}, s26, v{G}
v_exp_f32 v{n1}, v{n1}
v_mul_f32 v{G}, v{G}, v{U_}
v_add_f32 v{n1}, 1.0, v{n1}
v_rcp_f32 v{n1}, v{n1}
v_mul_f32 v{G}, v{G}, v{n1}''')
    k(f'''v_cvt_pk_bf16_f32 v{m1}, v{Wt}, v{Wt+1}
v_mov_b32 v{n1}, 0x05040100
v_mov_b32 v{n2}, 0x03020706
v_cndmask_b32 v{n1}, v{n1}, v{n2}, s[52:53]
v_mov_b32_dpp v{m2}, v{m1} quad_perm:[1,0,3,2] {DPP}
v_and_b32 v{vt}, 14, v{vn}
v_lshlrev_b32 v{vt}, 1, v{vt}
v_add_u32 v{vt2}, 3584, v{vt}
v_perm_b32 v{m1}, v{m2}, v{m1}, v{n1}
v_cndmask_b32 v{vt}, v{vt}, v{vt2}, s[52:53]
s_add_u32 s23, s23, {hex(H)}
v_min_u32 v{m1}, -2, v{m1}
buffer_store_dword v{m1}, v{vt}, s[4:7], s23 offen sc0 sc1
s_endpgm''')
    k.lab(f'{name}_cons1')
    old = k.v(2)
    k(f'''v_lshlrev_b32 v{n1}, 1, v{vn}
s_add_u32 s42, s42, s23
s_add_u32 s43, s43, s23
buffer_load_ushort v{old}, v{n1}, s[8:11], s42 offen
buffer_load_ushort v{old+1}, v{n1}, s[8:11], s43 offen
s_waitcnt vmcnt(2)''')
    for i in range(14): k(f'ds_write_b128 v{vlw}, {vr(Wt+4*i,4)} offset:{1024*i}')
    k('s_waitcnt lgkmcnt(0)')
    for i in range(14):
        for u in range(2): k(f'ds_read_b64_tr_b16 {vr(Fr+4*i+2*u,2)}, v{vtr} offset:{1024*i+128*u}')
    k(f'''v_lshlrev_b32 v{vt}, 4, v{vg}
v_add_u32 v{vt2}, 3584, v{vt}
v_cndmask_b32 v{vt}, v{vt}, v{vt2}, s[52:53]
s_mul_i32 s26, s22, 896
s_add_u32 s26, s26, {hex(H)}''')
    for i in range(56): k(f'v_mov_b32 v{Af+i}, 0')
    k('s_mov_b64 exec, s[54:55]\ns_mov_b32 s27, 0x40000')
    k.lab(f'{name}_poll')
    for kap in range(14): k(f'buffer_load_dwordx4 {vr(Af+4*kap,4)}, v{vt}, s[4:7], s26 offen offset:{64*kap} sc0 sc1')
    for kap in range(14):
        k(f's_waitcnt vmcnt({13-kap})')
        o = Af + 4*kap
        if kap == 0: k(f'v_max_u32 v{m1}, v{o}, v{o+1}')
        else: k(f'v_max3_u32 v{m1}, v{m1}, v{o}, v{o+1}')
        k(f'v_max3_u32 v{m1}, v{m1}, v{o+2}, v{o+3}')
    k(f'''v_cmp_eq_u32 vcc, -1, v{m1}
s_sub_u32 s27, s27, 1
s_cbranch_scc1 {name}_pollx
s_cbranch_vccnz {name}_poll
{name}_pollx:
s_mov_b64 exec, -1
v_lshlrev_b32 v{vt}, 4, v{vn}
s_lshl_b32 s26, s22, 8
v_add_u32 v{vt2}, s26, v{vt}
s_waitcnt lgkmcnt(0)''')
    for kap in range(14):
        d = vr(D+4*(kap&1), 4)
        k(f'v_mfma_f32_16x16x32_bf16 {d}, {vr(Af+4*kap,4)}, {vr(Fr+4*kap,4)}, {d if kap > 1 else 0}')
    k(f'''v_add_f32 v{D}, v{D}, v{D+4}
v_add_f32 v{D+1}, v{D+1}, v{D+5}
s_mov_b64 exec, 0xffff
ds_write_b64 v{vt2}, {vr(D,2)} offset:{RED+128}
s_waitcnt lgkmcnt(0)
s_barrier
s_cmp_lg_u32 s22, 0
s_cbranch_scc1 {name}_end''')
    for i in range(4): k(f'ds_read_b64 {vr(Wt+2*i,2)}, v{vt} offset:{RED+128+256*i}')
    k(f'''s_mov_b32 s26, {fl(-1.4426950408889634)}
v_mov_b32 v{m1}, s46
v_mov_b32 v{m2}, s50
v_mul_f32 v{m1}, s26, v{m1}
v_mul_f32 v{m2}, s26, v{m2}
v_exp_f32 v{m1}, v{m1}
v_exp_f32 v{m2}, v{m2}
v_lshlrev_b32 v{old}, 16, v{old}
v_lshlrev_b32 v{old+1}, 16, v{old+1}
v_add_f32 v{m1}, 1.0, v{m1}
v_add_f32 v{m2}, 1.0, v{m2}
v_rcp_f32 v{m1}, v{m1}
v_rcp_f32 v{m2}, v{m2}
s_waitcnt lgkmcnt(0)''')
    for j in range(2):
        o = Wt + j
        k(f'''v_add_f32 v{o}, v{o}, v{o+2}
v_add_f32 v{o+4}, v{o+4}, v{o+6}
v_add_f32 v{o}, v{o}, v{o+4}
v_fma_f32 v{o}, v{o}, v{m1+j}, v{old+j}''')
    k(f'''v_cvt_pk_bf16_f32 v{n2}, v{Wt}, v{Wt+1}
buffer_store_short v{n2}, v{n1}, s[8:11], s42 offen
buffer_store_short_d16_hi v{n2}, v{n1}, s[8:11], s43 offen''')
    if layer == 1:
        e = Wt + 8; d_ = Wt + 9; pos = Wt + 10
        k(f'''s_lshr_b32 s26, s23, 1
v_add_u32 v{e}, s26, v{vn}
v_add_u32 v{vt}, -1, v{e}
v_sub_u32 v{d_}, 512, v{e}
v_cmp_lt_u32 vcc, 255, v{vt}
v_mov_b32 v{vt2}, 0
v_cndmask_b32 v{d_}, v{e}, v{d_}, vcc
v_cndmask_b32 v{vt2}, v{vt2}, 16, vcc
v_and_b32 v{d_}, 255, v{d_}
v_and_b32 v{pos}, 15, v{d_}
v_lshl_add_u32 v{pos}, v{pos}, 5, v{vt2}
v_lshrrev_b32 v{vt}, 6, v{d_}
v_lshl_add_u32 v{pos}, v{vt}, 9, v{pos}
v_bfe_u32 v{vt}, v{d_}, 4, 2
v_lshl_add_u32 v{pos}, v{vt}, 2, v{pos}
v_subrev_f32 v{old}, s44, v{old}
v_subrev_f32 v{old+1}, s48, v{old+1}
v_mul_f32 v{old}, s47, v{old}
v_mul_f32 v{old+1}, s51, v{old+1}
s_mov_b32 s26, {hex(AB)}
s_mov_b32 s27, {hex(AB+4096)}
buffer_store_dword v{Wt}, v{pos}, s[4:7], s26 offen
buffer_store_dword v{old}, v{pos}, s[4:7], s26 offen offset:2048
buffer_store_dword v{Wt+1}, v{pos}, s[4:7], s27 offen
buffer_store_dword v{old+1}, v{pos}, s[4:7], s27 offen offset:2048
v_mov_b32 v{Wt+12}, s40
v_mov_b32 v{Wt+13}, s41
v_mov_b32 v{vt}, 0
s_mov_b32 s26, {hex(SEL)}
buffer_store_dwordx2 {vr(Wt+12,2)}, v{vt}, s[4:7], s26 offen''')
    k('s_endpgm')

def col_kernel(name):
    k = K(name)
    k(f's_load_dwordx2 s[30:31], s[0:1], 96\ns_cmp_ge_u32 s2, 128\ns_cbranch_scc1 {name}_end')
    col_body(k, name, Q1, U1, 0)
    k.lab(f'{name}_end'); k('s_endpgm')
    return k
def ffn_loads(k):
    k('''s_load_dwordx2 s[30:31], s[0:1], 96
s_load_dwordx2 s[32:33], s[0:1], 80
s_load_dwordx4 s[56:59], s[0:1], 56
s_load_dwordx2 s[60:61], s[0:1], 72''')
def colffn_kernel(name):
    k = K(name)
    ffn_loads(k)
    k(f's_cmp_ge_u32 s2, 160\ns_cbranch_scc1 {name}_col')
    ffn_body(k, name, 1)
    k.lab(f'{name}_col')
    k(f's_cmp_ge_u32 s2, 288\ns_cbranch_scc1 {name}_end')
    col_body(k, name, Q2, U2, 160)
    k.lab(f'{name}_end'); k('s_endpgm')
    return k
def ffn_kernel(name):
    k = K(name)
    ffn_loads(k)
    k(f's_cmp_ge_u32 s2, 160\ns_cbranch_scc1 {name}_end')
    ffn_body(k, name, 2)
    k.lab(f'{name}_end'); k('s_endpgm')
    return k
def empty_kernel(name):
    k = K(name); k('s_endpgm'); k.maxv = 8
    return k

def emit(launches, path):
    hdr = open('cdna_kernels/' + NAME + '.s.ref').read().split('\n')
    out = [l for l in hdr if l.startswith(';') and '@launch' not in l and 'Override launch' not in l and 'grid=ceil' not in l]
    seen = {}
    for (k, g, blk, lds) in launches:
        out.append(f'; @launch kernel={k.name} grid=({g},1,1) block=({blk},1,1) lds={lds}')
        seen[k.name] = k
    out.append('.amdgcn_target "amdgcn-amd-amdhsa--gfx950"\n.text')
    for k in seen.values():
        out.append(f'.globl {k.name}\n.p2align 8\n.type {k.name},@function\n{k.name}:')
        out += fix_hazards(k.L)
    out.append('.section .rodata,"a"')
    for k in seen.values():
        nv = (k.maxv + 7) // 8 * 8
        out.append(f'''.p2align 6
.amdhsa_kernel {k.name}
  .amdhsa_next_free_vgpr {nv}
  .amdhsa_next_free_sgpr 72
  .amdhsa_accum_offset {nv}
  .amdhsa_group_segment_fixed_size 0
  .amdhsa_kernarg_size 104
  .amdhsa_user_sgpr_count 2
  .amdhsa_user_sgpr_kernarg_segment_ptr 1
  .amdhsa_system_sgpr_workgroup_id_x 1
.end_amdhsa_kernel''')
    open(path, 'w').write('\n'.join(out) + '\n')

if __name__ == '__main__':
    nextra = int(sys.argv[2]) if len(sys.argv) > 2 else 0
    L = [(row_kernel('k1_kernel', 1), 257, 256, 4096),
         (col_kernel('k2_kernel'), 128, 256, 0),
         (row_kernel('k3_kernel', 3), 257, 256, 8192),
         (colffn_kernel('k4_kernel'), 288, 256, 57344 + 2304),
         (row_kernel('k5_kernel', 5), 257, 256, 4096),
         (ffn_kernel('k6_kernel'), 160, 256, 57344 + 2304)]
    e = empty_kernel('k0_kernel')
    L += [(e, 256, 256, 0)] * nextra
    for (k, *_r) in L: print(k.name, 'vgprs', k.maxv, 'instrs', len(k.L))
    emit(L, sys.argv[1])
```

```python
import re
TRANS = ('v_exp_f32','v_log_f32','v_rcp_f32','v_rsq_f32','v_sqrt_f32','v_sin_f32','v_cos_f32','v_rcp_iflag_f32')
def regs_of(tok):
    tok = tok.strip()
    out = set()
    t = tok.lstrip('-')
    m = re.fullmatch(r'abs\((.*)\)', t) or re.fullmatch(r'\|(.*)\|', t)
    if m: t = m.group(1)
    m = re.fullmatch(r'([vsa])(\d+)', t)
    if m: out.add((m.group(1), int(m.group(2)))); return out
    m = re.fullmatch(r'([vsa])\[(\d+):(\d+)\]', t)
    if m:
        for i in range(int(m.group(2)), int(m.group(3))+1): out.add((m.group(1), i))
        return out
    if t in ('vcc','vcc_lo','vcc_hi'): out.add(('vcc',0))
    if t in ('exec','exec_lo','exec_hi'): out.add(('exec',0))
    if t == 'm0': out.add(('m0',0))
    return out

class Ins:
    def __init__(self, text):
        self.text = text
        s = text.split(';')[0].strip()
        self.is_label = s.endswith(':')
        self.is_dir = s.startswith('.') or s == ''
        self.mn = s.split()[0] if s else ''
        rest = s[len(self.mn):].strip()
        ops, depth, cur = [], 0, ''
        for ch in rest:
            if ch in '[(': depth += 1
            if ch in '])': depth -= 1
            if ch == ',' and depth == 0: ops.append(cur); cur = ''
            else: cur += ch
        if cur.strip(): ops.append(cur)
        mods = ''
        if ops:
            last = ops[-1].strip().split(None, 1)
            ops[-1] = last[0]
            mods = last[1] if len(last) > 1 else ''
        self.ops = [o.strip() for o in ops]
        self.mods = mods
        mn = self.mn
        self.valu = mn.startswith('v_') and not mn.startswith('v_mfma')
        self.mfma = mn.startswith('v_mfma')
        self.salu = mn.startswith('s_')
        self.vmem = mn.startswith(('buffer_','global_','flat_'))
        self.ds = mn.startswith('ds_')
        base = re.sub(r'_(e32|e64|dpp|sdwa)$', '', mn)
        self.base = base
        self.trans = base in TRANS
        self.dpp = mn.endswith('_dpp')
        self.perml = mn.startswith('v_permlane')
        self.rdlane = base in ('v_readlane_b32','v_readfirstlane_b32')
        self.opsel = ('sdwa' in mn and 'dst_sel:DWORD' not in mods) or (base in ('v_fma_mixlo_f16','v_fma_mixhi_f16'))
        W, R = set(), set()
        o = [regs_of(x) for x in self.ops]
        if self.valu or self.mfma:
            W |= o[0]
            k = 1
            if base in ('v_add_co_u32','v_sub_co_u32','v_addc_co_u32','v_subb_co_u32','v_div_scale_f32','v_mad_u64_u32'):
                W |= o[1]; k = 2
            for x in o[k:]: R |= x
            if base in ('v_fmac_f32','v_dot2c_f32_bf16','v_writelane_b32','v_fma_mixlo_f16','v_fma_mixhi_f16') or self.dpp: R |= o[0]
            if self.perml: W |= o[1]; R |= o[0]
            if base.startswith('v_cmpx'): W.add(('exec',0))
            if self.mfma:
                self.D, self.A, self.B, self.C = o[0], o[1], o[2], o[3]
                self.passes = 8 if '32x32' in mn else 4
        elif self.vmem:
            if 'store' in mn or ('atomic' in mn):
                for x in o: R |= x
                if 'atomic' in mn and 'sc0' in mods: W |= o[0]
            elif ' lds' in (' '+mods) or '_lds_' in mn:
                for x in o: R |= x
                R.add(('m0',0))
            elif o:
                W |= o[0]
                for x in o[1:]: R |= x
            self.wide_store = ('store' in mn and ('x3' in mn or 'x4' in mn))
            if self.wide_store:
                self.sdata = o[0] if mn.startswith('buffer') else o[1]
        elif self.ds:
            if 'write' in mn:
                for x in o: R |= x
            else:
                W |= o[0]
                for x in o[1:]: R |= x
        elif self.salu and o:
            if mn.startswith(('s_cmp','s_cbranch','s_branch','s_waitcnt','s_nop','s_barrier','s_sleep','s_setprio','s_endpgm','s_bitcmp')):
                for x in o: R |= x
            else:
                W |= o[0]
                for x in o[1:]: R |= x
                if 'saveexec' in mn: W.add(('exec',0))
        self.W, self.R = W, R
    def states(self):
        if self.is_label or self.is_dir: return 0
        if self.mn == 's_nop': return int(self.ops[0], 0) + 1
        return 1

def need(p, c):
    n = 0
    pv = {r for r in p.W if r[0] in 'va' and len(r[0]) == 1}
    ps = {r for r in p.W if r[0] in ('s','vcc')}
    if p.valu:
        if c.mfma and pv & c.R: n = max(n, 2)
        if c.dpp and pv & c.R: n = max(n, 2)
        if c.perml and pv & (c.R | c.W): n = max(n, 2)
        if c.rdlane and pv & c.R: n = max(n, 1)
        if p.trans and (c.valu or c.mfma) and not c.trans and pv & c.R: n = max(n, 1)
        if p.trans and c.trans and pv & c.R: n = max(n, 1)
        if p.opsel and c.valu and pv & (c.R | c.W): n = max(n, 1)
        if ps:
            if (c.valu or c.mfma) and ps & c.R: n = max(n, 4 if c.base in ('v_readlane_b32','v_writelane_b32','v_div_fmas_f32') else 2)
            if c.vmem and ps & c.R: n = max(n, 5)
            if c.salu and ps & c.R: n = max(n, 1)
        if ('exec',0) in p.W:
            if c.dpp: n = max(n, 5)
            if c.rdlane or c.perml or c.mfma or c.base == 'v_writelane_b32': n = max(n, 4)
            if c.valu and ('exec',0) in c.R: n = max(n, 2)
    if p.mfma:
        big = {4: 8, 8: 12}[p.passes]
        if c.mfma:
            if p.D & (c.A | c.B): n = max(n, big)
            if p.D & c.C:
                if not (p.D == c.C and p.passes == c.passes): n = max(n, big - 2)
            elif p.D & c.D: n = max(n, big)
        elif (c.valu or c.vmem or c.ds) and p.D & (c.R | c.W): n = max(n, big)
        if c.valu and p.C & c.W: n = max(n, {4: 3, 8: 7}[p.passes])
    if p.vmem and getattr(p, 'wide_store', False) and p.sdata & c.W:
        n = max(n, 2)
    if p.salu and ('m0',0) in p.W and ('m0',0) in c.R and (c.vmem or c.ds): n = max(n, 1)
    return n

def fix_hazards(lines):
    out = []
    for t in lines:
        c = Ins(t)
        if not (c.is_label or c.is_dir):
            dist, req = 0, 0
            for p in reversed(out):
                if p.is_dir: continue
                if p.mn in ('s_endpgm', 's_branch'): break
                if dist >= 12: break
                if not p.is_label:
                    req = max(req, need(p, c) - dist)
                dist += p.states()
            if req > 0: out.append(Ins(f'  s_nop {req-1}'))
        out.append(c)
    return [i.text for i in out]

class K:
    def __init__(self, name):
        self.name = name; self.L = []; self.nv = 1; self.names = {}
    def __call__(self, s):
        for ln in s.strip('\n').split('\n'):
            if ln.strip(): self.L.append('  ' + ln.strip())
    def lab(self, l): self.L.append(f'{l}:')
    STAMP = False
    kidx = 0
    def stamp(self, i):
        if K.STAMP: self(f's_memrealtime s[{64+2*i}:{65+2*i}]')
    NST = 8
    def endpgm(self, wait=True):
        if K.STAMP and K.NST == 8:
            if wait: self('s_waitcnt vmcnt(0)')
            self.stamp(7)
            self('s_mov_b64 exec, 1\ns_lshl_b32 s62, s2, 7\ns_lshl_b32 s63, s22, 5\ns_add_u32 s62, s62, s63')
            self(f's_add_u32 s62, s62, {hex(0x1000000 + self.kidx*0x10000)}\nv_mov_b32 v1, 0\ns_waitcnt lgkmcnt(0)')
            for i in range(8): self(f'v_mov_b32 v{4+i}, s{64+2*i}')
            self('buffer_store_dwordx4 v[4:7], v1, s[4:7], s62 offen\nbuffer_store_dwordx4 v[8:11], v1, s[4:7], s62 offen offset:16')
        elif K.STAMP:
            if wait: self('s_waitcnt vmcnt(0)')
            self.stamp(16)
            self('s_mov_b64 exec, 1\ns_lshl_b32 s62, s2, 9\ns_lshl_b32 s63, s22, 7\ns_add_u32 s62, s62, s63')
            self(f's_add_u32 s62, s62, {hex(0x1000000)}\nv_mov_b32 v1, 0\ns_waitcnt lgkmcnt(0)')
            for i in range(17): self(f'v_mov_b32 v{4+i}, s{64+2*i}')
            for i in range(5): self(f'buffer_store_dwordx4 v[{4+4*i}:{7+4*i}], v1, s[4:7], s62 offen offset:{16*i}')
        self('s_endpgm')
    def v(self, n=1, al=None):
        if al is None: al = 1 if n == 1 else 2
        b = (self.nv + al - 1) // al * al
        self.nv = b + n
        self.maxv = max(getattr(self, 'maxv', 0), self.nv)
        return b
def vr(b, n): return f'v[{b}:{b+n-1}]' if n > 1 else f'v{b}'
def sr(b, n): return f's[{b}:{b+n-1}]' if n > 1 else f's{b}'
```

```python
import sys, struct
from asmlib import *
NAME = 'interleave_layers__spectral_fnet__moe_arch_mod__prompt'
def fl(x): return hex(struct.unpack('<I', struct.pack('<f', x))[0])
PITCH = 8320
Q1, U1, Q2, U2 = 0x000000, 0x110000, 0x220000, 0x330000
X2 = 0x440000
KEY1, KEY2 = 0x640000, 0x642000
ST1, ST2 = 0x648000, 0x650000
H1, H2 = 0x658000, 0x65A000
AB = 0x660000
SEL = 0x662000
WS_BYTES = 0x10000000
DPP = 'row_mask:0xf bank_mask:0xf'

def srd(k, d, base, nbytes):
    k(f's_mov_b32 s{d}, s{base}\ns_mov_b32 s{d+1}, s{base+1}\ns_mov_b32 s{d+2}, {hex(nbytes)}\ns_mov_b32 s{d+3}, 0x20000')

def red_half(k, regs):
    for m in ('quad_perm:[1,0,3,2]', 'quad_perm:[2,3,0,1]', 'row_half_mirror', 'row_mirror'):
        for r in regs: k(f'v_add_f32_dpp v{r}, v{r}, v{r} {m} {DPP}')
    for r in regs: k(f'v_add_f32_dpp v{r}, v{r}, v{r} row_bcast:15 row_mask:0xa bank_mask:0xf')

def merge(k, a, b):
    k(f'v_permlane32_swap_b32 v{a}, v{b}\nv_add_f32 v{a}, v{a}, v{b}')

def unpack_direct(k, dst, src):
    for i in range(4):
        k(f'v_lshlrev_b32 v{dst+2*i}, 16, v{src+i}\nv_and_b32 v{dst+2*i+1}, 0xffff0000, v{src+i}')
def unpack_mirror(k, dst, src, src0):
    k(f'v_lshlrev_b32 v{dst}, 16, v{src0}')
    for i in range(1, 8):
        e = 8 - i
        if e & 1: k(f'v_and_b32 v{dst+i}, 0xffff0000, v{src+e//2}')
        else: k(f'v_lshlrev_b32 v{dst+i}, 16, v{src+e//2}')

def row_kernel(name, mode):
    k = K(name); k.kidx = mode
    k.stamp(0)
    k(f's_load_dwordx2 s[30:31], s[0:1], 96')
    if mode != 5: k('s_load_dwordx2 s[32:33], s[0:1], 0')
    else: k('s_load_dwordx2 s[32:33], s[0:1], 80')
    if mode != 1: k('s_load_dwordx2 s[34:35], s[0:1], 48')
    k(f'''s_cmp_gt_u32 s2, 256
s_cbranch_scc1 {name}_end
v_lshrrev_b32 v1, 6, v0
s_and_b32 s20, s2, 7
s_lshr_b32 s21, s2, 6
v_readfirstlane_b32 s22, v1
s_lshl_b32 s21, s21, 3
s_add_u32 s20, s20, s21
s_bfe_u32 s21, s2, 0x30003
s_cmp_eq_u32 s20, 0
s_cselect_b32 s26, s21, 0
s_cmp_ge_u32 s26, 4
s_cselect_b32 s20, 32, s20
s_cselect_b32 s26, 4, 0
s_sub_u32 s21, s21, s26
s_cmp_eq_u32 s2, 256
s_cselect_b32 s20, 0, s20
s_cselect_b32 s21, 4, s21
s_lshl_b32 s23, s21, 2
s_add_u32 s23, s23, s22
s_lshl_b32 s23, s23, 6
s_add_u32 s23, s23, s20
s_sub_u32 s24, 2048, s23
s_and_b32 s24, s24, 2047
s_add_u32 s25, s20, 63
s_and_b32 s25, s25, 63
s_lshl_b32 s25, s25, 7
s_lshl_b32 s26, s21, 4
s_add_u32 s25, s25, s26
s_sub_u32 s27, 63, s20
s_lshl_b32 s27, s27, 7
s_sub_u32 s27, s27, s26
s_add_u32 s27, s27, 112
s_cmp_eq_u32 s20, 0
s_cselect_b32 s26, 4, 0
s_add_u32 s27, s27, s26
s_cmp_ge_u32 s22, 2
s_cselect_b32 s25, s27, s25
s_lshl_b32 s28, s23, 10
s_lshl_b32 s29, s24, 10''')
    k.nv = 1
    vl = k.v(); vn = k.v(); vg = k.v(); vch = k.v(); vod = k.v(); vom = k.v(); vom0 = k.v(); vp = k.v(); vt = k.v(); vt2 = k.v()
    k(f'''v_and_b32 v{vl}, 63, v0
v_and_b32 v{vn}, 15, v0
v_bfe_u32 v{vg}, v0, 4, 2
v_lshl_add_u32 v{vch}, v{vn}, 2, v{vg}
v_lshlrev_b32 v{vod}, 4, v{vch}
v_sub_u32 v{vom}, 1008, v{vod}
v_sub_u32 v{vom0}, 1024, v{vod}
v_and_b32 v{vom0}, 1023, v{vom0}
v_and_b32 v{vp}, 127, v0
v_mul_u32_u24 v{vp}, {PITCH}, v{vp}
s_waitcnt lgkmcnt(0)''')
    k.stamp(1)
    srd(k, 4, 30, WS_BYTES)
    xd = k.v(4, 4); xm = k.v(4, 4); xm0 = k.v()
    if mode != 1:
        ug = k.v(4, 4)
        k(f's_add_u32 s36, s25, {hex(U1 if mode == 3 else U2)}')
        k(f'buffer_load_dwordx4 {vr(ug,4)}, v{vp}, s[4:7], s36 offen')
    if mode == 5:
        k(f's_add_u32 s40, s30, {hex(SEL)}\ns_addc_u32 s41, s31, 0\ns_load_dwordx2 s[42:43], s[40:41], 0')
        ab = k.v(32, 4)
        k(f'v_lshlrev_b32 v{vt}, 5, v{vl}\ns_mov_b32 s36, {hex(AB)}\ns_mov_b32 s37, {hex(AB+4096)}')
        for a in range(4):
            for h in range(2):
                k(f'buffer_load_dwordx4 {vr(ab+8*a+4*h,4)}, v{vt}, s[4:7], s{36+a//2} offen offset:{(a&1)*2048+16*h}')
        srd(k, 16, 32, 2048*1024)
        k(f's_add_u32 s36, s28, {hex(X2)}\ns_add_u32 s37, s29, {hex(X2)}')
        rs, o1, o2 = 4, 36, 37
    else:
        srd(k, 8, 32, 2048*1024)
        rs, o1, o2 = 8, 28, 29
    k(f'''buffer_load_dwordx4 {vr(xd,4)}, v{vod}, s[{rs}:{rs+3}], s{o1} offen
buffer_load_dwordx4 {vr(xm,4)}, v{vom}, s[{rs}:{rs+3}], s{o2} offen
buffer_load_ushort v{xm0}, v{vom0}, s[{rs}:{rs+3}], s{o2} offen''')
    if mode != 1:
        wd = k.v(4, 4); wm = k.v(4, 4); wm0 = k.v()
        srd(k, 12, 34, 1024)
        k(f'''buffer_load_dwordx4 {vr(wd,4)}, v{vod}, s[12:15], 0 offen
buffer_load_dwordx4 {vr(wm,4)}, v{vom}, s[12:15], 0 offen
buffer_load_ushort v{wm0}, v{vom0}, s[12:15], 0 offen''')
    if mode == 1:
        cl = k.v(4, 4)
        k(f's_cmp_ge_u32 s2, 4\ns_cbranch_scc1 {name}_noclr')
        k(f'''v_mov_b32 v{cl}, -1\nv_mov_b32 v{cl+1}, -1\nv_mov_b32 v{cl+2}, -1\nv_mov_b32 v{cl+3}, -1
v_lshlrev_b32 v{vt}, 4, v0
s_lshl_b32 s36, s2, 12
s_add_u32 s36, s36, {hex(H1)}
buffer_store_dwordx4 {vr(cl,4)}, v{vt}, s[4:7], s36 offen''')
        k.lab(f'{name}_noclr')
    def lane_of(dst, chreg):
        k(f'v_and_b32 v{vt2}, 3, v{chreg}\nv_and_b32 v{dst}, 60, v{chreg}\nv_lshl_add_u32 v{dst}, v{vt2}, 6, v{dst}')
    if mode != 5:
        bpf = k.v(); vqw = k.v(); vqr = k.v()
        k(f'''v_cmp_lt_u32 s[44:45], 31, v{vch}
v_add_u32 v{vt}, 1, v{vch}
v_cndmask_b32 v{vt}, v{vch}, v{vt}, s[44:45]
v_and_b32 v{vt}, 63, v{vt}
v_cmp_eq_u32 vcc, 0, v{vt}
v_cndmask_b32 v{vt}, v{vt}, 32, vcc''')
        lane_of(bpf, vt)
        k(f'''v_sub_u32 v{vt}, 95, v{vch}
v_cndmask_b32 v{vt}, v{vch}, v{vt}, s[44:45]
s_lshl_b32 s36, s22, 2
s_sub_u32 s37, 12, s36
v_mov_b32 v{vt2}, s36
v_mov_b32 v{vqw}, s37
v_cndmask_b32 v{vqw}, v{vt2}, v{vqw}, s[44:45]
v_lshl_add_u32 v{vqw}, v{vt}, 6, v{vqw}''')
    if mode != 1:
        bpm = k.v()
        k(f'v_add_u32 v{vt}, 1, v{vch}\nv_and_b32 v{vt}, 63, v{vt}')
        lane_of(bpm, vt)
    vt16 = k.v()
    k(f'v_lshlrev_b32 v{vt16}, 4, v0')
    a = k.v(8); b = k.v(8)
    if mode != 1:
        B1 = k.v(16, 4)
        TW = k.v(16)
        B2 = k.v(4, 4)
        fe = k.v(); fg = k.v(); c = k.v(); s = k.v(); ang = k.v(); f1 = k.v()
        vra = k.v(); vrb = k.v(); vsg = k.v()
        k(f'''v_lshrrev_b32 v{vt}, 2, v{vn}
v_and_b32 v{vt2}, 3, v{vn}
v_lshl_add_u32 v{vt}, v{vt}, 3, v{vt2}
v_cvt_f32_u32 v{fe}, v{vt}
v_lshlrev_b32 v{vt}, 2, v{vg}
v_cvt_f32_u32 v{fg}, v{vt}
s_mov_b32 s36, {fl(1/32)}
s_mov_b32 s37, {fl(0.25)}''')
        for h in range(2):
            if h: k(f'v_add_f32 v{fe}, 4.0, v{fe}')
            k(f'v_mul_f32 v{f1}, s36, v{fe}\nv_mul_f32 v{ang}, v{fg}, v{f1}')
            for r in range(4):
                if r: k(f'v_add_f32 v{ang}, v{ang}, v{f1}')
                k(f'''v_cos_f32 v{c}, v{ang}
v_sin_f32 v{s}, v{ang}
v_mul_f32 v{vt}, {fl(1/16)}, v{ang}''')
                if r & 1: k(f'v_add_f32 v{vt}, s37, v{vt}')
                k(f'''v_cvt_pk_f16_f32 v{B1+8*h+r}, v{c}, v{s}
v_cvt_pk_f16_f32 v{B1+8*h+4+r}, -v{s}, v{c}
v_cos_f32 v{c}, v{vt}
v_sin_f32 v{s}, v{vt}
v_mul_f32 v{TW+8*h+2*r}, s37, v{c}
v_mul_f32 v{TW+8*h+2*r+1}, s37, v{s}''')
        k(f'v_cvt_f32_u32 v{f1}, v{vn}\nv_mul_f32 v{f1}, {fl(1/16)}, v{f1}\nv_mul_f32 v{ang}, v{fg}, v{f1}')
        for r in range(4):
            if r: k(f'v_add_f32 v{ang}, v{ang}, v{f1}')
            k(f'v_cos_f32 v{c}, v{ang}\nv_sin_f32 v{s}, v{ang}\nv_cvt_pk_f16_f32 v{B2+r}, v{c}, v{s}')
        k(f'''v_lshrrev_b32 v{vt}, 1, v{vn}
v_lshl_add_u32 v{vt}, v{vg}, 5, v{vt}
s_lshl_b32 s36, s22, 2
s_sub_u32 s37, {2048+12}, s36
v_lshl_add_u32 v{vra}, v{vt}, 4, s36
v_lshl_add_u32 v{vrb}, v{vt}, 4, s37
v_and_b32 v{vt}, 1, v0
v_cmp_eq_u32 s[46:47], 1, v{vt}
v_mov_b32 v{vt}, 0xbc003c00
v_mov_b32 v{vt2}, 0x3c00bc00
v_cndmask_b32 v{vsg}, v{vt}, v{vt2}, s[46:47]''')
        nload_after_u = 6 + (8 if mode == 5 else 0)
        k.stamp(2)
        k(f's_waitcnt vmcnt({nload_after_u})')
        k.stamp(3)
        k(f'ds_write_b128 v{vt16}, {vr(ug,4)}')
        if mode == 5:
            k('s_waitcnt vmcnt(6)')
            sa = k.v(); qa = k.v(); sb = k.v(); qb = k.v()
            for (S_, Q_, base) in ((sa, qa, ab), (sb, qb, ab+16)):
                k(f'v_add_f32 v{S_}, v{base}, v{base+1}\nv_mul_f32 v{Q_}, v{base}, v{base}')
                for i in range(1, 8):
                    if i > 1: k(f'v_add_f32 v{S_}, v{S_}, v{base+i}')
                    k(f'v_fmac_f32 v{Q_}, v{base+i}, v{base+i}')
            merge(k, sa, sb); merge(k, qa, qb)
            red_half(k, [sa, qa])
            k(f'''v_mul_f32 v{sa}, {fl(1/512)}, v{sa}
v_mul_f32 v{qa}, {fl(1/512)}, v{qa}
v_fma_f32 v{qa}, -v{sa}, v{sa}, v{qa}
v_max_f32 v{qa}, 0, v{qa}
v_add_f32 v{qa}, {fl(1e-5)}, v{qa}
v_rsq_f32 v{qa}, v{qa}
v_mul_f32 v{sa}, v{sa}, v{qa}
v_readlane_b32 s48, v{qa}, 16
v_readlane_b32 s49, v{qa}, 48
v_readlane_b32 s50, v{sa}, 16
v_readlane_b32 s51, v{sa}, 48
s_waitcnt lgkmcnt(0)
s_mul_i32 s42, s42, s23
s_mul_i32 s43, s43, s23
s_and_b32 s42, s42, 2047
s_and_b32 s43, s43, 2047
v_cvt_f32_u32 v{sa}, s42
v_cvt_f32_u32 v{qa}, s43
v_mul_f32 v{sa}, {fl(1/2048)}, v{sa}
v_mul_f32 v{qa}, {fl(1/2048)}, v{qa}
v_cmp_eq_u32 vcc, 0, v{vl}
v_sin_f32 v{sb}, v{sa}
v_sin_f32 v{qb}, v{qa}
v_cos_f32 v{sa}, v{sa}
v_cos_f32 v{qa}, v{qa}''')
            for rg in (sa, sb, qa, qb): k(f'v_mul_f32 v{rg}, {fl(0.25)}, v{rg}')
            for j in range(2):
                A_ = ab + 16*j; B_ = A_ + 8
                for i in range(8):
                    k(f'v_fma_f32 v{A_+i}, v{A_+i}, s{48+j}, -v{B_+i}\nv_subrev_f32 v{A_+i}, s{50+j}, v{A_+i}')
                k(f'v_cndmask_b32 v{A_+4}, v{A_+4}, v{A_}, vcc')
                for i in range(4):
                    k(f'v_add_f32 v{B_+i}, v{A_+i}, v{A_+4+i}\nv_sub_f32 v{B_+4+i}, v{A_+i}, v{A_+4+i}')
            cor = ab
            for i in range(4):
                k(f'''v_mul_f32 v{ab+8+i}, v{ab+8+i}, v{sa}
v_mul_f32 v{ab+12+i}, v{ab+12+i}, v{sb}
v_fmac_f32 v{ab+8+i}, v{ab+24+i}, v{qa}
v_fmac_f32 v{ab+12+i}, v{ab+28+i}, v{qb}
v_cndmask_b32 v{ab+4}, v{ab+8+i}, v{ab+12+i}, s[46:47]
v_cndmask_b32 v{ab+5}, -v{ab+12+i}, v{ab+8+i}, s[46:47]
v_cvt_pk_f16_f32 v{cor+i}, v{ab+4}, v{ab+5}''')
        u1 = k.v(4, 4); u2 = k.v(4, 4)
        k(f'''s_waitcnt lgkmcnt(0)
s_barrier
ds_read2_b32 {vr(u1,2)}, v{vra} offset0:0 offset1:32
ds_read2_b32 {vr(u2,2)}, v{vrb} offset0:0 offset1:32
ds_read2_b32 {vr(u1+2,2)}, v{vra} offset0:64 offset1:96
ds_read2_b32 {vr(u2+2,2)}, v{vrb} offset0:64 offset1:96''')
        wa = k.v(8); wb = k.v(8); sw = k.v()
        k('s_waitcnt vmcnt(0)')
        k.stamp(4)
        unpack_direct(k, wa, wd); unpack_mirror(k, wb, wm, wm0)
        k('s_waitcnt lgkmcnt(0)')
        for r in range(4):
            k(f'v_pk_fma_f16 v{u1+r}, v{u2+r}, v{vsg}, v{u1+r}')
            if mode == 5: k(f'v_pk_add_f16 v{u1+r}, v{u1+r}, v{cor+r}')
        D1 = k.v(16, 4)
        for h in range(2):
            for z in range(2):
                k(f'v_mfma_f32_16x16x32_f16 {vr(D1+8*h+4*z,4)}, {vr(u1,4)}, {vr(B1+8*h+4*z,4)}, 0')
        k(f'v_cvt_f32_f16 v{vt2}, v{u1}')
        unpack_direct(k, a, xd); unpack_mirror(k, b, xm, xm0)
        k(f'v_readlane_b32 s52, v{vt2}, 0')
        A2 = k.v(8, 4); D2 = k.v(8, 4)
        for h in range(2):
            for r in range(4):
                re, im, c_, s_ = D1+8*h+r, D1+8*h+4+r, TW+8*h+2*r, TW+8*h+2*r+1
                k(f'''v_mul_f32 v{vt}, v{re}, v{c_}
v_mul_f32 v{c_}, v{im}, v{c_}
v_fmac_f32 v{vt}, v{im}, v{s_}
v_fma_f32 v{c_}, -v{re}, v{s_}, v{c_}
v_cvt_pk_f16_f32 v{A2+4*h+r}, v{vt}, v{c_}''')
            k(f'v_mfma_f32_16x16x32_f16 {vr(D2+4*h,4)}, {vr(A2+4*h,4)}, {vr(B2,4)}, 0')
        k(f'v_add_f32 v{sw}, v{wa}, v{wa+1}')
        for i in range(2, 8): k(f'v_add_f32 v{sw}, v{sw}, v{wa+i}')
        k(f'''v_mov_b32 v{vt2}, s52
s_mov_b32 s54, {fl(16.0)}
v_readlane_b32 s53, v{D2}, 0
v_mul_f32 v{vt2}, -4.0, v{vt2}
v_mov_b32 v{vt}, s53
v_mul_f32 v{vt}, {fl(-16.0)}, v{vt}
v_add_f32 v{vt2}, v{vt2}, v{vt}''')
        for i in range(8):
            k(f'''v_fma_f32 v{D2+i}, v{D2+i}, s54, v{vt2 if i & 1 else vt}
v_add_f32 v{a+i}, v{a+i}, v{D2+i}
v_add_f32 v{b+i}, v{b+i}, v{D2+i}''')
    else:
        k.stamp(2)
        k('s_waitcnt vmcnt(0)')
        k.stamp(4)
        unpack_direct(k, a, xd); unpack_mirror(k, b, xm, xm0)
    k.stamp(5)
    sa = k.v(); qa = k.v(); sb = k.v(); qb = k.v()
    if mode != 1: ra = k.v(); rb = k.v(); sw2 = k.v()
    for (S_, Q_, base, R_, W_) in ((sa, qa, a, 0, 0), (sb, qb, b, 1, 1)):
        k(f'v_add_f32 v{S_}, v{base}, v{base+1}\nv_mul_f32 v{Q_}, v{base}, v{base}')
        if mode != 1:
            R_ = (ra, rb)[R_]; W_ = (wa, wb)[W_]
            k(f'v_mul_f32 v{R_}, v{base}, v{W_}')
        for i in range(1, 8):
            if i > 1: k(f'v_add_f32 v{S_}, v{S_}, v{base+i}')
            k(f'v_fmac_f32 v{Q_}, v{base+i}, v{base+i}')
            if mode != 1: k(f'v_fmac_f32 v{R_}, v{base+i}, v{W_+i}')
    if mode != 1: k(f'v_mov_b32 v{sw2}, v{sw}')
    merge(k, sa, sb); merge(k, qa, qb)
    if mode != 1:
        merge(k, ra, rb); merge(k, sw, sw2)
        red_half(k, [sa, qa, ra, sw])
    else:
        red_half(k, [sa, qa])
    k(f'''v_mul_f32 v{sa}, {fl(1/512)}, v{sa}
v_mul_f32 v{qa}, {fl(1/512)}, v{qa}
v_fma_f32 v{qa}, -v{sa}, v{sa}, v{qa}
v_max_f32 v{qa}, 0, v{qa}
v_add_f32 v{qb}, {fl(1e-5)}, v{qa}
v_rsq_f32 v{qb}, v{qb}''')
    if mode == 1:
        zc = qb
    else:
        st = k.v(4, 4); one = k.v(); nb = k.v(); zc = k.v()
        k(f'''v_add_f32 v{one}, 1.0, v{qb}
v_fma_f32 v{ra}, -v{sa}, v{sw}, v{ra}
v_mul_f32 v{nb}, v{sa}, v{qb}
v_mul_f32 v{qa}, v{qa}, v{one}
v_rcp_f32 v{st+1}, v{one}
v_mul_f32 v{qa}, v{qa}, v{one}
v_mul_f32 v{st+2}, v{ra}, v{qb}
v_add_f32 v{qa}, {fl(1e-5)}, v{qa}
v_mov_b32 v{st}, v{sa}
v_rsq_f32 v{st+3}, v{qa}
v_mul_f32 v{st+1}, v{st+1}, v{qb}
v_readlane_b32 s48, v{one}, 16
v_readlane_b32 s49, v{one}, 48
v_readlane_b32 s50, v{nb}, 16
v_readlane_b32 s51, v{nb}, 48
v_mul_f32 v{zc}, v{st+3}, v{one}''')
    if mode != 5:
        k(f'''v_mul_f32 v{sb}, v{sa}, v{zc}
v_readlane_b32 s52, v{zc}, 16
v_readlane_b32 s53, v{zc}, 48
v_readlane_b32 s54, v{sb}, 16
v_readlane_b32 s55, v{sb}, 48''')
        fv = k.v(8)
        k(f'v_mov_b32 v{vt}, s54\nv_add_f32 v{vt}, s55, v{vt}')
        for i in range(8):
            k(f'v_fma_f32 v{fv+i}, v{a+i}, s52, -v{vt}\nv_fmac_f32 v{fv+i}, s53, v{b+i}')
            if i == 0: k(f'ds_bpermute_b32 v{fv}, v{bpf}, v{fv}')
        pk = k.v(4, 4); t0 = k.v(); t1 = k.v()
        def sel(dst, i):
            if i == 4: return fv + 4
            k(f'v_cndmask_b32 v{dst}, v{fv+i}, v{fv+8-i}, s[44:45]'); return dst
        for i in (1, 2, 3):
            lo = sel(t0, 2*i); hi = sel(t1, 2*i+1)
            k(f'v_cvt_pk_f16_f32 v{pk+i}, v{lo}, v{hi}')
        hi = sel(t1, 1)
        k(f'''s_waitcnt lgkmcnt(0)
v_cvt_pk_f16_f32 v{pk}, v{fv}, v{hi}''')
        qoffs = 4096 if mode == 3 else 0
        if qoffs: k(f'v_add_u32 v{vqw}, {qoffs}, v{vqw}')
        k(f'''ds_write2_b32 v{vqw}, v{pk+2}, v{pk+3} offset0:8 offset1:12
ds_write2_b32 v{vqw}, v{pk}, v{pk+1} offset0:0 offset1:4''')
    if mode != 1:
        k(f'v_mov_b32 v{vt}, s50\nv_mov_b32 v{vt2}, s51')
        for i in range(8):
            k(f'v_fma_f32 v{b+i}, v{b+i}, s49, -v{vt2}')
            if i == 0: k(f'ds_bpermute_b32 v{b}, v{bpm}, v{b}')
        for i in range(8): k(f'v_fma_f32 v{a+i}, v{a+i}, s48, -v{vt}')
        for i in range(4): k(f'v_cvt_pk_bf16_f32 v{xd+i}, v{a+2*i}, v{a+2*i+1}')
        for i in range(1, 4): k(f'v_cvt_pk_bf16_f32 v{xm+i}, v{b+8-2*i}, v{b+7-2*i}')
        if mode == 3:
            k(f's_add_u32 s36, s28, {hex(X2)}\ns_add_u32 s37, s29, {hex(X2)}')
            ds_, o1, o2 = 4, 36, 37
        else:
            ds_, o1, o2 = 16, 28, 29
        k(f'''buffer_store_dwordx4 {vr(xd,4)}, v{vod}, s[{ds_}:{ds_+3}], s{o1} offen
s_waitcnt lgkmcnt(0)
v_cvt_pk_bf16_f32 v{xm}, v{b}, v{b+7}
buffer_store_dwordx4 {vr(xm,4)}, v{vom}, s[{ds_}:{ds_+3}], s{o2} offen''')
    if mode != 5:
        k(f'''s_waitcnt lgkmcnt(0)
s_barrier
ds_read_b128 {vr(pk,4)}, v{vt16} offset:{qoffs}
s_add_u32 s38, s25, {hex(Q1 if mode == 1 else Q2)}''')
    if mode != 1:
        k(f'''v_mov_b32 v{vt}, s23
v_mov_b32 v{vt2}, s24
v_cmp_lt_u32 vcc, 31, v{vl}
v_ashrrev_i32 v{one}, 31, v{st+2}
v_or_b32 v{one}, 0x80000000, v{one}
v_cndmask_b32 v{vt}, v{vt}, v{vt2}, vcc
v_xor_b32 v{one}, v{one}, v{st+2}
v_sub_u32 v{vt2}, 2047, v{vt}
v_and_b32 v{one}, 0xfffff800, v{one}
v_or_b32 v{one}, v{one}, v{vt2}
v_lshlrev_b32 v{vt2}, 2, v{vt}
v_lshlrev_b32 v{vt}, 4, v{vt}
s_mov_b32 s36, {hex(KEY1 if mode == 3 else KEY2)}
s_mov_b32 s37, {hex(ST1 if mode == 3 else ST2)}
s_mov_b32 exec_lo, 0x10000
s_mov_b32 exec_hi, 0x10000
buffer_store_dword v{one}, v{vt2}, s[4:7], s36 offen
buffer_store_dwordx4 {vr(st,4)}, v{vt}, s[4:7], s37 offen
s_mov_b64 exec, -1''')
    if mode != 5:
        k(f's_waitcnt lgkmcnt(0)\nbuffer_store_dwordx4 {vr(pk,4)}, v{vp}, s[4:7], s38 offen')
    k.stamp(6)
    k.endpgm()
    k.lab(f'{name}_end')
    k('s_endpgm')
    return k
```

```python
import sys, struct
from asmlib import *
from gen import fl, srd, red_half, merge, unpack_direct, unpack_mirror, DPP, NAME, PITCH
Q1, Q2, U1, U2 = 0x000000, 0x210000, 0x320000, 0x430000
X2, XP = 0x540000, 1152
KEY1, KEY2 = 0x780000, 0x790000
H1, H2, UPD = 0x7B0000, 0x7B4000, 0x7B8000
HU, EPOCH = 0x7C0000, 0x7C1000
WS_BYTES = 0x10000000
SC = 'sc0 sc1'
NMAIN, NFFN = 257, 160
OPT = dict(sleep=0, fsleep=0, gsleep=4, nf=2, pref=1)
L_U, L_Q, L_KEY, L_UD, L_X, L_KT = 0, 4096, 8192, 8448, 12544, 21760
XOR4 = ('quad_perm:[1,0,3,2]', 'quad_perm:[2,3,0,1]', 'row_half_mirror', 'row_mirror')

def gather(k, lab, loads, check, sleep=0, restore='-1'):
    k('s_mov_b32 s37, 0x10000')
    if sleep:
        k(f's_branch {lab}')
        k.lab(f'{lab}s'); k(f's_sleep {sleep}')
    k.lab(lab)
    k(loads); k(f's_sub_u32 s37, s37, 1\ns_waitcnt vmcnt(0)'); k(check)
    k(f's_cbranch_scc1 {lab}x\ns_mov_b64 exec, vcc\ns_cbranch_vccnz {lab}{"s" if sleep else ""}')
    k.lab(f'{lab}x')
    k(f's_mov_b64 exec, {restore}')
def ck_tag(t, regs):
    if len(regs) == 1: return f'v_cmp_ne_u32 vcc, s40, v{regs[0]}'
    o = [f'v_bitop3_b32 v{t}, v{regs[0]}, v{regs[1]}, s40 bitop3:0x7e']
    o += [f'v_bitop3_b32 v{t}, v{t}, v{r}, s40 bitop3:0xf6' for r in regs[2:]]
    return '\n'.join(o + [f'v_cmp_ne_u32 vcc, 0, v{t}'])
def ck_sent(t, regs, val='-1'):
    regs = list(regs); o = []
    if len(regs) % 2 == 0: o.append(f'v_max_u32 v{t}, v{regs[0]}, v{regs[1]}'); regs = regs[2:]
    else: o.append(f'v_max3_u32 v{t}, v{regs[0]}, v{regs[1]}, v{regs[2]}'); regs = regs[3:]
    for i in range(0, len(regs), 2): o.append(f'v_max3_u32 v{t}, v{t}, v{regs[i]}, v{regs[i+1]}')
    return '\n'.join(o + [f'v_cmp_eq_u32 vcc, {val}, v{t}'])
def poll_keys(k, name, layer, vky, fg, fx, t, sleep):
    KEY = KEY1 if layer == 1 else KEY2
    k(f's_mov_b32 s36, {hex(KEY)}\ns_mov_b32 s38, {hex(KEY + 256*128)}')
    ld = f"""buffer_load_dwordx3 {vr(fg,3)}, v{vky}, s[4:7], s36 offen {SC}
buffer_load_dwordx2 {vr(fx,2)}, off, s[4:7], s38 {SC}"""
    gather(k, f'{name}_pk{layer}', ld, ck_tag(t, [fg, fx]), sleep)
def sel_decode(k, layer, rows):
    k(f"""s_and_b32 s42, s56, 0x73f
s_and_b32 s43, s57, 0x73f
s_cmp_eq_u32 s42, s43
s_cselect_b32 s36, 64, 0
s_add_u32 s43, s43, s36
s_mul_i32 s42, s42, {XP}
s_mul_i32 s43, s43, {XP}
s_add_u32 s42, s42, {hex(X2 + (layer-1)*128*XP)}
s_add_u32 s43, s43, {hex(X2 + (layer-1)*128*XP)}""")
    if rows:
        for r in (56, 57):
            k(f's_and_b32 s36, s{r}, 2047\ns_sub_u32 s37, 2048, s36\ns_bitcmp1_b32 s{r}, 11\ns_cselect_b32 s{r}, s37, s36')

def top2_merge(k, m1, m2, n1, n2):
    k(f'v_max_u32 v{m2}, v{m2}, v{n2}\nv_med3_u32 v{m2}, v{m1}, v{m2}, v{n1}\nv_max_u32 v{m1}, v{m1}, v{n1}')
def top2_row(k, m1, m2, n1, n2):
    for m in XOR4:
        k(f'v_mov_b32_dpp v{n1}, v{m1} {m} {DPP}\nv_mov_b32_dpp v{n2}, v{m2} {m} {DPP}')
        top2_merge(k, m1, m2, n1, n2)
def top2_wave(k, m1, m2, n1, n2):
    top2_row(k, m1, m2, n1, n2)
    for sw in ('v_permlane16_swap_b32', 'v_permlane32_swap_b32'):
        k(f'v_mov_b32 v{n1}, v{m1}\nv_mov_b32 v{n2}, v{m2}\n{sw} v{m1}, v{n1}\n{sw} v{m2}, v{n2}')
        top2_merge(k, m1, m2, n1, n2)

def twiddle(k, re, im, c_, s_, t0, t1, dst):
    k(f'''v_mul_f32 v{t0}, v{re}, v{c_}
v_mul_f32 v{t1}, v{im}, v{c_}
v_fmac_f32 v{t0}, v{im}, v{s_}
v_fma_f32 v{t1}, -v{re}, v{s_}, v{t1}
v_cvt_pk_f16_f32 v{dst}, v{t0}, v{t1}''')

def main_role(k, name):
    k.nv = 1
    V = k.v
    vl = V(); vn = V(); vg = V(); vch = V(); vod = V(); vom = V(); vom0 = V(); vp = V(); vt = V(); vt2 = V()
    vfa = V(); bpf = V(); vqw = V(); bpm = V(); vra = V(); vrb = V(); vsg = V(); sw = V()
    va = V(); vst = V(); xa = V(6); vq1 = V(); vq2 = V(); vqr = V(); vqr2 = V()
    fg = V(4, 4); fx = V(2, 2)
    a = V(8); b = V(8); wa = V(8); wb = V(8)
    RB1 = V(16, 4); RTW = V(16); RB2 = V(4, 4)
    CB1 = V(32, 4); CTW = V(16); CA2 = V(16, 4)
    T0 = V(0, 4)
    k(f'''s_and_b32 s20, s2, 7
s_lshr_b32 s21, s2, 6
s_lshl_b32 s21, s21, 3
s_add_u32 s20, s20, s21
s_bfe_u32 s21, s2, 0x30003
s_cmp_eq_u32 s20, 0
s_cselect_b32 s26, s21, 0
s_cmp_ge_u32 s26, 4
s_cselect_b32 s20, 32, s20
s_cselect_b32 s26, 4, 0
s_sub_u32 s21, s21, s26
s_cmp_eq_u32 s2, 256
s_cselect_b32 s20, 0, s20
s_cselect_b32 s21, 4, s21
s_cselect_b32 s60, s22, 0
s_lshl_b32 s23, s21, 2
s_add_u32 s23, s23, s22
s_lshl_b32 s23, s23, 6
s_add_u32 s23, s23, s20
s_sub_u32 s24, 2048, s23
s_and_b32 s24, s24, 2047
s_lshl_b32 s28, s23, 10
s_lshl_b32 s29, s24, 10
v_and_b32 v{vn}, 15, v0
v_bfe_u32 v{vg}, v0, 4, 2
v_lshl_add_u32 v{vch}, v{vn}, 2, v{vg}
v_lshlrev_b32 v{vod}, 4, v{vch}
v_sub_u32 v{vom}, 1008, v{vod}
v_sub_u32 v{vom0}, 1024, v{vod}
v_and_b32 v{vom0}, 1023, v{vom0}
s_waitcnt lgkmcnt(0)''')
    k.stamp(1)
    srd(k, 8, 32, 2048*1024)
    xd = V(4, 4); xm = V(4, 4); wd = V(4, 4); wm = V(4, 4); cl = V(4, 4); xm0 = V(); wm0 = V()
    k(f'''buffer_load_dwordx4 {vr(xd,4)}, v{vod}, s[8:11], s28 offen
buffer_load_dwordx4 {vr(xm,4)}, v{vom}, s[8:11], s29 offen
buffer_load_ushort v{xm0}, v{vom0}, s[8:11], s29 offen
s_add_u32 s38, s30, {hex(EPOCH)}
s_addc_u32 s39, s31, 0
s_load_dword s40, s[38:39], 0''')
    srd(k, 4, 30, WS_BYTES); srd(k, 12, 44, 1024); srd(k, 16, 58, 2048*1024)
    k(f'''buffer_load_dwordx4 {vr(wd,4)}, v{vod}, s[12:15], 0 offen
buffer_load_dwordx4 {vr(wm,4)}, v{vom}, s[12:15], 0 offen
buffer_load_ushort v{wm0}, v{vom0}, s[12:15], 0 offen
v_and_b32 v{vl}, 63, v0
v_lshlrev_b32 v{vfa}, 4, v0
s_add_u32 s25, s20, 63
s_and_b32 s25, s25, 63
s_lshl_b32 s25, s25, 7
s_lshl_b32 s26, s21, 4
s_add_u32 s25, s25, s26
s_sub_u32 s27, 63, s20
s_lshl_b32 s27, s27, 7
s_sub_u32 s27, s27, s26
s_add_u32 s27, s27, 112
s_cmp_eq_u32 s20, 0
s_cselect_b32 s26, 4, 0
s_add_u32 s27, s27, s26
s_cmp_ge_u32 s22, 2
s_cselect_b32 s25, s27, s25
v_and_b32 v{vp}, 127, v0
v_mul_u32_u24 v{vp}, {PITCH}, v{vp}
v_mov_b32 v{cl}, -1
v_mov_b32 v{cl+1}, -1
v_mov_b32 v{cl+2}, -1
v_mov_b32 v{cl+3}, -1
s_lshl_b32 s61, s2, 12
s_add_u32 s61, s61, {hex(Q2)}
s_mul_i32 s36, s23, {XP}
s_add_u32 s36, s36, {hex(X2)}
buffer_store_dwordx4 {vr(cl,4)}, v{vfa}, s[4:7], s61 offen {SC}
buffer_store_dwordx4 {vr(cl,4)}, v{vod}, s[4:7], s36 offen {SC}
s_mov_b64 exec, 1
buffer_store_dwordx4 {vr(cl,4)}, off, s[4:7], s36 offset:1024 {SC}
s_mov_b64 exec, -1
s_bfe_u32 s37, s2, 0x40004
s_and_b32 s36, s2, 7
s_lshl_b32 s36, s36, 4
s_add_u32 s3, s37, s36
s_mul_i32 s41, s3, {PITCH}
s_bfe_u32 s26, s2, 0x10003
s_lshl_b32 s26, s26, 5
s_lshr_b32 s37, s22, 1
s_lshl_b32 s37, s37, 4
s_add_u32 s26, s26, s37
s_and_b32 s27, s22, 1
s_lshl_b32 s38, s27, 6
s_add_u32 s36, s26, 63
v_add_u32 v{vt}, s36, v{vn}
v_and_b32 v{vt}, 63, v{vt}
v_lshlrev_b32 v{vst}, 7, v{vt}
v_lshl_add_u32 v{vst}, v{vg}, 4, v{vst}
v_add_u32 v{vst}, s38, v{vst}
s_add_u32 s36, s41, {hex(U1)}
s_add_u32 s37, s41, {hex(U2)}
v_cmp_eq_u32 vcc, {63*128}, v{vst}
buffer_store_dwordx4 {vr(cl,4)}, v{vst}, s[4:7], s36 offen {SC}
buffer_store_dwordx4 {vr(cl,4)}, v{vst}, s[4:7], s37 offen {SC}
s_cbranch_vccz {name}_clr2
s_mov_b64 exec, vcc
buffer_store_dword v{cl}, v{vst}, s[4:7], s36 offen offset:128 {SC}
buffer_store_dword v{cl}, v{vst}, s[4:7], s37 offen offset:128 {SC}
s_mov_b64 exec, -1
{name}_clr2:
s_sub_u32 s36, s2, 8
s_cmp_ge_u32 s36, 9
s_cbranch_scc1 {name}_clr3
s_lshl_b32 s36, s36, 12
s_add_u32 s36, s36, {hex(H1)}
buffer_store_dwordx4 {vr(cl,4)}, v{vfa}, s[4:7], s36 offen {SC}
{name}_clr3:''')
    def lane_of(dst, chreg):
        k(f'v_and_b32 v{vt2}, 3, v{chreg}\nv_and_b32 v{dst}, 60, v{chreg}\nv_lshl_add_u32 v{dst}, v{vt2}, 6, v{dst}')
    k(f'''v_cmp_lt_u32 s[44:45], 31, v{vch}
v_add_u32 v{vt}, 1, v{vch}
v_cndmask_b32 v{vt}, v{vch}, v{vt}, s[44:45]
v_and_b32 v{vt}, 63, v{vt}
v_cmp_eq_u32 vcc, 0, v{vt}
v_cndmask_b32 v{vt}, v{vt}, 32, vcc''')
    lane_of(bpf, vt)
    k(f'''v_sub_u32 v{vt}, 95, v{vch}
v_cndmask_b32 v{vt}, v{vch}, v{vt}, s[44:45]
s_lshl_b32 s36, s22, 2
s_sub_u32 s37, {L_Q+12}, s36
s_add_u32 s36, s36, {L_Q}
v_mov_b32 v{vt2}, s36
v_mov_b32 v{vqw}, s37
v_cndmask_b32 v{vqw}, v{vt2}, v{vqw}, s[44:45]
v_lshl_add_u32 v{vqw}, v{vt}, 6, v{vqw}
v_add_u32 v{vt}, 1, v{vch}
v_and_b32 v{vt}, 63, v{vt}''')
    lane_of(bpm, vt)
    k(f'''v_and_b32 v{vt}, 2, v0
v_lshlrev_b32 v{vt}, 10, v{vt}
v_and_b32 v{vt2}, 1, v0
v_lshl_add_u32 v{vt}, v{vt2}, 3, v{vt}
v_and_b32 v{vt2}, 252, v0
v_lshl_add_u32 v{vqr}, v{vt2}, 2, v{vt}''')

    def stats_and_out(mode):
        k.nv = T0 + 24
        sa = V(); qa = V(); sb = V(); qb = V(); ra = V(); rb = V()
        for (S_, Q_, base, R_, W_) in ((sa, qa, a, ra, wa), (sb, qb, b, rb, wb)):
            k(f'v_add_f32 v{S_}, v{base}, v{base+1}\nv_mul_f32 v{Q_}, v{base}, v{base}')
            if mode != 1: k(f'v_mul_f32 v{R_}, v{base}, v{W_}')
            for i in range(1, 8):
                if i > 1: k(f'v_add_f32 v{S_}, v{S_}, v{base+i}')
                k(f'v_fmac_f32 v{Q_}, v{base+i}, v{base+i}')
                if mode != 1: k(f'v_fmac_f32 v{R_}, v{base+i}, v{W_+i}')
        merge(k, sa, sb); merge(k, qa, qb)
        if mode != 1: merge(k, ra, rb)
        red_half(k, [sa, qa] + ([ra] if mode != 1 else []))
        k(f'''v_mul_f32 v{sa}, {fl(1/512)}, v{sa}
v_mul_f32 v{qa}, {fl(1/512)}, v{qa}
v_fma_f32 v{qa}, -v{sa}, v{sa}, v{qa}
v_max_f32 v{qa}, 0, v{qa}
v_add_f32 v{qb}, {fl(1e-5)}, v{qa}
v_rsq_f32 v{qb}, v{qb}''')
        if mode == 1: zc = qb
        else:
            st = V(4, 4); one = V(); nb = V(); zc = V()
            k(f'''v_add_f32 v{one}, 1.0, v{qb}
v_fma_f32 v{ra}, -v{sa}, v{sw}, v{ra}
v_mul_f32 v{nb}, v{sa}, v{qb}
v_mul_f32 v{qa}, v{qa}, v{one}
v_rcp_f32 v{st+1}, v{one}
v_mul_f32 v{qa}, v{qa}, v{one}
v_mul_f32 v{st+2}, v{ra}, v{qb}
v_add_f32 v{qa}, {fl(1e-5)}, v{qa}
v_mov_b32 v{st}, v{sa}
v_rsq_f32 v{st+3}, v{qa}
v_mul_f32 v{st+1}, v{st+1}, v{qb}
v_readlane_b32 s48, v{one}, 16
v_readlane_b32 s49, v{one}, 48
v_readlane_b32 s50, v{nb}, 16
v_readlane_b32 s51, v{nb}, 48
v_mul_f32 v{zc}, v{st+3}, v{one}''')
        pk = V(4, 4)
        if mode != 5:
            k(f'''v_mul_f32 v{sb}, v{sa}, v{zc}
v_readlane_b32 s52, v{zc}, 16
v_readlane_b32 s53, v{zc}, 48
v_readlane_b32 s54, v{sb}, 16
v_readlane_b32 s55, v{sb}, 48''')
            fv = V(8); t0 = V(); t1 = V()
            k(f'v_mov_b32 v{vt}, s54\nv_add_f32 v{vt}, s55, v{vt}')
            for i in range(8):
                k(f'v_fma_f32 v{fv+i}, v{a+i}, s52, -v{vt}\nv_fmac_f32 v{fv+i}, s53, v{b+i}')
                if i == 0: k(f'ds_bpermute_b32 v{fv}, v{bpf}, v{fv}')
            def sel(dst, i):
                if i == 4: return fv + 4
                k(f'v_cndmask_b32 v{dst}, v{fv+i}, v{fv+8-i}, s[44:45]'); return dst
            for i in (1, 2, 3):
                lo = sel(t0, 2*i); hi = sel(t1, 2*i+1)
                k(f'v_cvt_pk_f16_f32 v{pk+i}, v{lo}, v{hi}')
            hi = sel(t1, 1)
            k(f'''ds_write2_b32 v{vqw}, v{pk+2}, v{pk+3} offset0:8 offset1:12
s_waitcnt lgkmcnt(1)
v_cvt_pk_f16_f32 v{pk}, v{fv}, v{hi}
ds_write2_b32 v{vqw}, v{pk}, v{pk+1} offset0:0 offset1:4''')
        if mode != 1:
            k(f'''v_and_b32 v{vt}, 32, v0
v_ashrrev_i32 v{one}, 31, v{st+2}
v_lshl_add_u32 v{vt}, v{vt}, 6, s23
v_or_b32 v{one}, 0x80000000, v{one}
v_lshrrev_b32 v{vt2}, 3, v0
v_xor_b32 v{one}, v{one}, v{st+2}
v_and_b32 v{vt2}, 60, v{vt2}
v_and_b32 v{one}, 0xfffff000, v{one}
s_cmp_eq_u32 s23, s24
s_cselect_b32 s36, 0, 0x10000
v_or_b32 v{one}, v{one}, v{vt}
s_cmp_lg_u32 s60, 0
s_cbranch_scc1 {name}_nokey{mode}
s_mov_b32 exec_lo, 0x10000
s_mov_b32 exec_hi, s36
ds_write_b32 v{vt2}, v{one} offset:{L_KEY}
s_mov_b64 exec, -1
{name}_nokey{mode}:''')
        if mode == 1:
            p2 = V(4, 4)
            k(f'''s_lshl_b32 s38, s2, 13
s_add_u32 s39, s38, 4096
v_mov_b32 v{p2+2}, s40
v_mov_b32 v{p2+3}, s40
s_waitcnt vmcnt(0) lgkmcnt(0)
v_mov_b32 v{pk+2}, s40
v_mov_b32 v{pk+3}, s40
s_barrier
ds_read_b64 {vr(pk,2)}, v{vqr} offset:{L_Q}
ds_read_b64 {vr(p2,2)}, v{vqr} offset:{L_Q+1024}
s_waitcnt lgkmcnt(1)
buffer_store_dwordx4 {vr(pk,4)}, v{vfa}, s[4:7], s38 offen {SC}
s_waitcnt lgkmcnt(0)
buffer_store_dwordx4 {vr(p2,4)}, v{vfa}, s[4:7], s39 offen {SC}''')
            return
        o1 = V(4, 4); o2 = V(4, 4); b0 = V(); n1 = V(); n2 = V()
        layer = mode // 2
        def resid():
            k(f'v_mov_b32 v{vt}, s50\nv_mov_b32 v{vt2}, s51')
            for i in range(8):
                k(f'v_fma_f32 v{b+i}, v{b+i}, s49, -v{vt2}')
                if i == 0: k(f'ds_bpermute_b32 v{b0}, v{bpm}, v{b}')
            for i in range(8): k(f'v_fma_f32 v{a+i}, v{a+i}, s48, -v{vt}')
            for i in range(4): k(f'v_cvt_pk_bf16_f32 v{o1+i}, v{a+2*i}, v{a+2*i+1}')
            for i in range(1, 4): k(f'v_cvt_pk_bf16_f32 v{o2+i}, v{b+8-2*i}, v{b+7-2*i}')
            k(f's_waitcnt lgkmcnt(0)\nv_cvt_pk_bf16_f32 v{o2}, v{b0}, v{b+7}')
        if mode == 5: resid()
        k(f'''v_lshlrev_b32 v{vt}, 2, v{vn}
v_mov_b32 v{fg+2}, 0
v_mov_b32 v{fg}, s40
s_lshl_b32 s38, s2, 7
s_add_u32 s38, s38, {hex(KEY1 if mode == 3 else KEY2)}
s_waitcnt lgkmcnt(0)
s_barrier
ds_read_b32 v{fg+1}, v{vt} offset:{L_KEY}''')
        if mode == 3:
            k(f'ds_read_b128 {vr(pk,4)}, v{vqr2} offset:{L_Q}\ns_waitcnt lgkmcnt(0)\nbuffer_store_dwordx4 {vr(pk,4)}, v{vfa}, s[4:7], s61 offen {SC}')
        else: k('s_waitcnt lgkmcnt(0)')
        for m in XOR4[:3]:
            k(f'v_mov_b32_dpp v{n1}, v{fg+1} {m} {DPP}\nv_mov_b32_dpp v{n2}, v{fg+2} {m} {DPP}')
            top2_merge(k, fg+1, fg+2, n1, n2)
        k(f'''s_cmp_lg_u32 s22, 0
s_cbranch_scc1 {name}_nopub{mode}
s_mov_b64 exec, 1
buffer_store_dwordx4 {vr(fg,4)}, off, s[4:7], s38 {SC}
s_mov_b64 exec, -1
{name}_nopub{mode}:
v_readfirstlane_b32 s52, v{fg+1}
v_readfirstlane_b32 s53, v{fg+2}''')
        if mode == 3: resid()
        k(f'''s_and_b32 s36, s23, 0x73f
s_mul_i32 s36, s36, {XP}
s_add_u32 s36, s36, {hex(X2 + (layer-1)*128*XP)}''')
        for sl in range(2):
            k(f'''s_and_b32 s37, s{52+sl}, 2047
s_cmp_lg_u32 s37, s23
s_cbranch_scc1 {name}_cd{mode}{sl}
s_bitcmp1_b32 s{52+sl}, 11
s_cbranch_scc1 {name}_cb{mode}{sl}
buffer_store_dwordx4 {vr(o1,4)}, v{vod}, s[4:7], s36 offen {SC}
s_mov_b64 exec, 0x10000
s_branch {name}_cs{mode}{sl}
{name}_cb{mode}{sl}:
buffer_store_dwordx4 {vr(o2,4)}, v{vom}, s[4:7], s36 offen {SC}
s_mov_b32 exec_lo, 0
s_mov_b32 exec_hi, 0x10000
{name}_cs{mode}{sl}:
buffer_store_dwordx4 {vr(st,4)}, off, s[4:7], s36 offset:1024 {SC}
s_mov_b64 exec, -1
{name}_cd{mode}{sl}:''')
            if sl == 0: k(f's_add_u32 s36, s36, {64*XP}')
        if mode == 5:
            k(f'''s_cmp_lg_u32 s60, 0
s_cbranch_scc1 {name}_noout
buffer_store_dwordx4 {vr(o1,4)}, v{vod}, s[16:19], s28 offen {SC}
s_cmp_eq_u32 s23, s24
s_cbranch_scc1 {name}_noout
buffer_store_dwordx4 {vr(o2,4)}, v{vom}, s[16:19], s29 offen {SC}
{name}_noout:''')

    def headsup(layer):
        k(f'''s_lshr_b32 s36, s2, 3
s_or_b32 s36, s36, s22
s_cbranch_scc1 {name}_hu{layer}
s_lshl_b32 s36, s2, 7
s_add_u32 s36, s36, {hex(HU + 1024*(layer-1))}
v_mov_b32 v{vt}, s40
s_mov_b64 exec, 1
buffer_store_dword v{vt}, off, s[4:7], s36 {SC}
s_mov_b64 exec, -1
{name}_hu{layer}:''')

    def col_consts():
        k.nv = T0 + 24
        fk = V(); fgf = V(); c = V(); s = V(); ang = V(); f1 = V(); f2 = V()
        def xaddr(dst, sh, nxt):
            k(f'''v_bfe_u32 v{vt}, v0, {sh}, 3
v_lshrrev_b32 v{vt2}, {sh+6}, v0
v_lshl_add_u32 v{vt}, v{vt2}, 3, v{vt}
v_mul_u32_u24 v{vt}, 144, v{vt}
v_bfe_u32 v{vt2}, v0, {sh+3}, 3
v_lshl_add_u32 v{vt}, v{vt2}, 4, v{vt}
v_and_b32 v{vt2}, {1 << (sh-1)}, v0
v_cmp_ne_u32 s[38:39], 0, v{vt2}
v_sub_u32 v{vt2}, 9328, v{vt}
v_mov_b32 v{c}, {1152*(4 >> sh)}
v_mov_b32 v{s}, {-1152*(4 >> sh)}
v_cndmask_b32 v{dst+1}, v{vt}, v{vt2}, s[38:39]
v_cndmask_b32 v{c}, v{c}, v{s}, s[38:39]
v_lshrrev_b32 v{s}, 6, v{vt}
v_add_u32 v{vt2}, 4544, v{vt}
v_cmp_eq_u32 vcc, 1, v{s}
v_cndmask_b32 v{vt}, v{vt}, v{vt2}, vcc
v_sub_u32 v{vt2}, 9328, v{vt}
v_sub_u32 v{dst}, 116, v{vt}
v_cmp_eq_u32 vcc, 0, v{s}
v_cndmask_b32 v{vt2}, v{vt2}, v{dst}, vcc
v_cndmask_b32 v{dst}, v{vt}, v{vt2}, s[38:39]''')
            if sh == 2: k(f'v_and_b32 v{vt}, 1, v0\nv_lshl_add_u32 v{dst}, v{vt}, 3, v{dst}\nv_lshl_add_u32 v{dst+1}, v{vt}, 3, v{dst+1}')
            k(f'v_add_u32 v{dst}, {L_X}, v{dst}')
            for i in range(nxt): k(f'v_add_u32 v{dst+1+i}, v{dst+max(i,1)}, v{c}')
        xaddr(xa, 2, 3); xaddr(xa+4, 1, 1)
        k(f'''v_lshrrev_b32 v{vt}, 2, v0
v_and_b32 v{vt2}, 3, v0
v_lshlrev_b32 v{vt}, 13, v{vt}
v_lshl_add_u32 v{vq1}, v{vt2}, 4, v{vt}
v_lshrrev_b32 v{vt}, 1, v0
v_and_b32 v{vt2}, 1, v0
v_lshlrev_b32 v{vqr2}, 4, v{vt}
v_lshl_add_u32 v{vqr2}, v{vt2}, 11, v{vqr2}
v_lshlrev_b32 v{vt}, 12, v{vt}
v_lshl_add_u32 v{vq2}, v{vt2}, 4, v{vt}
v_mul_u32_u24 v{va}, 144, v{vn}
v_lshl_add_u32 v{va}, v{vg}, 5, v{va}
v_add_u32 v{vt}, s26, v{vn}
v_cvt_f32_u32 v{fk}, v{vt}
v_cvt_f32_u32 v{fgf}, v{vg}
v_mul_f32 v{f1}, {fl(1/64)}, v{fk}
v_add_f32 v{f2}, v{f1}, v{f1}
v_mul_f32 v{vt2}, {fl(16.0)}, v{fgf}
v_mul_f32 v{vt2}, v{vt2}, v{f1}''')
        for hi in range(2):
            k(f'v_add_f32 v{ang}, v{vt2}, v{f1}' if hi else f'v_mov_b32 v{ang}, v{vt2}')
            for half in range(2):
                for r in range(4):
                    if half or r: k(f'v_add_f32 v{ang}, v{ang}, v{f2}')
                    o = CB1 + 16*hi + 8*half
                    k(f'v_cos_f32 v{c}, v{ang}\nv_sin_f32 v{s}, v{ang}\nv_cvt_pk_f16_f32 v{o+r}, v{c}, v{s}\nv_cvt_pk_f16_f32 v{o+4+r}, -v{s}, v{c}')
        k(f'''v_mul_f32 v{f1}, {fl(1/2048)}, v{fk}
v_mul_f32 v{fgf}, 4.0, v{fgf}
s_mov_b32 s38, {fl(0.125)}
s_mov_b32 s39, {fl(13.0)}
v_mul_f32 v{ang}, v{fgf}, v{f1}''')
        for T in range(2):
            for r in range(4):
                if r: k(f'v_add_f32 v{ang}, v{ang}, v{f1}')
                elif T: k(f'v_fmac_f32 v{ang}, s39, v{f1}')
                k(f'v_cos_f32 v{c}, v{ang}\nv_sin_f32 v{s}, v{ang}\nv_mul_f32 v{CTW+8*T+2*r}, s38, v{c}\nv_mul_f32 v{CTW+8*T+2*r+1}, s38, v{s}')
        k(f'''v_lshl_add_u32 v{vt}, s27, 4, v{vn}
v_cvt_f32_u32 v{fk}, v{vt}
v_mul_f32 v{f1}, {fl(1/32)}, v{fk}
v_mul_f32 v{ang}, v{fgf}, v{f1}''')
        for T in range(2):
            for r in range(4):
                if r: k(f'v_add_f32 v{ang}, v{ang}, v{f1}')
                elif T: k(f'v_fmac_f32 v{ang}, s39, v{f1}')
                o = CA2 + 4*T
                k(f'v_cos_f32 v{c}, v{ang}\nv_sin_f32 v{s}, v{ang}\nv_cvt_pk_f16_f32 v{o+r}, v{c}, v{s}\nv_cvt_pk_f16_f32 v{o+8+r}, -v{s}, v{c}')

    def col_phase(tag, Qo, Uo):
        k.nv = T0
        X = V(32, 4); D1 = V(16, 4); Bd = V(8, 4); D2 = V(8, 4)
        G = X
        if Qo == Q1:
            k(f's_lshl_b32 s48, s3, 6')
            for i in range(1, 5): k(f's_add_u32 s{48+i}, s48, {hex(64*8192*i)}')
            ld = [f'buffer_load_dwordx3 {vr(G+4*i,3)}, v{vq1}, s[4:7], s{48+i} offen {SC}' for i in range(4)]
            ld.append(f'buffer_load_dwordx3 {vr(G+16,3)}, off, s[4:7], s52 {SC}')
            gather(k, f'{name}_gq1', '\n'.join(ld), ck_tag(vt, [G+4*i+2 for i in range(5)]), OPT['sleep'])
            k.stamp(tag)
            k(f'ds_write2_b32 v{xa}, v{G}, v{G+1} offset0:0 offset1:1')
            for i in range(1, 4): k(f'ds_write_b64 v{xa+i}, {vr(G+4*i,2)} offset:{L_X}')
        else:
            k(f's_lshl_b32 s48, s3, 5\ns_add_u32 s48, s48, {hex(Q2)}')
            for i in range(1, 3): k(f's_add_u32 s{48+i}, s48, {hex(128*4096*i)}')
            ld = [f'buffer_load_dwordx4 {vr(G+4*i,4)}, v{vq2}, s[4:7], s{48+i} offen {SC}' for i in range(2)]
            ld.append(f'buffer_load_dword v{G+16}, off, s[4:7], s50 {SC}')
            gather(k, f'{name}_gq2', '\n'.join(ld), ck_sent(vt, [G+16] + list(range(G, G+8))), OPT['sleep'])
            k.stamp(tag)
            k(f'''ds_write2_b32 v{xa+4}, v{G}, v{G+1} offset0:0 offset1:1
ds_write2_b32 v{xa+4}, v{G+2}, v{G+3} offset0:2 offset1:3
ds_write_b128 v{xa+5}, {vr(G+4,4)} offset:{L_X}''')
        k(f'''s_mov_b64 exec, 1
ds_write_b32 v{va}, v{G+16} offset:{L_X+64}
s_mov_b64 exec, -1
s_cmp_eq_u32 s2, 256
s_waitcnt lgkmcnt(0)
s_barrier
s_cbranch_scc1 {name}_cx{tag}''')
        for T in range(2):
            for hi in range(2):
                for half in range(2):
                    q = T + 2*hi
                    k(f'ds_read_b128 {vr(X+16*T+8*hi+4*half,4)}, v{va} offset:{L_X + 16*half + 144*16*q}')
        for T in range(2):
            for kap in range(4):
                k(f's_waitcnt lgkmcnt({7-4*T-kap})')
                for z in range(2):
                    d = vr(D1+8*T+4*z, 4)
                    k(f'v_mfma_f32_16x16x32_f16 {d}, {vr(X+16*T+4*kap,4)}, {vr(CB1+8*kap+4*z,4)}, {d if kap else 0}')
        k.stamp(tag + 1)
        for T in range(2):
            for r in range(4):
                twiddle(k, D1+8*T+r, D1+8*T+4+r, CTW+8*T+2*r, CTW+8*T+2*r+1, vt, vt2, Bd+4*T+r)
            for z in range(2):
                d = vr(D2+4*z, 4)
                k(f'v_mfma_f32_16x16x32_f16 {d}, {vr(CA2+8*z+4*T,4)}, {vr(Bd+4*T,4)}, {d if T else 0}')
        k(f's_add_u32 s36, s41, {hex(Uo)}\nv_cmp_eq_u32 vcc, {63*128}, v{vst}')
        for r in range(4): k(f'v_cvt_pk_f16_f32 v{X+r}, v{D2+r}, v{D2+4+r}')
        k(f'''buffer_store_dwordx4 {vr(X,4)}, v{vst}, s[4:7], s36 offen {SC}
s_cbranch_vccz {name}_cx{tag}
s_mov_b64 exec, vcc
buffer_store_dword v{X}, v{vst}, s[4:7], s36 offen offset:128 {SC}
s_mov_b64 exec, -1''')
        k.lab(f'{name}_cx{tag}')

    def row_consts():
        k.nv = T0 + 24
        fe = V(); fgf = V(); c = V(); s = V(); ang = V(); f1 = V()
        k(f'''v_lshrrev_b32 v{vt}, 2, v{vn}
v_and_b32 v{vt2}, 3, v{vn}
v_lshl_add_u32 v{vt}, v{vt}, 3, v{vt2}
v_cvt_f32_u32 v{fe}, v{vt}
v_lshlrev_b32 v{vt}, 2, v{vg}
v_cvt_f32_u32 v{fgf}, v{vt}
s_mov_b32 s36, {fl(1/32)}
s_mov_b32 s37, {fl(0.25)}''')
        for h in range(2):
            if h: k(f'v_add_f32 v{fe}, 4.0, v{fe}')
            k(f'v_mul_f32 v{f1}, s36, v{fe}\nv_mul_f32 v{ang}, v{fgf}, v{f1}')
            for r in range(4):
                if r: k(f'v_add_f32 v{ang}, v{ang}, v{f1}')
                k(f'v_cos_f32 v{c}, v{ang}\nv_sin_f32 v{s}, v{ang}\nv_mul_f32 v{vt}, {fl(1/16)}, v{ang}')
                if r & 1: k(f'v_add_f32 v{vt}, s37, v{vt}')
                k(f'''v_cvt_pk_f16_f32 v{RB1+8*h+r}, v{c}, v{s}
v_cvt_pk_f16_f32 v{RB1+8*h+4+r}, -v{s}, v{c}
v_cos_f32 v{c}, v{vt}
v_sin_f32 v{s}, v{vt}
v_mul_f32 v{RTW+8*h+2*r}, s37, v{c}
v_mul_f32 v{RTW+8*h+2*r+1}, s37, v{s}''')
        k(f'v_cvt_f32_u32 v{f1}, v{vn}\nv_mul_f32 v{f1}, {fl(1/16)}, v{f1}\nv_mul_f32 v{ang}, v{fgf}, v{f1}')
        for r in range(4):
            if r: k(f'v_add_f32 v{ang}, v{ang}, v{f1}')
            k(f'v_cos_f32 v{c}, v{ang}\nv_sin_f32 v{s}, v{ang}\nv_cvt_pk_f16_f32 v{RB2+r}, v{c}, v{s}')
        k(f'''v_lshrrev_b32 v{vt}, 1, v{vn}
v_lshl_add_u32 v{vt}, v{vg}, 5, v{vt}
s_lshl_b32 s36, s22, 2
s_sub_u32 s37, {2048+12}, s36
v_lshl_add_u32 v{vra}, v{vt}, 4, s36
v_lshl_add_u32 v{vrb}, v{vt}, 4, s37
v_and_b32 v{vt}, 1, v0
v_cmp_eq_u32 s[46:47], 1, v{vt}
v_mov_b32 v{vt}, 0xbc003c00
v_mov_b32 v{vt2}, 0x3c00bc00
v_cndmask_b32 v{vsg}, v{vt}, v{vt2}, s[46:47]''')

    def u_load(tag, Uo, ug):
        k(f's_add_u32 s38, s25, {hex(Uo)}')
        gather(k, f'{name}_gu{tag}', f'buffer_load_dwordx4 {vr(ug,4)}, v{vp}, s[4:7], s38 offen {SC}', ck_sent(vt, range(ug, ug+4)), OPT['sleep'])
        k(f'ds_write_b128 v{vfa}, {vr(ug,4)} offset:{L_U}')
    def u_read(u1, u2, extra=''):
        k(f'''s_waitcnt lgkmcnt(0)
s_barrier
{extra}
ds_read2_b32 {vr(u1,2)}, v{vra} offset0:0 offset1:32
ds_read2_b32 {vr(u2,2)}, v{vrb} offset0:0 offset1:32
ds_read2_b32 {vr(u1+2,2)}, v{vra} offset0:64 offset1:96
ds_read2_b32 {vr(u2+2,2)}, v{vrb} offset0:64 offset1:96
s_waitcnt lgkmcnt(0)''')
        for r in range(4): k(f'v_pk_fma_f16 v{u1+r}, v{u2+r}, v{vsg}, v{u1+r}')
    def hid_dft(u1):
        D1 = V(16, 4); A2 = V(8, 4); D2 = V(8, 4)
        for h in range(2):
            for z in range(2):
                k(f'v_mfma_f32_16x16x32_f16 {vr(D1+8*h+4*z,4)}, {vr(u1,4)}, {vr(RB1+8*h+4*z,4)}, 0')
        k(f'v_cvt_f32_f16 v{vt2}, v{u1}\ns_mov_b32 s54, {fl(16.0)}\nv_readlane_b32 s52, v{vt2}, 0')
        for h in range(2):
            for r in range(4):
                twiddle(k, D1+8*h+r, D1+8*h+4+r, RTW+8*h+2*r, RTW+8*h+2*r+1, vt, vt2, A2+4*h+r)
            k(f'v_mfma_f32_16x16x32_f16 {vr(D2+4*h,4)}, {vr(A2+4*h,4)}, {vr(RB2,4)}, 0')
        k(f'''v_readlane_b32 s53, v{D2}, 0
v_mov_b32 v{vt2}, s52
v_mul_f32 v{vt2}, -4.0, v{vt2}
v_mov_b32 v{vt}, s53
v_mul_f32 v{vt}, {fl(-16.0)}, v{vt}
v_add_f32 v{vt2}, v{vt2}, v{vt}''')
        for i in range(8):
            k(f'''v_fma_f32 v{D2+i}, v{D2+i}, s54, v{vt2 if i & 1 else vt}
v_add_f32 v{a+i}, v{a+i}, v{D2+i}
v_add_f32 v{b+i}, v{b+i}, v{D2+i}''')

    k(f'v_mov_b32 v{vt}, 0\nv_lshlrev_b32 v{vt2}, 2, v{vn}\nds_write_b32 v{vt2}, v{vt} offset:{L_KEY}')
    col_consts()
    k('s_waitcnt vmcnt(8) lgkmcnt(0)\ns_mul_i32 s40, s40, 0x9e3779b1\ns_add_u32 s40, s40, 0x7f4a7c15')
    k.stamp(2)
    unpack_direct(k, a, xd); unpack_mirror(k, b, xm, xm0)
    stats_and_out(1)
    k.stamp(3)
    unpack_direct(k, wa, wd); unpack_mirror(k, wb, wm, wm0)
    row_consts()
    k(f'v_add_f32 v{sw}, v{wa}, v{wa+1}')
    for i in range(2, 8): k(f'v_add_f32 v{sw}, v{sw}, v{wa+i}')
    k(f'v_mov_b32 v{vt}, v{sw}'); merge(k, sw, vt); red_half(k, [sw])
    k.stamp(7)
    col_phase(4, Q1, U1)
    k.stamp(6)
    k.nv = T0
    u1 = V(4, 4); u2 = V(4, 4)
    u_load('a', U1, u1)
    k.stamp(8)
    headsup(1)
    u_read(u1, u2)
    hid_dft(u1)
    stats_and_out(3)
    k.stamp(9)
    col_phase(10, Q2, U2)
    k.stamp(12)
    k.nv = T0
    u1 = V(4, 4); u2 = V(4, 4)
    OA = V(16, 4); up = V(16, 4); m1 = V(); m2 = V(); n1 = V(); n2 = V(); cs = V(4); vo = V(2); vup = V()
    k(f'v_lshlrev_b32 v{vup}, 7, v0')
    poll_keys(k, name, 1, vup, fg, fx, vt, 1)
    k(f'v_lshrrev_b32 v{vt}, 1, v{vfa}\nv_mov_b32 v{fg}, v{fg+2}\nds_write_b64 v{vt}, {vr(fg,2)} offset:{L_KT}\ns_waitcnt lgkmcnt(0)\ns_barrier')
    k(f'v_lshlrev_b32 v{vt}, 4, v{vl}\nds_read_b128 {vr(OA,4)}, v{vt} offset:{L_KT}\nds_read_b128 {vr(OA+4,4)}, v{vt} offset:{L_KT+1024}\ns_waitcnt lgkmcnt(0)')
    k(f'v_mov_b32 v{m1}, v{OA+1}\nv_mov_b32 v{m2}, v{OA}')
    for i in (2, 4, 6): top2_merge(k, m1, m2, OA+i+1, OA+i)
    top2_wave(k, m1, m2, n1, n2)
    k(f'v_med3_u32 v{m2}, v{m1}, v{m2}, v{fx+1}\nv_max_u32 v{m1}, v{m1}, v{fx+1}')
    k(f'''s_mov_b32 s36, {L_UD}
v_readfirstlane_b32 s56, v{m1}
v_readfirstlane_b32 s57, v{m2}
v_lshlrev_b32 v{vo}, 7, v{vg}
v_lshl_add_u32 v{vo}, v{vn}, 1, v{vo}
v_sub_u32 v{vo+1}, 928, v{vo}
v_cmp_eq_u32 vcc, 0, v{vl}
v_mov_b32 v{n1}, 512
v_add_u32 v{n2}, 96, v{vo+1}
v_cndmask_b32 v{n1}, v{vo}, v{n1}, vcc
v_and_b32 v{n2}, 1023, v{n2}
v_lshrrev_b32 v{vup}, 3, v0
v_lshlrev_b32 v{vup}, 7, v{vup}
v_and_b32 v{vt}, 3, v0
v_lshl_add_u32 v{vup}, v{vt}, 5, v{vup}
v_and_b32 v{vt}, 4, v0
v_add3_u32 v{vup}, v{vup}, v{vt}, s36''')
    sel_decode(k, 1, True)
    ld = []
    for j in range(2):
        ld.append(f'buffer_load_dwordx4 {vr(up+4*j,4)}, off, s[4:7], s{42+j} offset:1024 {SC}')
        ld.append(f'buffer_load_short_d16_hi v{OA+8*j}, v{n1}, s[4:7], s{42+j} offen {SC}')
        for r in range(1, 4): ld.append(f'buffer_load_short_d16_hi v{OA+8*j+r}, v{vo}, s[4:7], s{42+j} offen offset:{32*r} {SC}')
        ld.append(f'buffer_load_short_d16_hi v{OA+8*j+4}, v{n2}, s[4:7], s{42+j} offen {SC}')
        for r in range(1, 4): ld.append(f'buffer_load_short_d16_hi v{OA+8*j+4+r}, v{vo+1}, s[4:7], s{42+j} offen offset:{96-32*r} {SC}')
    for i in range(16): k(f'v_mov_b32 v{OA+i}, 0')
    gather(k, f'{name}_go', '\n'.join(ld), ck_sent(vt, [up, up+4] + list(range(OA, OA+16))).replace('v_cmp_eq_u32 vcc, -1', 'v_cmp_le_u32 vcc, 0xffff0000'), 1)
    k(f'''s_mul_i32 s36, s56, s23
s_mul_i32 s37, s57, s23
s_and_b32 s36, s36, 2047
s_and_b32 s37, s37, 2047
v_cvt_f32_u32 v{cs}, s36
v_cvt_f32_u32 v{cs+2}, s37
v_mul_f32 v{cs}, {fl(1/2048)}, v{cs}
v_mul_f32 v{cs+2}, {fl(1/2048)}, v{cs+2}
v_sin_f32 v{cs+1}, v{cs}
v_sin_f32 v{cs+3}, v{cs+2}
v_cos_f32 v{cs}, v{cs}
v_cos_f32 v{cs+2}, v{cs+2}''')
    for i in range(4): k(f'v_mul_f32 v{cs+i}, {fl(0.25)}, v{cs+i}')
    OB = V(16)
    for j in range(2):
        for i in range(8):
            o = OA + 8*j + i
            k(f'v_sub_f32 v{OB+8*j+i}, v{o}, v{up+4*j}\nv_mul_f32 v{OB+8*j+i}, v{OB+8*j+i}, v{up+4*j+3}')
    for r in (vo, vo+1, n1, n2): k(f'v_lshlrev_b32 v{r}, 2, v{r}')
    k.stamp(13)
    u_load('b', U2, u1)
    k.stamp(14)
    k(f's_mov_b32 s36, {hex(UPD)}')
    gather(k, f'{name}_gup', f'buffer_load_dwordx4 {vr(up,4)}, v{vfa}, s[4:7], s36 offen {SC}', ck_sent(vt, range(up, up+4)), OPT['sleep'])
    k(f'ds_write2_b32 v{vup}, v{up}, v{up+1} offset0:0 offset1:2\nds_write2_b32 v{vup}, v{up+2}, v{up+3} offset0:4 offset1:6')
    headsup(2)
    rd = [f'ds_read_b64 {vr(up,2)}, v{n1} offset:{L_UD}'] + [f'ds_read_b64 {vr(up+2*r,2)}, v{vo} offset:{L_UD+128*r}' for r in range(1, 4)]
    rd += [f'ds_read_b64 {vr(up+8,2)}, v{n2} offset:{L_UD}'] + [f'ds_read_b64 {vr(up+8+2*r,2)}, v{vo+1} offset:{L_UD+384-128*r}' for r in range(1, 4)]
    u_read(u1, u2, '\n'.join(rd))
    k.stamp(15)
    for i in range(8): k(f'v_add_f32 v{OA+i}, v{OA+i}, v{up+2*i}\nv_add_f32 v{OA+8+i}, v{OA+8+i}, v{up+2*i+1}')
    sa, qa, sb, qb = m1, m2, n1, n2
    for (S_, Q_, base) in ((sa, qa, OA), (sb, qb, OA+8)):
        k(f'v_add_f32 v{S_}, v{base}, v{base+1}\nv_mul_f32 v{Q_}, v{base}, v{base}')
        for i in range(1, 8):
            if i > 1: k(f'v_add_f32 v{S_}, v{S_}, v{base+i}')
            k(f'v_fmac_f32 v{Q_}, v{base+i}, v{base+i}')
    merge(k, sa, sb); merge(k, qa, qb)
    red_half(k, [sa, qa])
    k(f'''v_mul_f32 v{sa}, {fl(1/512)}, v{sa}
v_mul_f32 v{qa}, {fl(1/512)}, v{qa}
v_fma_f32 v{qa}, -v{sa}, v{sa}, v{qa}
v_max_f32 v{qa}, 0, v{qa}
v_add_f32 v{qa}, {fl(1e-5)}, v{qa}
v_rsq_f32 v{qa}, v{qa}
v_cmp_eq_u32 vcc, 0, v{vl}
v_mul_f32 v{sa}, v{sa}, v{qa}
v_readlane_b32 s48, v{qa}, 16
v_readlane_b32 s49, v{qa}, 48
v_readlane_b32 s50, v{sa}, 16
v_readlane_b32 s51, v{sa}, 48''')
    for j in range(2):
        A_ = OA + 8*j; B_ = OB + 8*j
        for i in range(8): k(f'v_fma_f32 v{A_+i}, v{A_+i}, s{48+j}, -v{B_+i}')
        k(f'v_cndmask_b32 v{A_+4}, v{A_+4}, v{A_}, vcc\nv_mov_b32 v{vt}, s{50+j}')
        for i in range(4):
            k(f'v_add_f32 v{B_+i}, v{A_+i}, v{A_+4+i}\nv_sub_f32 v{B_+4+i}, v{A_+i}, v{A_+4+i}\nv_fma_f32 v{B_+i}, v{vt}, -2.0, v{B_+i}')
    for i in range(4):
        k(f'''v_mul_f32 v{OB+i}, v{OB+i}, v{cs}
v_mul_f32 v{OB+4+i}, v{OB+4+i}, v{cs+1}
v_fmac_f32 v{OB+i}, v{OB+8+i}, v{cs+2}
v_fmac_f32 v{OB+4+i}, v{OB+12+i}, v{cs+3}
v_cndmask_b32 v{vt}, v{OB+i}, v{OB+4+i}, s[46:47]
v_cndmask_b32 v{vt2}, -v{OB+4+i}, v{OB+i}, s[46:47]
v_cvt_pk_f16_f32 v{vt}, v{vt}, v{vt2}
v_pk_add_f16 v{u1+i}, v{u1+i}, v{vt}''')
    k(f'''s_cmp_eq_u32 s56, s23
s_cselect_b32 s36, 1, 0
s_cmp_eq_u32 s56, s24
s_cselect_b32 s37, 1, 0
s_cmp_eq_u32 s57, s23
s_cselect_b32 s38, 1, 0
s_cmp_eq_u32 s57, s24
s_cselect_b32 s39, 1, 0
s_or_b32 s48, s36, s37
s_or_b32 s49, s38, s39
s_or_b32 s48, s48, s49
s_cbranch_scc0 {name}_noown
v_lshlrev_b32 v{m1}, 2, v{vod}
v_sub_u32 v{m2}, {4096-56}, v{m1}
v_lshlrev_b32 v{n1}, 2, v{vom0}
v_cvt_f32_u32 v{cs}, s36
v_cvt_f32_u32 v{cs+1}, s37
v_cvt_f32_u32 v{cs+2}, s38
v_cvt_f32_u32 v{cs+3}, s39''')
    for i in range(4): k(f'ds_read_b128 {vr(OA+4*i,4)}, v{m1} offset:{L_UD+16*i}')
    k(f'ds_read_b64 {vr(up,2)}, v{n1} offset:{L_UD}')
    for i in range(1, 8): k(f'ds_read_b64 {vr(up+2*i,2)}, v{m2} offset:{L_UD+56-8*i}')
    k('s_waitcnt lgkmcnt(0)')
    for i in range(8):
        for (row, src, o) in ((a, OA, 0), (b, up, 1)):
            k(f'v_fmac_f32 v{row+i}, v{src+2*i}, v{cs+o}\nv_fmac_f32 v{row+i}, v{src+2*i+1}, v{cs+2+o}')
    k.lab(f'{name}_noown')
    k.nv = T0 + 8
    hid_dft(u1)
    stats_and_out(5)
    k(f'''s_or_b32 s36, s2, s22
s_cbranch_scc1 {name}_noep
v_mov_b32 v{vt}, s40
v_mov_b32 v{vt2}, 0
s_mov_b32 s36, {hex(EPOCH)}
buffer_store_dword v{vt}, v{vt2}, s[4:7], s36 offen {SC}''')
    k.lab(f'{name}_noep')
    k(f'''s_cmp_lg_u32 s22, 0
s_waitcnt vmcnt(0)
s_barrier
s_cbranch_scc1 {name}_fin
s_mov_b64 exec, 1
buffer_store_dword v{fg}, off, s[4:7], s38 offset:64 {SC}
{name}_fin:''')
    k.endpgm()


def ffn_role(k, name):
    k.nv = 1
    V = k.v
    vl = V(); vn = V(); vg = V(); vt = V(); vt2 = V(); vw = V(); vtr = V(); vlw = V(); vky = V(); vo = V(); vro = V()
    fg = V(4, 4); fx = V(2, 2); m1 = V(2, 2); m2 = m1 + 1; n1 = V(); n2 = V(); old = V(4, 2)
    st = V(4, 4); Fr = V(56, 4); Wt = V(56, 4); Af = Wt; D = V(8, 4); R_ = V(32, 4); CS = V(8, 4)
    RED = 57344
    NF = OPT['nf']
    k(f"""v_and_b32 v{vl}, 63, v0
v_and_b32 v{vn}, 15, v0
v_bfe_u32 v{vg}, v0, 4, 2
v_lshlrev_b32 v{vky}, 7, v0
s_and_b32 s20, s3, 7
s_bfe_u32 s21, s3, 0x20003
v_lshrrev_b32 v{vt}, 1, v{vl}
v_and_b32 v{vt2}, 1, v{vl}
v_cmp_eq_u32 s[52:53], 1, v{vt2}
v_lshlrev_b32 v{vt2}, 4, v{vt2}
v_lshlrev_b32 v{vtr}, 8, v{vg}
v_lshl_add_u32 v{vtr}, v{vn}, 3, v{vtr}
v_lshlrev_b32 v{vlw}, 4, v{vl}
v_cmp_gt_u32 s[54:55], 2, v{vn}
s_lshl_b32 s61, s20, 7
s_add_u32 s61, s61, {hex(HU)}
s_mov_b32 s27, {fl(-1.4426950408889634)}
s_waitcnt lgkmcnt(0)
s_add_u32 s38, s30, {hex(EPOCH)}
s_addc_u32 s39, s31, 0
s_load_dword s40, s[38:39], 0""")
    k.stamp(1)
    srd(k, 4, 30, WS_BYTES); srd(k, 8, 58, 2048*1024)
    k(f's_cmp_ge_u32 s3, 128\ns_cbranch_scc1 {name}_cons')

    def select(layer, role):
        nm = f'{name}_{role}'
        gather(k, f'{nm}_g{layer}', f'buffer_load_dword v{fg}, off, s[4:7], s61 offset:{1024*(layer-1)} {SC}', ck_tag(0, [fg]), OPT['gsleep'])
        poll_keys(k, nm, layer, vky, fg, fx, vt, OPT['fsleep'])
        k.stamp(3 + 6*(layer-1))
        k(f'v_mov_b32 v{m1}, v{fg+1}\nv_mov_b32 v{m2}, v{fg+2}')
        top2_row(k, m1, m2, n1, n2)
        k(f"""v_lshrrev_b32 v{vt}, 4, v0
v_lshlrev_b32 v{vt}, 3, v{vt}
v_lshlrev_b32 v{vt2}, 3, v{vn}
ds_write_b64 v{vt}, {vr(m1,2)} offset:{RED}
s_waitcnt lgkmcnt(0)
s_barrier
ds_read_b64 {vr(m1,2)}, v{vt2} offset:{RED}
s_waitcnt lgkmcnt(0)""")
        top2_row(k, m1, m2, n1, n2)
        k(f"""v_med3_u32 v{m2}, v{m1}, v{m2}, v{fx+1}
v_max_u32 v{m1}, v{m1}, v{fx+1}
v_and_b32 v{n2}, 0x73f, v{m2}
v_and_b32 v{n1}, 0x73f, v{m1}
v_add_u32 v{vt}, 64, v{n2}
v_cmp_eq_u32 vcc, v{n1}, v{n2}
s_mov_b32 s36, {hex(X2 + (layer-1)*128*XP)}
v_cndmask_b32 v{n2}, v{n2}, v{vt}, vcc
v_cndmask_b32 v{n1}, v{n1}, v{n2}, s[52:53]
v_mul_u32_u24 v{vro}, {XP}, v{n1}""")
        k.stamp(4 + 6*(layer-1))
    def prefetch(rows_per_wave, pitch):
        k(f"""v_mul_u32_u24 v{vo}, 3, v{vt2}
v_add_u32 v{vo}, v{vo}, v{vw}
s_lshl_b32 s36, s21, 2
s_add_u32 s36, s36, s22
s_mul_i32 s36, s36, {rows_per_wave*pitch}
s_andn2_b32 s37, s23, 127
s_add_u32 s36, s36, s37""")

    k(f"""s_lshr_b32 s23, s3, 5
s_lshl_b32 s23, s23, 3
s_add_u32 s23, s23, s20
s_cmp_ge_u32 s23, 28
s_cbranch_scc1 {name}_end
s_lshl_b32 s23, s23, 7
s_lshl_b32 s24, s21, 5
s_add_u32 s23, s23, s24
s_mul_i32 s24, s22, {128*3584}
s_add_u32 s24, s24, s23
s_mov_b32 s25, 3584
v_mad_u32_u24 v{vw}, v{vt}, s25, v{vt2}""")
    srd(k, 12, 46, 512*3584); srd(k, 16, 48, 512*3584)
    if OPT['pref']:
        prefetch(32, 3584)
        k(f'buffer_load_dword v{Wt}, v{vo}, s[12:15], s36 offen\nbuffer_load_dword v{Wt+1}, v{vo}, s[16:19], s36 offen\ns_waitcnt vmcnt(0)')
    for kap in range(4):
        k(f'buffer_load_dwordx4 {vr(Wt+4*kap,4)}, v{vw}, s[12:15], s24 offen\ns_waitcnt vmcnt({NF-1})')
        k(f'buffer_load_dwordx4 {vr(Wt+16+4*kap,4)}, v{vw}, s[16:19], s24 offen\ns_waitcnt vmcnt({NF-1})')
        if kap < 3: k(f's_add_u32 s24, s24, {32*3584}')
    k(f"""s_lshl_b32 s25, s22, 13
v_add_u32 v{vtr}, s25, v{vtr}
v_add_u32 v{vlw}, s25, v{vlw}
s_waitcnt vmcnt(0)""")
    for i in range(8): k(f'ds_write_b128 v{vlw}, {vr(Wt+4*i,4)} offset:{1024*i}')
    k('s_waitcnt lgkmcnt(0)\ns_mul_i32 s40, s40, 0x9e3779b1\ns_add_u32 s40, s40, 0x7f4a7c15')
    for i in range(8):
        for u in range(2): k(f'ds_read_b64_tr_b16 {vr(Fr+4*i+2*u,2)}, v{vtr} offset:{1024*i+128*u}')
    for i in range(16): k(f'v_mov_b32 v{Af+i}, 0x3f803f80')
    k(f"""v_lshlrev_b32 v{vo}, 5, v{vn}
v_lshl_add_u32 v{vo}, v{vg}, 3, v{vo}
v_lshlrev_b32 v{vtr}, 6, v{vn}
v_lshl_add_u32 v{vtr}, v{vg}, 4, v{vtr}
s_lshl_b32 s26, s22, 8
v_add_u32 v{vlw}, s26, v{vtr}
v_lshl_add_u32 v{vw}, v{vg}, 4, s26
s_lshl_b32 s23, s23, 2
s_waitcnt lgkmcnt(0)""")
    for kap in range(4):
        for mat in range(2):
            d = vr(CS+4*mat, 4)
            k(f'v_mfma_f32_16x16x32_bf16 {d}, {vr(Fr+16*mat+4*kap,4)}, {vr(Af,4)}, {d if kap else 0}')
    k.stamp(2)
    for layer in (1, 2):
        select(layer, 'p')
        k(f'v_add_u32 v{vt2}, v{vro}, v{vw}\ns_mov_b64 exec, s[54:55]')
        ld = [f'buffer_load_dwordx4 {vr(Af+4*kap,4)}, v{vt2}, s[4:7], s36 offen offset:{64*kap} {SC}' for kap in range(4)]
        ld.append(f'buffer_load_dwordx2 {vr(st,2)}, v{vro}, s[4:7], s36 offen offset:1024 {SC}')
        gather(k, f'{name}_gr{layer}', '\n'.join(ld), ck_sent(vt, [st] + [Af+4*i for i in range(4)]))
        k.stamp(5 + 6*(layer-1))
        for i in range(8): k(f'v_mul_f32 v{D+i}, -v{CS+i}, v{st}')
        for kap in range(4):
            for mat in range(2):
                d = vr(D+4*mat, 4)
                k(f'v_mfma_f32_16x16x32_bf16 {d}, {vr(Fr+16*mat+4*kap,4)}, {vr(Af+4*kap,4)}, {d}')
        k(f"""s_mov_b64 exec, s[54:55]
s_add_u32 s36, s23, {hex(H1 if layer == 1 else H2)}
s_cmp_lg_u32 s22, 0
ds_write_b128 v{vlw}, {vr(D,4)} offset:{RED+128}
ds_write_b128 v{vlw}, {vr(D+4,4)} offset:{RED+128+128}
v_mul_f32 v{n1}, s27, v{st+1}
v_mul_f32 v{n2}, v{st+1}, v{st+1}
s_waitcnt lgkmcnt(0)
s_barrier
s_cbranch_scc1 {name}_pn{layer}""")
        for i in range(2, 8): k(f'ds_read_b128 {vr(R_+4*i,4)}, v{vtr} offset:{RED+128+128*i}')
        for w in range(1, 4):
            k(f's_waitcnt lgkmcnt({6-2*w})')
            for i in range(8): k(f'v_add_f32 v{D+i}, v{D+i}, v{R_+8*w+i}')
        for r in range(4): k(f'v_mul_f32 v{R_+r}, v{n1}, v{D+r}')
        for r in range(4): k(f'v_exp_f32 v{R_+r}, v{R_+r}\nv_mul_f32 v{D+r}, v{D+r}, v{D+4+r}')
        for r in range(4): k(f'v_add_f32 v{R_+r}, 1.0, v{R_+r}')
        for r in range(4): k(f'v_rcp_f32 v{R_+r}, v{R_+r}\nv_mul_f32 v{D+r}, v{D+r}, v{n2}')
        for r in range(4): k(f'v_mul_f32 v{D+r}, v{D+r}, v{R_+r}')
        k(f"""v_cvt_pk_bf16_f32 v{m1}, v{D}, v{D+1}
v_cvt_pk_bf16_f32 v{m2}, v{D+2}, v{D+3}
buffer_store_dwordx2 {vr(m1,2)}, v{vo}, s[4:7], s36 offen {SC}""")
        k.lab(f'{name}_pn{layer}')
        k('s_mov_b64 exec, -1')
        k.stamp(6 + 6*(layer-1))
    k.endpgm()
    k.lab(f'{name}_cons')
    k(f"""s_lshl_b32 s23, s20, 7
s_lshl_b32 s24, s21, 5
s_add_u32 s23, s23, s24
s_mul_i32 s24, s22, {448*1024}
s_add_u32 s24, s24, s23
v_lshl_add_u32 v{vw}, v{vt}, 10, v{vt2}""")
    srd(k, 12, 50, 1792*1024)
    if OPT['pref']:
        prefetch(112, 1024)
        for i in range(4):
            k(f'buffer_load_dword v{Wt+i}, v{vo}, s[12:15], s36 offen\ns_add_u32 s36, s36, {28*1024}\ns_waitcnt vmcnt({1 if i < 3 else 0})')
    for kap in range(14):
        k(f'buffer_load_dwordx4 {vr(Wt+4*kap,4)}, v{vw}, s[12:15], s24 offen\ns_waitcnt vmcnt({NF-1})')
        if kap < 13: k(f's_add_u32 s24, s24, {32*1024}')
    k(f"""s_mul_i32 s25, s22, {14*1024}
v_add_u32 v{vtr}, s25, v{vtr}
v_add_u32 v{vlw}, s25, v{vlw}
s_waitcnt vmcnt(0)""")
    for i in range(14): k(f'ds_write_b128 v{vlw}, {vr(Wt+4*i,4)} offset:{1024*i}')
    k('s_waitcnt lgkmcnt(0)\ns_mul_i32 s40, s40, 0x9e3779b1\ns_add_u32 s40, s40, 0x7f4a7c15')
    for i in range(14):
        for u in range(2): k(f'ds_read_b64_tr_b16 {vr(Fr+4*i+2*u,2)}, v{vtr} offset:{1024*i+128*u}')
    for i in range(56): k(f'v_mov_b32 v{Af+i}, 0')
    k(f"""v_lshrrev_b32 v{vt}, 1, v{vg}
v_and_b32 v{vt2}, 1, v{vg}
v_lshlrev_b32 v{vw}, 7, v{vt}
v_lshl_add_u32 v{vw}, v{vt2}, 4, v{vw}
v_lshl_add_u32 v{vw}, v{vn}, 5, v{vw}
s_waitcnt lgkmcnt(0)
v_lshlrev_b32 v{vtr}, 6, v{vn}
v_lshl_add_u32 v{vtr}, v{vg}, 4, v{vtr}
s_lshl_b32 s26, s22, 7
v_add_u32 v{vlw}, s26, v{vtr}""")
    k.stamp(2)
    for layer in (1, 2):
        select(layer, 'c')
        k('s_mov_b64 exec, s[54:55]')
        ld = [f'buffer_load_dwordx4 {vr(st,4)}, v{vro}, s[4:7], s36 offen offset:1024 {SC}']; ck = [st, st+2]
        if layer == 2:
            k(f"""v_cndmask_b32 v{m1}, v{m1}, v{m2}, s[52:53]
s_add_u32 s38, s36, s23
v_lshl_add_u32 v{vt2}, v{vg}, 3, v{vro}
v_and_b32 v{n1}, 2047, v{m1}
v_sub_u32 v{n2}, 2048, v{n1}
v_and_b32 v{vt}, 2048, v{m1}
v_cmp_ne_u32 vcc, 0, v{vt}
v_bfe_u32 v{vl}, v{n1}, 3, 3
v_cndmask_b32 v{vo}, v{n1}, v{n2}, vcc
v_lshlrev_b32 v{vo}, 10, v{vo}
v_lshl_add_u32 v{vo}, v{vg}, 3, v{vo}
v_cmp_eq_u32 vcc, 4, v{vl}
v_lshlrev_b32 v{vl}, 6, v{vl}
v_cndmask_b32 v{vl}, v{vl}, 32, vcc
v_lshrrev_b32 v{n2}, 8, v{n1}
v_lshl_add_u32 v{vl}, v{n2}, 3, v{vl}
v_and_b32 v{n2}, 7, v{n1}
v_add_u32 v{vl}, v{vl}, v{n2}
v_mov_b32 v{n2}, 256
v_cmp_eq_u32 vcc, 0x400, v{n1}
v_cndmask_b32 v{vl}, v{vl}, v{n2}, vcc
v_lshlrev_b32 v{vl}, 7, v{vl}""")
            ld.append(f'buffer_load_dwordx2 {vr(old,2)}, v{vt2}, s[4:7], s38 offen {SC}'); ck += [old, old+1]
        gather(k, f'{name}_gs{layer}', '\n'.join(ld), ck_sent(vt, ck), 1, 's[54:55]')
        k(f"""s_mul_i32 s26, s22, {28*128}
s_add_u32 s26, s26, {hex(H1 if layer == 1 else H2)}
v_mul_f32 v{n1}, s27, v{st+2}
v_exp_f32 v{n1}, v{n1}
v_and_b32 v{old+3}, 0xffff0000, v{old+1}
v_lshlrev_b32 v{old+2}, 16, v{old+1}
v_add_f32 v{n1}, 1.0, v{n1}
v_and_b32 v{old+1}, 0xffff0000, v{old}
v_lshlrev_b32 v{old}, 16, v{old}
v_rcp_f32 v{n1}, v{n1}""")
        if layer == 2:
            k(f's_mov_b32 s36, {hex(KEY2 + 64)}')
            gather(k, f'{name}_gd', f'buffer_load_dword v{fg}, v{vl}, s[4:7], s36 offen {SC}', ck_tag(0, [fg]), 1, 's[54:55]')
        ld = [f'buffer_load_dwordx4 {vr(Af+4*kap,4)}, v{vw}, s[4:7], s26 offen offset:{256*kap} {SC}' for kap in range(14)]
        gather(k, f'{name}_gh{layer}', '\n'.join(ld), ck_sent(vt, range(Af, Af+56, 2)))
        k.stamp(5 + 6*(layer-1))
        for kap in range(14):
            d = vr(D+4*(kap&1), 4)
            k(f'v_mfma_f32_16x16x32_bf16 {d}, {vr(Fr+4*kap,4)}, {vr(Af+4*kap,4)}, {d if kap > 1 else 0}')
        k(f's_lshl_b32 s36, s23, 2\ns_add_u32 s36, s36, {hex(UPD)}\ns_cmp_lg_u32 s22, 0')
        for r in range(4): k(f'v_add_f32 v{D+r}, v{D+r}, v{D+4+r}')
        k(f"""s_mov_b64 exec, s[54:55]
ds_write_b128 v{vlw}, {vr(D,4)} offset:{RED+128}
s_waitcnt lgkmcnt(0)
s_barrier
s_cbranch_scc1 {name}_cn{layer}""")
        for i in range(1, 4): k(f'ds_read_b128 {vr(R_+4*i,4)}, v{vtr} offset:{RED+128+128*i}')
        for w in range(1, 4):
            k(f's_waitcnt lgkmcnt({3-w})')
            for r in range(4): k(f'v_add_f32 v{D+r}, v{D+r}, v{R_+4*w+r}')
        if layer == 2:
            for r in range(4): k(f'v_fma_f32 v{D+r}, v{D+r}, v{n1}, v{old+r}')
            k(f"""v_cvt_pk_bf16_f32 v{m1}, v{D}, v{D+1}
v_cvt_pk_bf16_f32 v{m2}, v{D+2}, v{D+3}
buffer_store_dwordx2 {vr(m1,2)}, v{vo}, s[8:11], s23 offen""")
        else:
            for r in range(4): k(f'v_mul_f32 v{D+r}, v{D+r}, v{n1}')
            k(f'buffer_store_dwordx4 {vr(D,4)}, v{vtr}, s[4:7], s36 offen {SC}')
        k.lab(f'{name}_cn{layer}')
        k('s_mov_b64 exec, -1')
        k.stamp(6 + 6*(layer-1))
    k.endpgm()

def build(name):
    k = K(name); k.kidx = 0
    k.stamp(0)
    k(f"""s_load_dwordx2 s[32:33], s[0:1], 0
s_load_dwordx2 s[30:31], s[0:1], 96
s_load_dwordx8 s[44:51], s[0:1], 48
s_load_dwordx2 s[58:59], s[0:1], 80
v_lshrrev_b32 v1, 6, v0
s_sub_u32 s3, s2, {NMAIN}
v_readfirstlane_b32 s22, v1
s_cbranch_scc0 L_ffn""")
    main_role(k, 'M')
    k.lab('L_ffn')
    k(f's_cmp_ge_u32 s3, {NFFN}\ns_cbranch_scc1 F_end')
    ffn_role(k, 'F')
    k.lab('F_end'); k('s_endpgm')
    return k

def emit(k, grid, lds, path, aslist):
    hdr = open('cdna_kernels/' + NAME + '.s.ref').read().split('\n')
    out = [l for l in hdr if l.startswith(';') and '@launch' not in l and 'Override launch' not in l and 'grid=ceil' not in l]
    out.append(f'; @launch {"kernel="+k.name+" " if aslist else ""}grid=({grid},1,1) block=(256,1,1) lds={lds}')
    out.append('.amdgcn_target "amdgcn-amd-amdhsa--gfx950"\n.text')
    out.append(f'.globl {k.name}\n.p2align 8\n.type {k.name},@function\n{k.name}:')
    out += fix_hazards(k.L)
    out.append('.section .rodata,"a"')
    nv = (k.maxv + 7) // 8 * 8
    out.append(f""".p2align 6
.amdhsa_kernel {k.name}
  .amdhsa_next_free_vgpr {nv}
  .amdhsa_next_free_sgpr 100
  .amdhsa_accum_offset {nv}
  .amdhsa_group_segment_fixed_size 0
  .amdhsa_kernarg_size 104
  .amdhsa_user_sgpr_count 2
  .amdhsa_user_sgpr_kernarg_segment_ptr 1
  .amdhsa_system_sgpr_workgroup_id_x 1
.end_amdhsa_kernel""")
    open(path, 'w').write('\n'.join(out) + '\n')

if __name__ == '__main__':
    for a in sys.argv[2:]:
        if a == 'stamp': K.STAMP = True
        elif a == 'list': pass
        else:
            kk, vv = a.split('='); OPT[kk] = int(vv)
    K.NST = 17
    k = build(NAME + '_kernel')
    print('vgprs', k.maxv, 'instrs', len(k.L))
    emit(k, NMAIN + NFFN, 57344 + 2304, sys.argv[1], 'list' in sys.argv or K.STAMP)
```

```python
import re
TRANS = ('v_exp_f32','v_log_f32','v_rcp_f32','v_rsq_f32','v_sqrt_f32','v_sin_f32','v_cos_f32','v_rcp_iflag_f32')
def regs_of(tok):
    tok = tok.strip()
    out = set()
    t = tok.lstrip('-')
    m = re.fullmatch(r'abs\((.*)\)', t) or re.fullmatch(r'\|(.*)\|', t)
    if m: t = m.group(1)
    m = re.fullmatch(r'([vsa])(\d+)', t)
    if m: out.add((m.group(1), int(m.group(2)))); return out
    m = re.fullmatch(r'([vsa])\[(\d+):(\d+)\]', t)
    if m:
        for i in range(int(m.group(2)), int(m.group(3))+1): out.add((m.group(1), i))
        return out
    if t in ('vcc','vcc_lo','vcc_hi'): out.add(('vcc',0))
    if t in ('exec','exec_lo','exec_hi'): out.add(('exec',0))
    if t == 'm0': out.add(('m0',0))
    return out

class Ins:
    def __init__(self, text):
        self.text = text
        s = text.split(';')[0].strip()
        self.is_label = s.endswith(':')
        self.is_dir = s.startswith('.') or s == ''
        self.mn = s.split()[0] if s else ''
        rest = s[len(self.mn):].strip()
        ops, depth, cur = [], 0, ''
        for ch in rest:
            if ch in '[(': depth += 1
            if ch in '])': depth -= 1
            if ch == ',' and depth == 0: ops.append(cur); cur = ''
            else: cur += ch
        if cur.strip(): ops.append(cur)
        mods = ''
        if ops:
            last = ops[-1].strip().split(None, 1)
            ops[-1] = last[0]
            mods = last[1] if len(last) > 1 else ''
        self.ops = [o.strip() for o in ops]
        self.mods = mods
        mn = self.mn
        self.valu = mn.startswith('v_') and not mn.startswith('v_mfma')
        self.mfma = mn.startswith('v_mfma')
        self.salu = mn.startswith('s_')
        self.vmem = mn.startswith(('buffer_','global_','flat_'))
        self.ds = mn.startswith('ds_')
        base = re.sub(r'_(e32|e64|dpp|sdwa)$', '', mn)
        self.base = base
        self.trans = base in TRANS
        self.dpp = mn.endswith('_dpp')
        self.perml = mn.startswith('v_permlane')
        self.rdlane = base in ('v_readlane_b32','v_readfirstlane_b32')
        self.opsel = ('sdwa' in mn and 'dst_sel:DWORD' not in mods) or (base in ('v_fma_mixlo_f16','v_fma_mixhi_f16'))
        W, R = set(), set()
        o = [regs_of(x) for x in self.ops]
        if self.valu or self.mfma:
            W |= o[0]
            k = 1
            if base in ('v_add_co_u32','v_sub_co_u32','v_addc_co_u32','v_subb_co_u32','v_div_scale_f32','v_mad_u64_u32'):
                W |= o[1]; k = 2
            for x in o[k:]: R |= x
            if base in ('v_fmac_f32','v_dot2c_f32_bf16','v_writelane_b32','v_fma_mixlo_f16','v_fma_mixhi_f16') or self.dpp: R |= o[0]
            if self.perml: W |= o[1]; R |= o[0]
            if base.startswith('v_cmpx'): W.add(('exec',0))
            if self.mfma:
                self.D, self.A, self.B, self.C = o[0], o[1], o[2], o[3]
                self.passes = 8 if '32x32' in mn else 4
        elif self.vmem:
            if 'store' in mn or ('atomic' in mn):
                for x in o: R |= x
                if 'atomic' in mn and 'sc0' in mods: W |= o[0]
            elif ' lds' in (' '+mods) or '_lds_' in mn:
                for x in o: R |= x
                R.add(('m0',0))
            elif o:
                W |= o[0]
                for x in o[1:]: R |= x
            self.wide_store = ('store' in mn and ('x3' in mn or 'x4' in mn))
            if self.wide_store:
                self.sdata = o[0] if mn.startswith('buffer') else o[1]
        elif self.ds:
            if 'write' in mn:
                for x in o: R |= x
            else:
                W |= o[0]
                for x in o[1:]: R |= x
        elif self.salu and o:
            if mn.startswith(('s_cmp','s_cbranch','s_branch','s_waitcnt','s_nop','s_barrier','s_sleep','s_setprio','s_endpgm','s_bitcmp')):
                for x in o: R |= x
            else:
                W |= o[0]
                for x in o[1:]: R |= x
                if 'saveexec' in mn: W.add(('exec',0))
        self.W, self.R = W, R
    def states(self):
        if self.is_label or self.is_dir: return 0
        if self.mn == 's_nop': return int(self.ops[0], 0) + 1
        return 1

def need(p, c):
    n = 0
    pv = {r for r in p.W if r[0] in 'va' and len(r[0]) == 1}
    ps = {r for r in p.W if r[0] in ('s','vcc')}
    if p.valu:
        if c.mfma and pv & c.R: n = max(n, 2)
        if c.dpp and pv & c.R: n = max(n, 2)
        if c.perml and pv & (c.R | c.W): n = max(n, 2)
        if c.rdlane and pv & c.R: n = max(n, 1)
        if p.trans and (c.valu or c.mfma) and not c.trans and pv & c.R: n = max(n, 1)
        if p.trans and c.trans and pv & c.R: n = max(n, 1)
        if p.opsel and c.valu and pv & (c.R | c.W): n = max(n, 1)
        if ps:
            if (c.valu or c.mfma) and ps & c.R: n = max(n, 4 if c.base in ('v_readlane_b32','v_writelane_b32','v_div_fmas_f32') else 2)
            if c.vmem and ps & c.R: n = max(n, 5)
            if c.salu and ps & c.R: n = max(n, 1)
        if ('exec',0) in p.W:
            if c.dpp: n = max(n, 5)
            if c.rdlane or c.perml or c.mfma or c.base == 'v_writelane_b32': n = max(n, 4)
            if c.valu and ('exec',0) in c.R: n = max(n, 2)
    if p.mfma:
        big = {4: 8, 8: 12}[p.passes]
        if c.mfma:
            if p.D & (c.A | c.B): n = max(n, big)
            if p.D & c.C:
                if not (p.D == c.C and p.passes == c.passes): n = max(n, big - 2)
            elif p.D & c.D: n = max(n, big)
        elif (c.valu or c.vmem or c.ds) and p.D & (c.R | c.W): n = max(n, big)
        if c.valu and p.C & c.W: n = max(n, {4: 3, 8: 7}[p.passes])
    if p.vmem and getattr(p, 'wide_store', False) and p.sdata & c.W:
        n = max(n, 2)
    if p.salu and ('m0',0) in p.W and ('m0',0) in c.R and (c.vmem or c.ds): n = max(n, 1)
    return n

def fix_hazards(lines):
    out = []
    for t in lines:
        c = Ins(t)
        if not (c.is_label or c.is_dir):
            dist, req = 0, 0
            for p in reversed(out):
                if p.is_dir: continue
                if p.mn in ('s_endpgm', 's_branch'): break
                if dist >= 12: break
                if not p.is_label:
                    req = max(req, need(p, c) - dist)
                dist += p.states()
            if req > 0: out.append(Ins(f'  s_nop {req-1}'))
        out.append(c)
    return [i.text for i in out]

class K:
    def __init__(self, name):
        self.name = name; self.L = []; self.nv = 1; self.names = {}
    def __call__(self, s):
        for ln in s.strip('\n').split('\n'):
            if ln.strip(): self.L.append('  ' + ln.strip())
    def lab(self, l): self.L.append(f'{l}:')
    STAMP = False
    kidx = 0
    def stamp(self, i):
        if K.STAMP: self(f's_memrealtime s[{64+2*i}:{65+2*i}]')
    NST = 8
    DBG = False
    def endpgm(self, wait=True):
        if K.STAMP and K.NST == 8:
            if wait: self('s_waitcnt vmcnt(0)')
            self.stamp(7)
            self('s_mov_b64 exec, 1\ns_lshl_b32 s62, s2, 7\ns_lshl_b32 s63, s22, 5\ns_add_u32 s62, s62, s63')
            self(f's_add_u32 s62, s62, {hex(0x1000000 + self.kidx*0x10000)}\nv_mov_b32 v1, 0\ns_waitcnt lgkmcnt(0)')
            for i in range(8): self(f'v_mov_b32 v{4+i}, s{64+2*i}')
            self('buffer_store_dwordx4 v[4:7], v1, s[4:7], s62 offen\nbuffer_store_dwordx4 v[8:11], v1, s[4:7], s62 offen offset:16')
        elif K.STAMP and K.DBG:
            sel = getattr(self, 'dbgsel', None)
            if sel:
                self('s_waitcnt vmcnt(0)\ns_memrealtime s[100:101]\ns_load_dwordx2 s[62:63], s[0:1], 88\ns_mov_b64 exec, -1\nv_mov_b32 v2, 0\ns_waitcnt lgkmcnt(0)\ns_not_b32 s64, s64')
                for slot, st in sel: self(f'v_writelane_b32 v2, s{64+2*st if st < 16 else 100}, {slot}')
                self('v_and_b32 v1, 15, v0\nv_lshlrev_b32 v1, 2, v1\ns_mov_b64 exec, 0xffff\nglobal_atomic_umax v1, v2, s[62:63] sc1')
        elif K.STAMP:
            if wait: self('s_waitcnt vmcnt(0)')
            self('s_memrealtime s[100:101]')
            self('s_mov_b64 exec, 1\ns_lshl_b32 s62, s2, 9\ns_lshl_b32 s63, s22, 7\ns_add_u32 s62, s62, s63')
            self(f's_add_u32 s62, s62, {hex(0x1000000)}\nv_mov_b32 v1, 0\ns_waitcnt lgkmcnt(0)')
            for i in range(17): self(f'v_mov_b32 v{4+i}, s{64+2*i if i < 16 else 100}')
            for i in range(5): self(f'buffer_store_dwordx4 v[{4+4*i}:{7+4*i}], v1, s[4:7], s62 offen offset:{16*i}')
        self('s_endpgm')
    def v(self, n=1, al=None):
        if al is None: al = 1 if n == 1 else 2
        b = (self.nv + al - 1) // al * al
        self.nv = b + n
        self.maxv = max(getattr(self, 'maxv', 0), self.nv)
        return b
def vr(b, n): return f'v[{b}:{b+n-1}]' if n > 1 else f'v{b}'
def sr(b, n): return f's[{b}:{b+n-1}]' if n > 1 else f's{b}'
```

```python
import sys, struct
from asmlib import *
from gen import fl, srd, red_half, merge, unpack_direct, unpack_mirror, DPP, NAME, PITCH
Q1, Q2, U1, U2 = 0x000000, 0x210000, 0x320000, 0x430000
X2, XP = 0x540000, 1152
KEY1, KEY2 = 0x780000, 0x790000
H1, H2, UPD = 0x7B0000, 0x7B4000, 0x7B8000
HU, EPOCH = 0x7C0000, 0x7C1000
WS_BYTES = 0x10000000
SC = 'sc0 sc1'
NMAIN, NFFN = 257, 248
OPT = dict(sleep=0, fsleep=0, gsleep=4, nf=2, pref=1, drain=1, pre=0, cpf=1, fdel=8, odel=40, hpre=0, tp=400, tc=400, nfc=2)
L_U, L_Q, L_KEY, L_UD, L_X, L_KT = 0, 4096, 8192, 8448, 12544, 21760
XOR4 = ('quad_perm:[1,0,3,2]', 'quad_perm:[2,3,0,1]', 'row_half_mirror', 'row_mirror')

def gather(k, lab, loads, check, sleep=0, restore='-1'):
    k('s_mov_b32 s37, 0x10000')
    if sleep:
        k(f's_branch {lab}')
        k.lab(f'{lab}s'); k(f's_sleep {sleep}')
    k.lab(lab)
    k(loads); k(f's_sub_u32 s37, s37, 1\ns_waitcnt vmcnt(0)'); k(check)
    k(f's_cbranch_scc1 {lab}x\ns_mov_b64 exec, vcc\ns_cbranch_vccnz {lab}{"s" if sleep else ""}')
    k.lab(f'{lab}x')
    k(f's_mov_b64 exec, {restore}')
def ck_tag(t, regs):
    if len(regs) == 1: return f'v_cmp_ne_u32 vcc, s40, v{regs[0]}'
    o = [f'v_bitop3_b32 v{t}, v{regs[0]}, v{regs[1]}, s40 bitop3:0x7e']
    o += [f'v_bitop3_b32 v{t}, v{t}, v{r}, s40 bitop3:0xf6' for r in regs[2:]]
    return '\n'.join(o + [f'v_cmp_ne_u32 vcc, 0, v{t}'])
def ck_sent(t, regs, val='-1'):
    regs = list(regs); o = []
    if len(regs) % 2 == 0: o.append(f'v_max_u32 v{t}, v{regs[0]}, v{regs[1]}'); regs = regs[2:]
    else: o.append(f'v_max3_u32 v{t}, v{regs[0]}, v{regs[1]}, v{regs[2]}'); regs = regs[3:]
    for i in range(0, len(regs), 2): o.append(f'v_max3_u32 v{t}, v{t}, v{regs[i]}, v{regs[i+1]}')
    return '\n'.join(o + [f'v_cmp_eq_u32 vcc, {val}, v{t}'])
def poll_keys(k, name, layer, vky, fg, fx, t, sleep):
    KEY = KEY1 if layer == 1 else KEY2
    k(f's_mov_b32 s36, {hex(KEY)}\ns_mov_b32 s38, {hex(KEY + 256*128)}')
    ld = f"""buffer_load_dwordx3 {vr(fg,3)}, v{vky}, s[4:7], s36 offen {SC}
buffer_load_dwordx2 {vr(fx,2)}, off, s[4:7], s38 {SC}"""
    gather(k, f'{name}_pk{layer}', ld, ck_tag(t, [fg, fx]), sleep)
def sel_decode(k, layer, rows):
    k(f"""s_and_b32 s42, s56, 0x73f
s_and_b32 s43, s57, 0x73f
s_cmp_eq_u32 s42, s43
s_cselect_b32 s36, 64, 0
s_add_u32 s43, s43, s36
s_mul_i32 s42, s42, {XP}
s_mul_i32 s43, s43, {XP}
s_add_u32 s42, s42, {hex(X2 + (layer-1)*128*XP)}
s_add_u32 s43, s43, {hex(X2 + (layer-1)*128*XP)}""")
    if rows:
        for r in (56, 57):
            k(f's_and_b32 s36, s{r}, 2047\ns_sub_u32 s37, 2048, s36\ns_bitcmp1_b32 s{r}, 11\ns_cselect_b32 s{r}, s37, s36')

def wait_until(k, lab, T):
    k(f's_mov_b32 s37, 64\n{lab}:\ns_memrealtime s[98:99]\ns_sub_u32 s37, s37, 1\ns_cbranch_scc1 {lab}x\ns_waitcnt lgkmcnt(0)\ns_sub_u32 s98, s98, s96\ns_cmp_ge_u32 s98, {T}\ns_cbranch_scc1 {lab}x\ns_sleep 2\ns_branch {lab}\n{lab}x:')
def top2_merge(k, m1, m2, n1, n2):
    k(f'v_max_u32 v{m2}, v{m2}, v{n2}\nv_med3_u32 v{m2}, v{m1}, v{m2}, v{n1}\nv_max_u32 v{m1}, v{m1}, v{n1}')
def top2_row(k, m1, m2, n1, n2):
    for m in XOR4:
        k(f'v_mov_b32_dpp v{n1}, v{m1} {m} {DPP}\nv_mov_b32_dpp v{n2}, v{m2} {m} {DPP}')
        top2_merge(k, m1, m2, n1, n2)
def top2_wave(k, m1, m2, n1, n2):
    top2_row(k, m1, m2, n1, n2)
    for sw in ('v_permlane16_swap_b32', 'v_permlane32_swap_b32'):
        k(f'v_mov_b32 v{n1}, v{m1}\nv_mov_b32 v{n2}, v{m2}\n{sw} v{m1}, v{n1}\n{sw} v{m2}, v{n2}')
        top2_merge(k, m1, m2, n1, n2)

def twiddle(k, re, im, c_, s_, t0, t1, dst):
    k(f'''v_mul_f32 v{t0}, v{re}, v{c_}
v_mul_f32 v{t1}, v{im}, v{c_}
v_fmac_f32 v{t0}, v{im}, v{s_}
v_fma_f32 v{t1}, -v{re}, v{s_}, v{t1}
v_cvt_pk_f16_f32 v{dst}, v{t0}, v{t1}''')

def main_role(k, name):
    k.nv = 1
    V = k.v
    vl = V(); vn = V(); vg = V(); vch = V(); vod = V(); vom = V(); vom0 = V(); vp = V(); vt = V(); vt2 = V()
    vfa = V(); bpf = V(); vqw = V(); bpm = V(); vra = V(); vrb = V(); vsg = V(); sw = V()
    va = V(); vst = V(); xa = V(6); vq1 = V(); vq2 = V(); vqr = V(); vqr2 = V()
    fg = V(4, 4); fx = V(2, 2)
    a = V(8); b = V(8); wa = V(8); wb = V(8)
    RB1 = V(16, 4); RTW = V(16); RB2 = V(4, 4)
    CB1 = V(32, 4); CTW = V(16); CA2 = V(16, 4)
    T0 = V(0, 4)
    xd = V(4, 4); xm = V(4, 4); wd = V(4, 4); wm = V(4, 4); cl = V(4, 4); xm0 = V(); wm0 = V()
    k(f'''s_and_b32 s20, s2, 7
s_lshr_b32 s21, s2, 6
s_lshl_b32 s21, s21, 3
s_add_u32 s20, s20, s21
s_bfe_u32 s21, s2, 0x30003
s_cmp_eq_u32 s20, 0
s_cselect_b32 s26, s21, 0
s_cmp_ge_u32 s26, 4
s_cselect_b32 s20, 32, s20
s_cselect_b32 s26, 4, 0
s_sub_u32 s21, s21, s26
s_cmp_eq_u32 s2, 256
s_cselect_b32 s20, 0, s20
s_cselect_b32 s21, 4, s21
s_cselect_b32 s60, s22, 0
s_lshl_b32 s23, s21, 2
s_add_u32 s23, s23, s22
s_lshl_b32 s23, s23, 6
s_add_u32 s23, s23, s20
s_sub_u32 s24, 2048, s23
s_and_b32 s24, s24, 2047
s_lshl_b32 s28, s23, 10
s_lshl_b32 s29, s24, 10
v_and_b32 v{vn}, 15, v0
v_bfe_u32 v{vg}, v0, 4, 2
v_lshl_add_u32 v{vch}, v{vn}, 2, v{vg}
v_lshlrev_b32 v{vod}, 4, v{vch}
v_sub_u32 v{vom}, 1008, v{vod}
v_sub_u32 v{vom0}, 1024, v{vod}
v_and_b32 v{vom0}, 1023, v{vom0}
s_lshr_b32 s36, s2, 1
s_mul_i32 s36, s36, {PITCH}
s_bitcmp1_b32 s2, 0
s_cselect_b32 s37, 4096, 0
s_add_u32 s36, s36, s37
s_cmp_eq_u32 s2, 256
s_cselect_b32 s36, 8192, s36
s_cselect_b32 s37, {PITCH}, 16
s_add_u32 s36, s36, {hex(U1)}
v_mul_u32_u24 v{vt}, s37, v0
v_mov_b32 v{cl}, -1
v_mov_b32 v{cl+1}, -1
v_mov_b32 v{cl+2}, -1
v_mov_b32 v{cl+3}, -1
s_mov_b32 s6, {hex(WS_BYTES)}
s_mov_b32 s7, 0x20000
s_mov_b32 s10, {hex(2048*1024)}
s_mov_b32 s11, 0x20000
s_waitcnt lgkmcnt(0)''')
    k.stamp(1)
    k('s_mov_b32 s8, s32\ns_mov_b32 s9, s33')
    k(f'''buffer_load_dwordx4 {vr(xd,4)}, v{vod}, s[8:11], s28 offen
buffer_load_dwordx4 {vr(xm,4)}, v{vom}, s[8:11], s29 offen
buffer_load_ushort v{xm0}, v{vom0}, s[8:11], s29 offen
s_mov_b32 s4, s30
s_mov_b32 s5, s31
buffer_store_dwordx4 {vr(cl,4)}, v{vt}, s[4:7], s36 offen {SC}
s_add_u32 s38, s30, {hex(EPOCH)}
s_addc_u32 s39, s31, 0
s_load_dword s40, s[38:39], 0''')
    srd(k, 12, 44, 1024); srd(k, 16, 58, 2048*1024)
    k(f'''buffer_load_dwordx4 {vr(wd,4)}, v{vod}, s[12:15], 0 offen
buffer_load_dwordx4 {vr(wm,4)}, v{vom}, s[12:15], 0 offen
buffer_load_ushort v{wm0}, v{vom0}, s[12:15], 0 offen
v_and_b32 v{vl}, 63, v0
v_lshlrev_b32 v{vfa}, 4, v0
s_add_u32 s25, s20, 63
s_and_b32 s25, s25, 63
s_lshl_b32 s25, s25, 7
s_lshl_b32 s26, s21, 4
s_add_u32 s25, s25, s26
s_sub_u32 s27, 63, s20
s_lshl_b32 s27, s27, 7
s_sub_u32 s27, s27, s26
s_add_u32 s27, s27, 112
s_cmp_eq_u32 s20, 0
s_cselect_b32 s26, 4, 0
s_add_u32 s27, s27, s26
s_cmp_ge_u32 s22, 2
s_cselect_b32 s25, s27, s25
v_and_b32 v{vp}, 127, v0
v_mul_u32_u24 v{vp}, {PITCH}, v{vp}
s_lshl_b32 s61, s2, 12
s_add_u32 s61, s61, {hex(Q2)}
s_bfe_u32 s37, s2, 0x40004
s_and_b32 s36, s2, 7
s_lshl_b32 s36, s36, 4
s_add_u32 s3, s37, s36
s_mul_i32 s41, s3, {PITCH}
s_bfe_u32 s26, s2, 0x10003
s_lshl_b32 s26, s26, 5
s_lshr_b32 s37, s22, 1
s_lshl_b32 s37, s37, 4
s_add_u32 s26, s26, s37
s_and_b32 s27, s22, 1
s_lshl_b32 s38, s27, 6
s_add_u32 s36, s26, 63
v_add_u32 v{vt}, s36, v{vn}
v_and_b32 v{vt}, 63, v{vt}
v_lshlrev_b32 v{vst}, 7, v{vt}
v_lshl_add_u32 v{vst}, v{vg}, 4, v{vst}
v_add_u32 v{vst}, s38, v{vst}
s_cmp_lg_u32 s2, 256
s_cbranch_scc1 {name}_clr3
buffer_store_dwordx4 {vr(cl,4)}, v{vfa}, s[4:7], s61 offen {SC}
{name}_clr3:''')
    def lane_of(dst, chreg):
        k(f'v_and_b32 v{vt2}, 3, v{chreg}\nv_and_b32 v{dst}, 60, v{chreg}\nv_lshl_add_u32 v{dst}, v{vt2}, 6, v{dst}')
    k(f'''v_cmp_lt_u32 s[44:45], 31, v{vch}
v_add_u32 v{vt}, 1, v{vch}
v_cndmask_b32 v{vt}, v{vch}, v{vt}, s[44:45]
v_and_b32 v{vt}, 63, v{vt}
v_cmp_eq_u32 vcc, 0, v{vt}
v_cndmask_b32 v{vt}, v{vt}, 32, vcc''')
    lane_of(bpf, vt)
    k(f'''v_sub_u32 v{vt}, 95, v{vch}
v_cndmask_b32 v{vt}, v{vch}, v{vt}, s[44:45]
s_lshl_b32 s36, s22, 2
s_sub_u32 s37, {L_Q+12}, s36
s_add_u32 s36, s36, {L_Q}
v_mov_b32 v{vt2}, s36
v_mov_b32 v{vqw}, s37
v_cndmask_b32 v{vqw}, v{vt2}, v{vqw}, s[44:45]
v_lshl_add_u32 v{vqw}, v{vt}, 6, v{vqw}
v_add_u32 v{vt}, 1, v{vch}
v_and_b32 v{vt}, 63, v{vt}''')
    lane_of(bpm, vt)
    k(f'''v_and_b32 v{vt}, 2, v0
v_lshlrev_b32 v{vt}, 10, v{vt}
v_and_b32 v{vt2}, 1, v0
v_lshl_add_u32 v{vt}, v{vt2}, 3, v{vt}
v_and_b32 v{vt2}, 252, v0
v_lshl_add_u32 v{vqr}, v{vt2}, 2, v{vt}''')

    def stats_and_out(mode):
        k.nv = T0 + 24
        sa = V(); qa = V(); sb = V(); qb = V(); ra = V(); rb = V()
        for (S_, Q_, base, R_, W_) in ((sa, qa, a, ra, wa), (sb, qb, b, rb, wb)):
            k(f'v_add_f32 v{S_}, v{base}, v{base+1}\nv_mul_f32 v{Q_}, v{base}, v{base}')
            if mode != 1: k(f'v_mul_f32 v{R_}, v{base}, v{W_}')
            for i in range(1, 8):
                if i > 1: k(f'v_add_f32 v{S_}, v{S_}, v{base+i}')
                k(f'v_fmac_f32 v{Q_}, v{base+i}, v{base+i}')
                if mode != 1: k(f'v_fmac_f32 v{R_}, v{base+i}, v{W_+i}')
        merge(k, sa, sb); merge(k, qa, qb)
        if mode != 1: merge(k, ra, rb)
        red_half(k, [sa, qa] + ([ra] if mode != 1 else []))
        k(f'''v_mul_f32 v{sa}, {fl(1/512)}, v{sa}
v_mul_f32 v{qa}, {fl(1/512)}, v{qa}
v_fma_f32 v{qa}, -v{sa}, v{sa}, v{qa}
v_max_f32 v{qa}, 0, v{qa}
v_add_f32 v{qb}, {fl(1e-5)}, v{qa}
v_rsq_f32 v{qb}, v{qb}''')
        if mode == 1: zc = qb
        else:
            st = V(4, 4); one = V(); nb = V(); zc = V()
            k(f'''v_add_f32 v{one}, 1.0, v{qb}
v_fma_f32 v{ra}, -v{sa}, v{sw}, v{ra}
v_mul_f32 v{nb}, v{sa}, v{qb}
v_mul_f32 v{qa}, v{qa}, v{one}
v_rcp_f32 v{st+1}, v{one}
v_mul_f32 v{qa}, v{qa}, v{one}
v_mul_f32 v{st+2}, v{ra}, v{qb}
v_add_f32 v{qa}, {fl(1e-5)}, v{qa}
v_mov_b32 v{st}, v{sa}
v_rsq_f32 v{st+3}, v{qa}
v_mul_f32 v{st+1}, v{st+1}, v{qb}
v_readlane_b32 s48, v{one}, 16
v_readlane_b32 s49, v{one}, 48
v_readlane_b32 s50, v{nb}, 16
v_readlane_b32 s51, v{nb}, 48
v_mul_f32 v{zc}, v{st+3}, v{one}''')
        pk = V(4, 4)
        if mode != 5:
            k(f'''v_mul_f32 v{sb}, v{sa}, v{zc}
v_readlane_b32 s52, v{zc}, 16
v_readlane_b32 s53, v{zc}, 48
v_readlane_b32 s54, v{sb}, 16
v_readlane_b32 s55, v{sb}, 48''')
            fv = V(8); t0 = V(); t1 = V()
            k(f'v_mov_b32 v{vt}, s54\nv_add_f32 v{vt}, s55, v{vt}')
            for i in range(8):
                k(f'v_fma_f32 v{fv+i}, v{a+i}, s52, -v{vt}\nv_fmac_f32 v{fv+i}, s53, v{b+i}')
                if i == 0: k(f'ds_bpermute_b32 v{fv}, v{bpf}, v{fv}')
            def sel(dst, i):
                if i == 4: return fv + 4
                k(f'v_cndmask_b32 v{dst}, v{fv+i}, v{fv+8-i}, s[44:45]'); return dst
            for i in (1, 2, 3):
                lo = sel(t0, 2*i); hi = sel(t1, 2*i+1)
                k(f'v_cvt_pk_f16_f32 v{pk+i}, v{lo}, v{hi}')
            hi = sel(t1, 1)
            k(f'''ds_write2_b32 v{vqw}, v{pk+2}, v{pk+3} offset0:8 offset1:12
s_waitcnt lgkmcnt(1)
v_cvt_pk_f16_f32 v{pk}, v{fv}, v{hi}
ds_write2_b32 v{vqw}, v{pk}, v{pk+1} offset0:0 offset1:4''')
        if mode != 1:
            k(f'''v_and_b32 v{vt}, 32, v0
v_ashrrev_i32 v{one}, 31, v{st+2}
v_lshl_add_u32 v{vt}, v{vt}, 6, s23
v_or_b32 v{one}, 0x80000000, v{one}
v_lshrrev_b32 v{vt2}, 3, v0
v_xor_b32 v{one}, v{one}, v{st+2}
v_and_b32 v{vt2}, 60, v{vt2}
v_and_b32 v{one}, 0xfffff000, v{one}
s_cmp_eq_u32 s23, s24
s_cselect_b32 s36, 0, 0x10000
v_or_b32 v{one}, v{one}, v{vt}
s_cmp_lg_u32 s60, 0
s_cbranch_scc1 {name}_nokey{mode}
s_mov_b32 exec_lo, 0x10000
s_mov_b32 exec_hi, s36
ds_write_b32 v{vt2}, v{one} offset:{L_KEY}
s_mov_b64 exec, -1
{name}_nokey{mode}:''')
        if mode == 1:
            p2 = V(4, 4)
            k(f'''s_lshl_b32 s38, s2, 13
s_add_u32 s39, s38, 4096
v_mov_b32 v{p2+2}, s40
v_mov_b32 v{p2+3}, s40
s_waitcnt vmcnt(0) lgkmcnt(0)
v_mov_b32 v{pk+2}, s40
v_mov_b32 v{pk+3}, s40
s_barrier
ds_read_b64 {vr(pk,2)}, v{vqr} offset:{L_Q}
ds_read_b64 {vr(p2,2)}, v{vqr} offset:{L_Q+1024}
s_waitcnt lgkmcnt(1)
buffer_store_dwordx4 {vr(pk,4)}, v{vfa}, s[4:7], s38 offen {SC}
s_waitcnt lgkmcnt(0)
buffer_store_dwordx4 {vr(p2,4)}, v{vfa}, s[4:7], s39 offen {SC}''')
            return
        o1 = V(4, 4); o2 = V(4, 4); b0 = V(); n1 = V(); n2 = V()
        layer = mode // 2
        def resid():
            k(f'v_mov_b32 v{vt}, s50\nv_mov_b32 v{vt2}, s51')
            for i in range(8):
                k(f'v_fma_f32 v{b+i}, v{b+i}, s49, -v{vt2}')
                if i == 0: k(f'ds_bpermute_b32 v{b0}, v{bpm}, v{b}')
            for i in range(8): k(f'v_fma_f32 v{a+i}, v{a+i}, s48, -v{vt}')
            for i in range(4): k(f'v_cvt_pk_bf16_f32 v{o1+i}, v{a+2*i}, v{a+2*i+1}')
            for i in range(1, 4): k(f'v_cvt_pk_bf16_f32 v{o2+i}, v{b+8-2*i}, v{b+7-2*i}')
            k(f's_waitcnt lgkmcnt(0)\nv_cvt_pk_bf16_f32 v{o2}, v{b0}, v{b+7}')
        if mode == 5: resid()
        k(f'''v_lshlrev_b32 v{vt}, 2, v{vn}
v_mov_b32 v{fg+2}, 0
v_mov_b32 v{fg}, s40
s_lshl_b32 s38, s2, 7
s_add_u32 s38, s38, {hex(KEY1 if mode == 3 else KEY2)}
s_waitcnt lgkmcnt(0)
s_barrier
ds_read_b32 v{fg+1}, v{vt} offset:{L_KEY}''')
        if mode == 3:
            k(f'ds_read_b128 {vr(pk,4)}, v{vqr2} offset:{L_Q}\ns_waitcnt lgkmcnt(0)\nbuffer_store_dwordx4 {vr(pk,4)}, v{vfa}, s[4:7], s61 offen {SC}')
        else: k('s_waitcnt lgkmcnt(0)')
        for m in XOR4[:3]:
            k(f'v_mov_b32_dpp v{n1}, v{fg+1} {m} {DPP}\nv_mov_b32_dpp v{n2}, v{fg+2} {m} {DPP}')
            top2_merge(k, fg+1, fg+2, n1, n2)
        k(f'''s_cmp_lg_u32 s22, 0
s_cbranch_scc1 {name}_nopub{mode}
s_mov_b64 exec, 1
buffer_store_dwordx4 {vr(fg,4)}, off, s[4:7], s38 {SC}
s_mov_b64 exec, -1
{name}_nopub{mode}:
v_readfirstlane_b32 s52, v{fg+1}
v_readfirstlane_b32 s53, v{fg+2}''')
        if mode == 3: resid()
        k(f'''s_and_b32 s36, s23, 0x73f
s_mul_i32 s36, s36, {XP}
s_add_u32 s36, s36, {hex(X2 + (layer-1)*128*XP)}''')
        for sl in range(2):
            k(f'''s_and_b32 s37, s{52+sl}, 2047
s_cmp_lg_u32 s37, s23
s_cbranch_scc1 {name}_cd{mode}{sl}
s_bitcmp1_b32 s{52+sl}, 11
s_cbranch_scc1 {name}_cb{mode}{sl}
buffer_store_dwordx4 {vr(o1,4)}, v{vod}, s[4:7], s36 offen {SC}
s_mov_b64 exec, 0x10000
s_branch {name}_cs{mode}{sl}
{name}_cb{mode}{sl}:
buffer_store_dwordx4 {vr(o2,4)}, v{vom}, s[4:7], s36 offen {SC}
s_mov_b32 exec_lo, 0
s_mov_b32 exec_hi, 0x10000
{name}_cs{mode}{sl}:
buffer_store_dwordx4 {vr(st,4)}, off, s[4:7], s36 offset:1024 {SC}
s_mov_b64 exec, -1
{name}_cd{mode}{sl}:''')
            if sl == 0: k(f's_add_u32 s36, s36, {64*XP}')
        if mode == 5:
            if OPT['odel']: k(f's_sleep {OPT["odel"]}')
            k(f'''s_cmp_lg_u32 s60, 0
s_cbranch_scc1 {name}_noout
buffer_store_dwordx4 {vr(o1,4)}, v{vod}, s[16:19], s28 offen {SC}
s_cmp_eq_u32 s23, s24
s_cbranch_scc1 {name}_noout
buffer_store_dwordx4 {vr(o2,4)}, v{vom}, s[16:19], s29 offen {SC}
{name}_noout:''')

    def predelay():
        if OPT['drain']: k('s_waitcnt vmcnt(0)')
        if OPT['pre']: k(f's_sleep {OPT["pre"]}')
    def headsup(layer):
        k(f'''s_lshr_b32 s36, s2, 3
s_or_b32 s36, s36, s22
s_cbranch_scc1 {name}_hu{layer}
s_lshl_b32 s36, s2, 7
s_add_u32 s36, s36, {hex(HU + 1024*(layer-1))}
v_mov_b32 v{vt}, s40
s_mov_b64 exec, 1
buffer_store_dword v{vt}, off, s[4:7], s36 {SC}
s_mov_b64 exec, -1
{name}_hu{layer}:''')

    def col_consts():
        k.nv = T0 + 24
        fk = V(); fgf = V(); c = V(); s = V(); ang = V(); f1 = V(); f2 = V()
        def xaddr(dst, sh, nxt):
            k(f'''v_bfe_u32 v{vt}, v0, {sh}, 3
v_lshrrev_b32 v{vt2}, {sh+6}, v0
v_lshl_add_u32 v{vt}, v{vt2}, 3, v{vt}
v_mul_u32_u24 v{vt}, 144, v{vt}
v_bfe_u32 v{vt2}, v0, {sh+3}, 3
v_lshl_add_u32 v{vt}, v{vt2}, 4, v{vt}
v_and_b32 v{vt2}, {1 << (sh-1)}, v0
v_cmp_ne_u32 s[38:39], 0, v{vt2}
v_sub_u32 v{vt2}, 9328, v{vt}
v_mov_b32 v{c}, {1152*(4 >> sh)}
v_mov_b32 v{s}, {-1152*(4 >> sh)}
v_cndmask_b32 v{dst+1}, v{vt}, v{vt2}, s[38:39]
v_cndmask_b32 v{c}, v{c}, v{s}, s[38:39]
v_lshrrev_b32 v{s}, 6, v{vt}
v_add_u32 v{vt2}, 4544, v{vt}
v_cmp_eq_u32 vcc, 1, v{s}
v_cndmask_b32 v{vt}, v{vt}, v{vt2}, vcc
v_sub_u32 v{vt2}, 9328, v{vt}
v_sub_u32 v{dst}, 116, v{vt}
v_cmp_eq_u32 vcc, 0, v{s}
v_cndmask_b32 v{vt2}, v{vt2}, v{dst}, vcc
v_cndmask_b32 v{dst}, v{vt}, v{vt2}, s[38:39]''')
            if sh == 2: k(f'v_and_b32 v{vt}, 1, v0\nv_lshl_add_u32 v{dst}, v{vt}, 3, v{dst}\nv_lshl_add_u32 v{dst+1}, v{vt}, 3, v{dst+1}')
            k(f'v_add_u32 v{dst}, {L_X}, v{dst}')
            for i in range(nxt): k(f'v_add_u32 v{dst+1+i}, v{dst+max(i,1)}, v{c}')
        xaddr(xa, 2, 3); xaddr(xa+4, 1, 1)
        k(f'''v_lshrrev_b32 v{vt}, 2, v0
v_and_b32 v{vt2}, 3, v0
v_lshlrev_b32 v{vt}, 13, v{vt}
v_lshl_add_u32 v{vq1}, v{vt2}, 4, v{vt}
v_lshrrev_b32 v{vt}, 1, v0
v_and_b32 v{vt2}, 1, v0
v_lshlrev_b32 v{vqr2}, 4, v{vt}
v_lshl_add_u32 v{vqr2}, v{vt2}, 11, v{vqr2}
v_lshlrev_b32 v{vt}, 12, v{vt}
v_lshl_add_u32 v{vq2}, v{vt2}, 4, v{vt}
v_mul_u32_u24 v{va}, 144, v{vn}
v_lshl_add_u32 v{va}, v{vg}, 5, v{va}
v_add_u32 v{vt}, s26, v{vn}
v_cvt_f32_u32 v{fk}, v{vt}
v_cvt_f32_u32 v{fgf}, v{vg}
v_mul_f32 v{f1}, {fl(1/64)}, v{fk}
v_add_f32 v{f2}, v{f1}, v{f1}
v_mul_f32 v{vt2}, {fl(16.0)}, v{fgf}
v_mul_f32 v{vt2}, v{vt2}, v{f1}''')
        for hi in range(2):
            k(f'v_add_f32 v{ang}, v{vt2}, v{f1}' if hi else f'v_mov_b32 v{ang}, v{vt2}')
            for half in range(2):
                for r in range(4):
                    if half or r: k(f'v_add_f32 v{ang}, v{ang}, v{f2}')
                    o = CB1 + 16*hi + 8*half
                    k(f'v_cos_f32 v{c}, v{ang}\nv_sin_f32 v{s}, v{ang}\nv_cvt_pk_f16_f32 v{o+r}, v{c}, v{s}\nv_cvt_pk_f16_f32 v{o+4+r}, -v{s}, v{c}')
        k(f'''v_mul_f32 v{f1}, {fl(1/2048)}, v{fk}
v_mul_f32 v{fgf}, 4.0, v{fgf}
s_mov_b32 s38, {fl(0.125)}
s_mov_b32 s39, {fl(13.0)}
v_mul_f32 v{ang}, v{fgf}, v{f1}''')
        for T in range(2):
            for r in range(4):
                if r: k(f'v_add_f32 v{ang}, v{ang}, v{f1}')
                elif T: k(f'v_fmac_f32 v{ang}, s39, v{f1}')
                k(f'v_cos_f32 v{c}, v{ang}\nv_sin_f32 v{s}, v{ang}\nv_mul_f32 v{CTW+8*T+2*r}, s38, v{c}\nv_mul_f32 v{CTW+8*T+2*r+1}, s38, v{s}')
        k(f'''v_lshl_add_u32 v{vt}, s27, 4, v{vn}
v_cvt_f32_u32 v{fk}, v{vt}
v_mul_f32 v{f1}, {fl(1/32)}, v{fk}
v_mul_f32 v{ang}, v{fgf}, v{f1}''')
        for T in range(2):
            for r in range(4):
                if r: k(f'v_add_f32 v{ang}, v{ang}, v{f1}')
                elif T: k(f'v_fmac_f32 v{ang}, s39, v{f1}')
                o = CA2 + 4*T
                k(f'v_cos_f32 v{c}, v{ang}\nv_sin_f32 v{s}, v{ang}\nv_cvt_pk_f16_f32 v{o+r}, v{c}, v{s}\nv_cvt_pk_f16_f32 v{o+8+r}, -v{s}, v{c}')

    def col_phase(tag, Qo, Uo):
        k.nv = T0
        X = V(32, 4); D1 = V(16, 4); Bd = V(8, 4); D2 = V(8, 4)
        G = X
        if Qo == Q2:
            k(f'''s_and_b32 s36, s20, 31
s_cbranch_scc1 {name}_nospec
s_xor_b32 s36, s20, 32
s_lshl_b32 s36, s36, 7
s_add_u32 s36, s36, {hex(U1)}''')
            gather(k, f'{name}_gsp', f'buffer_load_dword v{G}, v{vp}, s[4:7], s36 offen {SC}', f'v_cmp_eq_u32 vcc, -1, v{G}')
            k(f's_barrier\n{name}_nospec:')
        predelay()
        if Qo == Q1:
            k(f's_lshl_b32 s48, s3, 6')
            for i in range(1, 5): k(f's_add_u32 s{48+i}, s48, {hex(64*8192*i)}')
            ld = [f'buffer_load_dwordx3 {vr(G+4*i,3)}, v{vq1}, s[4:7], s{48+i} offen {SC}' for i in range(4)]
            ld.append(f'buffer_load_dwordx3 {vr(G+16,3)}, off, s[4:7], s52 {SC}')
            gather(k, f'{name}_gq1', '\n'.join(ld), ck_tag(vt, [G+4*i+2 for i in range(5)]), OPT['sleep'])
            k.stamp(tag)
            k(f'ds_write2_b32 v{xa}, v{G}, v{G+1} offset0:0 offset1:1')
            for i in range(1, 4): k(f'ds_write_b64 v{xa+i}, {vr(G+4*i,2)} offset:{L_X}')
        else:
            k(f's_lshl_b32 s48, s3, 5\ns_add_u32 s48, s48, {hex(Q2)}')
            for i in range(1, 3): k(f's_add_u32 s{48+i}, s48, {hex(128*4096*i)}')
            ld = [f'buffer_load_dwordx4 {vr(G+4*i,4)}, v{vq2}, s[4:7], s{48+i} offen {SC}' for i in range(2)]
            ld.append(f'buffer_load_dword v{G+16}, off, s[4:7], s50 {SC}')
            gather(k, f'{name}_gq2', '\n'.join(ld), ck_sent(vt, [G+16] + list(range(G, G+8))), OPT['sleep'])
            k.stamp(tag)
            k(f'''ds_write2_b32 v{xa+4}, v{G}, v{G+1} offset0:0 offset1:1
ds_write2_b32 v{xa+4}, v{G+2}, v{G+3} offset0:2 offset1:3
ds_write_b128 v{xa+5}, {vr(G+4,4)} offset:{L_X}''')
        k(f'''s_mov_b64 exec, 1
ds_write_b32 v{va}, v{G+16} offset:{L_X+64}
s_mov_b64 exec, -1
s_cmp_eq_u32 s2, 256
s_waitcnt lgkmcnt(0)
s_barrier
s_cbranch_scc1 {name}_cx{tag}''')
        for T in range(2):
            for hi in range(2):
                for half in range(2):
                    q = T + 2*hi
                    k(f'ds_read_b128 {vr(X+16*T+8*hi+4*half,4)}, v{va} offset:{L_X + 16*half + 144*16*q}')
        for T in range(2):
            for kap in range(4):
                k(f's_waitcnt lgkmcnt({7-4*T-kap})')
                for z in range(2):
                    d = vr(D1+8*T+4*z, 4)
                    k(f'v_mfma_f32_16x16x32_f16 {d}, {vr(X+16*T+4*kap,4)}, {vr(CB1+8*kap+4*z,4)}, {d if kap else 0}')
        k.stamp(tag + 1)
        for T in range(2):
            for r in range(4):
                twiddle(k, D1+8*T+r, D1+8*T+4+r, CTW+8*T+2*r, CTW+8*T+2*r+1, vt, vt2, Bd+4*T+r)
            for z in range(2):
                d = vr(D2+4*z, 4)
                k(f'v_mfma_f32_16x16x32_f16 {d}, {vr(CA2+8*z+4*T,4)}, {vr(Bd+4*T,4)}, {d if T else 0}')
        k(f's_add_u32 s36, s41, {hex(Uo)}\nv_cmp_eq_u32 vcc, {63*128}, v{vst}')
        for r in range(4): k(f'v_cvt_pk_f16_f32 v{X+r}, v{D2+r}, v{D2+4+r}')
        k(f'buffer_store_dwordx4 {vr(X,4)}, v{vst}, s[4:7], s36 offen {SC}')
        if Qo == Q1:
            for r in range(4): k(f'v_mov_b32 v{X+4+r}, -1')
            k(f's_add_u32 s37, s41, {hex(U2)}\nbuffer_store_dwordx4 {vr(X+4,4)}, v{vst}, s[4:7], s37 offen {SC}')
        k(f'''s_cbranch_vccz {name}_cx{tag}
s_mov_b64 exec, vcc
buffer_store_dword v{X}, v{vst}, s[4:7], s36 offen offset:128 {SC}''')
        if Qo == Q1: k(f'buffer_store_dword v{X+4}, v{vst}, s[4:7], s37 offen offset:128 {SC}')
        k('s_mov_b64 exec, -1')
        k.lab(f'{name}_cx{tag}')

    def row_consts():
        k.nv = T0 + 24
        fe = V(); fgf = V(); c = V(); s = V(); ang = V(); f1 = V()
        k(f'''v_lshrrev_b32 v{vt}, 2, v{vn}
v_and_b32 v{vt2}, 3, v{vn}
v_lshl_add_u32 v{vt}, v{vt}, 3, v{vt2}
v_cvt_f32_u32 v{fe}, v{vt}
v_lshlrev_b32 v{vt}, 2, v{vg}
v_cvt_f32_u32 v{fgf}, v{vt}
s_mov_b32 s36, {fl(1/32)}
s_mov_b32 s37, {fl(0.25)}''')
        for h in range(2):
            if h: k(f'v_add_f32 v{fe}, 4.0, v{fe}')
            k(f'v_mul_f32 v{f1}, s36, v{fe}\nv_mul_f32 v{ang}, v{fgf}, v{f1}')
            for r in range(4):
                if r: k(f'v_add_f32 v{ang}, v{ang}, v{f1}')
                k(f'v_cos_f32 v{c}, v{ang}\nv_sin_f32 v{s}, v{ang}\nv_mul_f32 v{vt}, {fl(1/16)}, v{ang}')
                if r & 1: k(f'v_add_f32 v{vt}, s37, v{vt}')
                k(f'''v_cvt_pk_f16_f32 v{RB1+8*h+r}, v{c}, v{s}
v_cvt_pk_f16_f32 v{RB1+8*h+4+r}, -v{s}, v{c}
v_cos_f32 v{c}, v{vt}
v_sin_f32 v{s}, v{vt}
v_mul_f32 v{RTW+8*h+2*r}, s37, v{c}
v_mul_f32 v{RTW+8*h+2*r+1}, s37, v{s}''')
        k(f'v_cvt_f32_u32 v{f1}, v{vn}\nv_mul_f32 v{f1}, {fl(1/16)}, v{f1}\nv_mul_f32 v{ang}, v{fgf}, v{f1}')
        for r in range(4):
            if r: k(f'v_add_f32 v{ang}, v{ang}, v{f1}')
            k(f'v_cos_f32 v{c}, v{ang}\nv_sin_f32 v{s}, v{ang}\nv_cvt_pk_f16_f32 v{RB2+r}, v{c}, v{s}')
        k(f'''v_lshrrev_b32 v{vt}, 1, v{vn}
v_lshl_add_u32 v{vt}, v{vg}, 5, v{vt}
s_lshl_b32 s36, s22, 2
s_sub_u32 s37, {2048+12}, s36
v_lshl_add_u32 v{vra}, v{vt}, 4, s36
v_lshl_add_u32 v{vrb}, v{vt}, 4, s37
v_and_b32 v{vt}, 1, v0
v_cmp_eq_u32 s[46:47], 1, v{vt}
v_mov_b32 v{vt}, 0xbc003c00
v_mov_b32 v{vt2}, 0x3c00bc00
v_cndmask_b32 v{vsg}, v{vt}, v{vt2}, s[46:47]''')

    def u_load(tag, Uo, ug):
        k(f's_add_u32 s38, s25, {hex(Uo)}')
        predelay()
        gather(k, f'{name}_gu{tag}', f'buffer_load_dwordx4 {vr(ug,4)}, v{vp}, s[4:7], s38 offen {SC}', ck_sent(vt, range(ug, ug+4)), OPT['sleep'])
        k(f'ds_write_b128 v{vfa}, {vr(ug,4)} offset:{L_U}')
    def u_read(u1, u2, extra=''):
        k(f'''s_waitcnt lgkmcnt(0)
s_barrier
{extra}
ds_read2_b32 {vr(u1,2)}, v{vra} offset0:0 offset1:32
ds_read2_b32 {vr(u2,2)}, v{vrb} offset0:0 offset1:32
ds_read2_b32 {vr(u1+2,2)}, v{vra} offset0:64 offset1:96
ds_read2_b32 {vr(u2+2,2)}, v{vrb} offset0:64 offset1:96
s_waitcnt lgkmcnt(0)''')
        for r in range(4): k(f'v_pk_fma_f16 v{u1+r}, v{u2+r}, v{vsg}, v{u1+r}')
    def hid_dft(u1):
        D1 = V(16, 4); A2 = V(8, 4); D2 = V(8, 4)
        for h in range(2):
            for z in range(2):
                k(f'v_mfma_f32_16x16x32_f16 {vr(D1+8*h+4*z,4)}, {vr(u1,4)}, {vr(RB1+8*h+4*z,4)}, 0')
        k(f'v_cvt_f32_f16 v{vt2}, v{u1}\ns_mov_b32 s54, {fl(16.0)}\nv_readlane_b32 s52, v{vt2}, 0')
        for h in range(2):
            for r in range(4):
                twiddle(k, D1+8*h+r, D1+8*h+4+r, RTW+8*h+2*r, RTW+8*h+2*r+1, vt, vt2, A2+4*h+r)
            k(f'v_mfma_f32_16x16x32_f16 {vr(D2+4*h,4)}, {vr(A2+4*h,4)}, {vr(RB2,4)}, 0')
        k(f'''v_readlane_b32 s53, v{D2}, 0
v_mov_b32 v{vt2}, s52
v_mul_f32 v{vt2}, -4.0, v{vt2}
v_mov_b32 v{vt}, s53
v_mul_f32 v{vt}, {fl(-16.0)}, v{vt}
v_add_f32 v{vt2}, v{vt2}, v{vt}''')
        for i in range(8):
            k(f'''v_fma_f32 v{D2+i}, v{D2+i}, s54, v{vt2 if i & 1 else vt}
v_add_f32 v{a+i}, v{a+i}, v{D2+i}
v_add_f32 v{b+i}, v{b+i}, v{D2+i}''')

    k(f'v_mov_b32 v{vt}, 0\nv_lshlrev_b32 v{vt2}, 2, v{vn}\nds_write_b32 v{vt2}, v{vt} offset:{L_KEY}')
    col_consts()
    k('s_waitcnt vmcnt(4) lgkmcnt(0)\ns_mul_i32 s40, s40, 0x9e3779b1\ns_add_u32 s40, s40, 0x7f4a7c15')
    k.stamp(2)
    unpack_direct(k, a, xd); unpack_mirror(k, b, xm, xm0)
    stats_and_out(1)
    k.stamp(3)
    k(f'''s_mul_i32 s36, s23, {XP}
s_add_u32 s36, s36, {hex(X2)}
buffer_store_dwordx4 {vr(cl,4)}, v{vfa}, s[4:7], s61 offen {SC}
buffer_store_dwordx4 {vr(cl,4)}, v{vod}, s[4:7], s36 offen {SC}
s_mov_b64 exec, 1
buffer_store_dwordx4 {vr(cl,4)}, off, s[4:7], s36 offset:1024 {SC}
s_mov_b64 exec, -1
s_sub_u32 s36, s2, 8
s_cmp_ge_u32 s36, 9
s_cbranch_scc1 {name}_clr4
s_lshl_b32 s36, s36, 12
s_add_u32 s36, s36, {hex(H1)}
buffer_store_dwordx4 {vr(cl,4)}, v{vfa}, s[4:7], s36 offen {SC}
{name}_clr4:''')
    unpack_direct(k, wa, wd); unpack_mirror(k, wb, wm, wm0)
    row_consts()
    k(f'v_add_f32 v{sw}, v{wa}, v{wa+1}')
    for i in range(2, 8): k(f'v_add_f32 v{sw}, v{sw}, v{wa+i}')
    k(f'v_mov_b32 v{vt}, v{sw}'); merge(k, sw, vt); red_half(k, [sw])
    k.stamp(7)
    col_phase(4, Q1, U1)
    k.stamp(6)
    k.nv = T0
    u1 = V(4, 4); u2 = V(4, 4)
    u_load('a', U1, u1)
    k.stamp(8)
    headsup(1)
    u_read(u1, u2)
    hid_dft(u1)
    stats_and_out(3)
    k.stamp(9)
    col_phase(10, Q2, U2)
    k.stamp(12)
    k.nv = T0
    u1 = V(4, 4); u2 = V(4, 4)
    OA = V(16, 4); up = V(16, 4); m1 = V(); m2 = V(); n1 = V(); n2 = V(); cs = V(4); vo = V(2); vup = V()
    k(f'v_lshlrev_b32 v{vup}, 7, v0')
    poll_keys(k, name, 1, vup, fg, fx, vt, 1)
    k(f'v_lshrrev_b32 v{vt}, 1, v{vfa}\nv_mov_b32 v{fg}, v{fg+2}\nds_write_b64 v{vt}, {vr(fg,2)} offset:{L_KT}\ns_waitcnt lgkmcnt(0)\ns_barrier')
    k(f'v_lshlrev_b32 v{vt}, 4, v{vl}\nds_read_b128 {vr(OA,4)}, v{vt} offset:{L_KT}\nds_read_b128 {vr(OA+4,4)}, v{vt} offset:{L_KT+1024}\ns_waitcnt lgkmcnt(0)')
    k(f'v_mov_b32 v{m1}, v{OA+1}\nv_mov_b32 v{m2}, v{OA}')
    for i in (2, 4, 6): top2_merge(k, m1, m2, OA+i+1, OA+i)
    top2_wave(k, m1, m2, n1, n2)
    k(f'v_med3_u32 v{m2}, v{m1}, v{m2}, v{fx+1}\nv_max_u32 v{m1}, v{m1}, v{fx+1}')
    k(f'''s_mov_b32 s36, {L_UD}
v_readfirstlane_b32 s56, v{m1}
v_readfirstlane_b32 s57, v{m2}
v_lshlrev_b32 v{vo}, 7, v{vg}
v_lshl_add_u32 v{vo}, v{vn}, 1, v{vo}
v_sub_u32 v{vo+1}, 928, v{vo}
v_cmp_eq_u32 vcc, 0, v{vl}
v_mov_b32 v{n1}, 512
v_add_u32 v{n2}, 96, v{vo+1}
v_cndmask_b32 v{n1}, v{vo}, v{n1}, vcc
v_and_b32 v{n2}, 1023, v{n2}
v_lshrrev_b32 v{vup}, 3, v0
v_lshlrev_b32 v{vup}, 7, v{vup}
v_and_b32 v{vt}, 3, v0
v_lshl_add_u32 v{vup}, v{vt}, 5, v{vup}
v_and_b32 v{vt}, 4, v0
v_add3_u32 v{vup}, v{vup}, v{vt}, s36''')
    sel_decode(k, 1, True)
    ld = []
    for j in range(2):
        ld.append(f'buffer_load_dwordx4 {vr(up+4*j,4)}, off, s[4:7], s{42+j} offset:1024 {SC}')
        ld.append(f'buffer_load_short_d16_hi v{OA+8*j}, v{n1}, s[4:7], s{42+j} offen {SC}')
        for r in range(1, 4): ld.append(f'buffer_load_short_d16_hi v{OA+8*j+r}, v{vo}, s[4:7], s{42+j} offen offset:{32*r} {SC}')
        ld.append(f'buffer_load_short_d16_hi v{OA+8*j+4}, v{n2}, s[4:7], s{42+j} offen {SC}')
        for r in range(1, 4): ld.append(f'buffer_load_short_d16_hi v{OA+8*j+4+r}, v{vo+1}, s[4:7], s{42+j} offen offset:{96-32*r} {SC}')
    for i in range(16): k(f'v_mov_b32 v{OA+i}, 0')
    gather(k, f'{name}_go', '\n'.join(ld), ck_sent(vt, [up, up+4] + list(range(OA, OA+16))).replace('v_cmp_eq_u32 vcc, -1', 'v_cmp_le_u32 vcc, 0xffff0000'), 1)
    k(f'''s_mul_i32 s36, s56, s23
s_mul_i32 s37, s57, s23
s_and_b32 s36, s36, 2047
s_and_b32 s37, s37, 2047
v_cvt_f32_u32 v{cs}, s36
v_cvt_f32_u32 v{cs+2}, s37
v_mul_f32 v{cs}, {fl(1/2048)}, v{cs}
v_mul_f32 v{cs+2}, {fl(1/2048)}, v{cs+2}
v_sin_f32 v{cs+1}, v{cs}
v_sin_f32 v{cs+3}, v{cs+2}
v_cos_f32 v{cs}, v{cs}
v_cos_f32 v{cs+2}, v{cs+2}''')
    for i in range(4): k(f'v_mul_f32 v{cs+i}, {fl(0.25)}, v{cs+i}')
    OB = V(16)
    for j in range(2):
        for i in range(8):
            o = OA + 8*j + i
            k(f'v_sub_f32 v{OB+8*j+i}, v{o}, v{up+4*j}\nv_mul_f32 v{OB+8*j+i}, v{OB+8*j+i}, v{up+4*j+3}')
    for r in (vo, vo+1, n1, n2): k(f'v_lshlrev_b32 v{r}, 2, v{r}')
    k.stamp(13)
    u_load('b', U2, u1)
    k.stamp(14)
    k(f's_mov_b32 s36, {hex(UPD)}')
    gather(k, f'{name}_gup', f'buffer_load_dwordx4 {vr(up,4)}, v{vfa}, s[4:7], s36 offen {SC}', ck_sent(vt, range(up, up+4)), OPT['sleep'])
    k(f'ds_write2_b32 v{vup}, v{up}, v{up+1} offset0:0 offset1:2\nds_write2_b32 v{vup}, v{up+2}, v{up+3} offset0:4 offset1:6')
    headsup(2)
    rd = [f'ds_read_b64 {vr(up,2)}, v{n1} offset:{L_UD}'] + [f'ds_read_b64 {vr(up+2*r,2)}, v{vo} offset:{L_UD+128*r}' for r in range(1, 4)]
    rd += [f'ds_read_b64 {vr(up+8,2)}, v{n2} offset:{L_UD}'] + [f'ds_read_b64 {vr(up+8+2*r,2)}, v{vo+1} offset:{L_UD+384-128*r}' for r in range(1, 4)]
    u_read(u1, u2, '\n'.join(rd))
    k.stamp(15)
    for i in range(8): k(f'v_add_f32 v{OA+i}, v{OA+i}, v{up+2*i}\nv_add_f32 v{OA+8+i}, v{OA+8+i}, v{up+2*i+1}')
    sa, qa, sb, qb = m1, m2, n1, n2
    for (S_, Q_, base) in ((sa, qa, OA), (sb, qb, OA+8)):
        k(f'v_add_f32 v{S_}, v{base}, v{base+1}\nv_mul_f32 v{Q_}, v{base}, v{base}')
        for i in range(1, 8):
            if i > 1: k(f'v_add_f32 v{S_}, v{S_}, v{base+i}')
            k(f'v_fmac_f32 v{Q_}, v{base+i}, v{base+i}')
    merge(k, sa, sb); merge(k, qa, qb)
    red_half(k, [sa, qa])
    k(f'''v_mul_f32 v{sa}, {fl(1/512)}, v{sa}
v_mul_f32 v{qa}, {fl(1/512)}, v{qa}
v_fma_f32 v{qa}, -v{sa}, v{sa}, v{qa}
v_max_f32 v{qa}, 0, v{qa}
v_add_f32 v{qa}, {fl(1e-5)}, v{qa}
v_rsq_f32 v{qa}, v{qa}
v_cmp_eq_u32 vcc, 0, v{vl}
v_mul_f32 v{sa}, v{sa}, v{qa}
v_readlane_b32 s48, v{qa}, 16
v_readlane_b32 s49, v{qa}, 48
v_readlane_b32 s50, v{sa}, 16
v_readlane_b32 s51, v{sa}, 48''')
    for j in range(2):
        A_ = OA + 8*j; B_ = OB + 8*j
        for i in range(8): k(f'v_fma_f32 v{A_+i}, v{A_+i}, s{48+j}, -v{B_+i}')
        k(f'v_cndmask_b32 v{A_+4}, v{A_+4}, v{A_}, vcc\nv_mov_b32 v{vt}, s{50+j}')
        for i in range(4):
            k(f'v_add_f32 v{B_+i}, v{A_+i}, v{A_+4+i}\nv_sub_f32 v{B_+4+i}, v{A_+i}, v{A_+4+i}\nv_fma_f32 v{B_+i}, v{vt}, -2.0, v{B_+i}')
    for i in range(4):
        k(f'''v_mul_f32 v{OB+i}, v{OB+i}, v{cs}
v_mul_f32 v{OB+4+i}, v{OB+4+i}, v{cs+1}
v_fmac_f32 v{OB+i}, v{OB+8+i}, v{cs+2}
v_fmac_f32 v{OB+4+i}, v{OB+12+i}, v{cs+3}
v_cndmask_b32 v{vt}, v{OB+i}, v{OB+4+i}, s[46:47]
v_cndmask_b32 v{vt2}, -v{OB+4+i}, v{OB+i}, s[46:47]
v_cvt_pk_f16_f32 v{vt}, v{vt}, v{vt2}
v_pk_add_f16 v{u1+i}, v{u1+i}, v{vt}''')
    k(f'''s_cmp_eq_u32 s56, s23
s_cselect_b32 s36, 1, 0
s_cmp_eq_u32 s56, s24
s_cselect_b32 s37, 1, 0
s_cmp_eq_u32 s57, s23
s_cselect_b32 s38, 1, 0
s_cmp_eq_u32 s57, s24
s_cselect_b32 s39, 1, 0
s_or_b32 s48, s36, s37
s_or_b32 s49, s38, s39
s_or_b32 s48, s48, s49
s_cbranch_scc0 {name}_noown
v_lshlrev_b32 v{m1}, 2, v{vod}
v_sub_u32 v{m2}, {4096-56}, v{m1}
v_lshlrev_b32 v{n1}, 2, v{vom0}
v_cvt_f32_u32 v{cs}, s36
v_cvt_f32_u32 v{cs+1}, s37
v_cvt_f32_u32 v{cs+2}, s38
v_cvt_f32_u32 v{cs+3}, s39''')
    for i in range(4): k(f'ds_read_b128 {vr(OA+4*i,4)}, v{m1} offset:{L_UD+16*i}')
    k(f'ds_read_b64 {vr(up,2)}, v{n1} offset:{L_UD}')
    for i in range(1, 8): k(f'ds_read_b64 {vr(up+2*i,2)}, v{m2} offset:{L_UD+56-8*i}')
    k('s_waitcnt lgkmcnt(0)')
    for i in range(8):
        for (row, src, o) in ((a, OA, 0), (b, up, 1)):
            k(f'v_fmac_f32 v{row+i}, v{src+2*i}, v{cs+o}\nv_fmac_f32 v{row+i}, v{src+2*i+1}, v{cs+2+o}')
    k.lab(f'{name}_noown')
    k.nv = T0 + 8
    hid_dft(u1)
    stats_and_out(5)
    k(f'''s_or_b32 s36, s2, s22
s_cbranch_scc1 {name}_noep
v_mov_b32 v{vt}, s40
v_mov_b32 v{vt2}, 0
s_mov_b32 s36, {hex(EPOCH)}
buffer_store_dword v{vt}, v{vt2}, s[4:7], s36 offen {SC}''')
    k.lab(f'{name}_noep')
    k(f'''s_cmp_lg_u32 s22, 0
s_waitcnt vmcnt(0)
s_barrier
s_cbranch_scc1 {name}_fin
s_mov_b64 exec, 1
buffer_store_dword v{fg}, off, s[4:7], s38 offset:64 {SC}
{name}_fin:''')
    k.endpgm()


def ffn_role(k, name):
    k.nv = 1
    V = k.v
    vl = V(); vn = V(); vg = V(); vt = V(); vt2 = V(); vw = V(); vtr = V(); vlw = V(); vky = V(); vo = V(); vro = V()
    fg = V(4, 4); fx = V(2, 2); m1 = V(2, 2); m2 = m1 + 1; n1 = V(); n2 = V(); old = V(4, 2)
    st = V(4, 4); Fr = V(56, 4); Wt = V(56, 4); Af = Wt; D = V(8, 4); R_ = V(32, 4); CS = V(8, 4)
    RED = 57344
    NF = OPT['nf']
    k(f"""v_and_b32 v{vl}, 63, v0
v_and_b32 v{vn}, 15, v0
v_bfe_u32 v{vg}, v0, 4, 2
v_lshlrev_b32 v{vky}, 7, v0
s_and_b32 s20, s3, 7
s_bfe_u32 s21, s3, 0x20003
v_lshrrev_b32 v{vt}, 1, v{vl}
v_and_b32 v{vt2}, 1, v{vl}
v_cmp_eq_u32 s[52:53], 1, v{vt2}
v_lshlrev_b32 v{vt2}, 4, v{vt2}
v_lshlrev_b32 v{vtr}, 8, v{vg}
v_lshl_add_u32 v{vtr}, v{vn}, 3, v{vtr}
v_lshlrev_b32 v{vlw}, 4, v{vl}
v_cmp_gt_u32 s[54:55], 2, v{vn}
s_lshl_b32 s61, s20, 7
s_add_u32 s61, s61, {hex(HU)}
s_mov_b32 s27, {fl(-1.4426950408889634)}
s_waitcnt lgkmcnt(0)
s_add_u32 s38, s30, {hex(EPOCH)}
s_addc_u32 s39, s31, 0
s_load_dword s40, s[38:39], 0""")
    k.stamp(1)
    srd(k, 4, 30, WS_BYTES); srd(k, 8, 58, 2048*1024)
    if OPT['fdel']: k(f's_sleep {OPT["fdel"]}')
    k(f's_cmp_ge_u32 s3, 128\ns_cbranch_scc1 {name}_cons')

    def select(layer, role):
        nm = f'{name}_{role}'
        gather(k, f'{nm}_g{layer}', f'buffer_load_dword v{fg}, off, s[4:7], s61 offset:{1024*(layer-1)} {SC}', ck_tag(0, [fg]), OPT['gsleep'])
        poll_keys(k, nm, layer, vky, fg, fx, vt, OPT['fsleep'])
        k.stamp(3 + 6*(layer-1))
        k(f'v_mov_b32 v{m1}, v{fg+1}\nv_mov_b32 v{m2}, v{fg+2}')
        top2_row(k, m1, m2, n1, n2)
        k(f"""v_lshrrev_b32 v{vt}, 4, v0
v_lshlrev_b32 v{vt}, 3, v{vt}
v_lshlrev_b32 v{vt2}, 3, v{vn}
ds_write_b64 v{vt}, {vr(m1,2)} offset:{RED}
s_waitcnt lgkmcnt(0)
s_barrier
ds_read_b64 {vr(m1,2)}, v{vt2} offset:{RED}
s_waitcnt lgkmcnt(0)""")
        top2_row(k, m1, m2, n1, n2)
        k(f"""v_med3_u32 v{m2}, v{m1}, v{m2}, v{fx+1}
v_max_u32 v{m1}, v{m1}, v{fx+1}
v_and_b32 v{n2}, 0x73f, v{m2}
v_and_b32 v{n1}, 0x73f, v{m1}
v_add_u32 v{vt}, 64, v{n2}
v_cmp_eq_u32 vcc, v{n1}, v{n2}
s_mov_b32 s36, {hex(X2 + (layer-1)*128*XP)}
v_cndmask_b32 v{n2}, v{n2}, v{vt}, vcc
v_cndmask_b32 v{n1}, v{n1}, v{n2}, s[52:53]
v_mul_u32_u24 v{vro}, {XP}, v{n1}""")
        k.stamp(4 + 6*(layer-1))
    def prefetch(rows_per_wave, pitch):
        if OPT['pref'] == 2:
            k(f'v_lshlrev_b32 v{vo}, 6, v{vl}\ns_lshr_b32 s36, s23, 3\ns_add_u32 s36, s36, s22\ns_mul_i32 s36, s36, {128*rows_per_wave}')
            return
        k(f"""v_mul_u32_u24 v{vo}, 3, v{vt2}
v_add_u32 v{vo}, v{vo}, v{vw}
s_lshl_b32 s36, s21, 2
s_add_u32 s36, s36, s22
s_mul_i32 s36, s36, {rows_per_wave*pitch}
s_andn2_b32 s37, s23, 127
s_add_u32 s36, s36, s37""")

    k(f"""s_lshr_b32 s23, s3, 5
s_lshl_b32 s23, s23, 3
s_add_u32 s23, s23, s20
s_cmp_ge_u32 s23, 28
s_cbranch_scc1 {name}_end
s_lshl_b32 s23, s23, 7
s_lshl_b32 s24, s21, 5
s_add_u32 s23, s23, s24
s_mul_i32 s24, s22, {128*3584}
s_add_u32 s24, s24, s23
s_mov_b32 s25, 3584
v_mad_u32_u24 v{vw}, v{vt}, s25, v{vt2}""")
    srd(k, 12, 46, 512*3584); srd(k, 16, 48, 512*3584)
    if OPT['pref']:
        prefetch(32, 3584)
        k(f'buffer_load_dword v{Wt}, v{vo}, s[12:15], s36 offen\nbuffer_load_dword v{Wt+1}, v{vo}, s[16:19], s36 offen\ns_waitcnt vmcnt(0)')
        k.stamp(7)
        wait_until(k, f'{name}_wp', OPT['tp'])
        k.stamp(8)
    for kap in range(4):
        k(f'buffer_load_dwordx4 {vr(Wt+4*kap,4)}, v{vw}, s[12:15], s24 offen\ns_waitcnt vmcnt({NF-1})')
        k(f'buffer_load_dwordx4 {vr(Wt+16+4*kap,4)}, v{vw}, s[16:19], s24 offen\ns_waitcnt vmcnt({NF-1})')
        if kap < 3: k(f's_add_u32 s24, s24, {32*3584}')
    k(f"""s_lshl_b32 s25, s22, 13
v_add_u32 v{vtr}, s25, v{vtr}
v_add_u32 v{vlw}, s25, v{vlw}
s_waitcnt vmcnt(0)""")
    for i in range(8): k(f'ds_write_b128 v{vlw}, {vr(Wt+4*i,4)} offset:{1024*i}')
    k('s_waitcnt lgkmcnt(0)\ns_mul_i32 s40, s40, 0x9e3779b1\ns_add_u32 s40, s40, 0x7f4a7c15')
    for i in range(8):
        for u in range(2): k(f'ds_read_b64_tr_b16 {vr(Fr+4*i+2*u,2)}, v{vtr} offset:{1024*i+128*u}')
    for i in range(16): k(f'v_mov_b32 v{Af+i}, 0x3f803f80')
    k(f"""v_lshlrev_b32 v{vo}, 5, v{vn}
v_lshl_add_u32 v{vo}, v{vg}, 3, v{vo}
v_lshlrev_b32 v{vtr}, 6, v{vn}
v_lshl_add_u32 v{vtr}, v{vg}, 4, v{vtr}
s_lshl_b32 s26, s22, 8
v_add_u32 v{vlw}, s26, v{vtr}
v_lshl_add_u32 v{vw}, v{vg}, 4, s26
s_lshl_b32 s23, s23, 2
s_waitcnt lgkmcnt(0)""")
    for kap in range(4):
        for mat in range(2):
            d = vr(CS+4*mat, 4)
            k(f'v_mfma_f32_16x16x32_bf16 {d}, {vr(Fr+16*mat+4*kap,4)}, {vr(Af,4)}, {d if kap else 0}')
    k.stamp(2)
    for layer in (1, 2):
        select(layer, 'p')
        k(f'v_add_u32 v{vt2}, v{vro}, v{vw}\ns_mov_b64 exec, s[54:55]')
        ld = [f'buffer_load_dwordx4 {vr(Af+4*kap,4)}, v{vt2}, s[4:7], s36 offen offset:{64*kap} {SC}' for kap in range(4)]
        ld.append(f'buffer_load_dwordx2 {vr(st,2)}, v{vro}, s[4:7], s36 offen offset:1024 {SC}')
        gather(k, f'{name}_gr{layer}', '\n'.join(ld), ck_sent(vt, [st] + [Af+4*i for i in range(4)]))
        k.stamp(5 + 6*(layer-1))
        for i in range(8): k(f'v_mul_f32 v{D+i}, -v{CS+i}, v{st}')
        for kap in range(4):
            for mat in range(2):
                d = vr(D+4*mat, 4)
                k(f'v_mfma_f32_16x16x32_bf16 {d}, {vr(Fr+16*mat+4*kap,4)}, {vr(Af+4*kap,4)}, {d}')
        k(f"""s_mov_b64 exec, s[54:55]
s_add_u32 s36, s23, {hex(H1 if layer == 1 else H2)}
s_cmp_lg_u32 s22, 0
ds_write_b128 v{vlw}, {vr(D,4)} offset:{RED+128}
ds_write_b128 v{vlw}, {vr(D+4,4)} offset:{RED+128+128}
v_mul_f32 v{n1}, s27, v{st+1}
v_mul_f32 v{n2}, v{st+1}, v{st+1}
s_waitcnt lgkmcnt(0)
s_barrier
s_cbranch_scc1 {name}_pn{layer}""")
        for i in range(2, 8): k(f'ds_read_b128 {vr(R_+4*i,4)}, v{vtr} offset:{RED+128+128*i}')
        for w in range(1, 4):
            k(f's_waitcnt lgkmcnt({6-2*w})')
            for i in range(8): k(f'v_add_f32 v{D+i}, v{D+i}, v{R_+8*w+i}')
        for r in range(4): k(f'v_mul_f32 v{R_+r}, v{n1}, v{D+r}')
        for r in range(4): k(f'v_exp_f32 v{R_+r}, v{R_+r}\nv_mul_f32 v{D+r}, v{D+r}, v{D+4+r}')
        for r in range(4): k(f'v_add_f32 v{R_+r}, 1.0, v{R_+r}')
        for r in range(4): k(f'v_rcp_f32 v{R_+r}, v{R_+r}\nv_mul_f32 v{D+r}, v{D+r}, v{n2}')
        for r in range(4): k(f'v_mul_f32 v{D+r}, v{D+r}, v{R_+r}')
        k(f"""v_cvt_pk_bf16_f32 v{m1}, v{D}, v{D+1}
v_cvt_pk_bf16_f32 v{m2}, v{D+2}, v{D+3}
buffer_store_dwordx2 {vr(m1,2)}, v{vo}, s[4:7], s36 offen {SC}""")
        k.lab(f'{name}_pn{layer}')
        k('s_mov_b64 exec, -1')
        k.stamp(6 + 6*(layer-1))
    k.endpgm()
    k.lab(f'{name}_cons')
    k(f"""s_lshl_b32 s23, s20, 7
s_lshl_b32 s24, s21, 5
s_add_u32 s23, s23, s24
s_mul_i32 s24, s22, {448*1024}
s_add_u32 s24, s24, s23
v_lshl_add_u32 v{vw}, v{vt}, 10, v{vt2}""")
    srd(k, 12, 50, 1792*1024)
    k(f'''s_cmp_lt_u32 s3, 160
s_cbranch_scc1 {name}_cons2
s_sub_u32 s36, s3, 160
s_lshr_b32 s36, s36, 3
s_lshl_b32 s36, s36, 2
s_add_u32 s36, s36, s22
s_mul_i32 s36, s36, {41*1024}
s_lshl_b32 s37, s20, 7
s_add_u32 s36, s36, s37
s_add_u32 s37, s36, {21*1024}
v_mul_u32_u24 v{vo}, 3, v{vt2}
v_add_u32 v{vo}, v{vo}, v{vw}
buffer_load_dword v{Wt}, v{vo}, s[12:15], s36 offen
buffer_load_dword v{Wt+1}, v{vo}, s[12:15], s37 offen
s_endpgm
{name}_cons2:''')
    wait_until(k, f'{name}_wc', OPT['tc'])
    k.stamp(8)
    NF = OPT['nfc']
    for kap in range(14):
        k(f'buffer_load_dwordx4 {vr(Wt+4*kap,4)}, v{vw}, s[12:15], s24 offen\ns_waitcnt vmcnt({NF-1})')
        if kap < 13: k(f's_add_u32 s24, s24, {32*1024}')
    k(f"""s_mul_i32 s25, s22, {14*1024}
v_add_u32 v{vtr}, s25, v{vtr}
v_add_u32 v{vlw}, s25, v{vlw}
s_waitcnt vmcnt(0)""")
    for i in range(14): k(f'ds_write_b128 v{vlw}, {vr(Wt+4*i,4)} offset:{1024*i}')
    k('s_waitcnt lgkmcnt(0)\ns_mul_i32 s40, s40, 0x9e3779b1\ns_add_u32 s40, s40, 0x7f4a7c15')
    for i in range(14):
        for u in range(2): k(f'ds_read_b64_tr_b16 {vr(Fr+4*i+2*u,2)}, v{vtr} offset:{1024*i+128*u}')
    for i in range(56): k(f'v_mov_b32 v{Af+i}, 0')
    k(f"""v_lshrrev_b32 v{vt}, 1, v{vg}
v_and_b32 v{vt2}, 1, v{vg}
v_lshlrev_b32 v{vw}, 7, v{vt}
v_lshl_add_u32 v{vw}, v{vt2}, 4, v{vw}
v_lshl_add_u32 v{vw}, v{vn}, 5, v{vw}
s_waitcnt lgkmcnt(0)
v_lshlrev_b32 v{vtr}, 6, v{vn}
v_lshl_add_u32 v{vtr}, v{vg}, 4, v{vtr}
s_lshl_b32 s26, s22, 7
v_add_u32 v{vlw}, s26, v{vtr}""")
    k.stamp(2)
    for layer in (1, 2):
        select(layer, 'c')
        k('s_mov_b64 exec, s[54:55]')
        ld = [f'buffer_load_dwordx4 {vr(st,4)}, v{vro}, s[4:7], s36 offen offset:1024 {SC}']; ck = [st, st+2]
        if layer == 2:
            k(f"""v_cndmask_b32 v{m1}, v{m1}, v{m2}, s[52:53]
s_add_u32 s38, s36, s23
v_lshl_add_u32 v{vt2}, v{vg}, 3, v{vro}
v_and_b32 v{n1}, 2047, v{m1}
v_sub_u32 v{n2}, 2048, v{n1}
v_and_b32 v{vt}, 2048, v{m1}
v_cmp_ne_u32 vcc, 0, v{vt}
v_bfe_u32 v{vl}, v{n1}, 3, 3
v_cndmask_b32 v{vo}, v{n1}, v{n2}, vcc
v_lshlrev_b32 v{vo}, 10, v{vo}
v_lshl_add_u32 v{vo}, v{vg}, 3, v{vo}
v_cmp_eq_u32 vcc, 4, v{vl}
v_lshlrev_b32 v{vl}, 6, v{vl}
v_cndmask_b32 v{vl}, v{vl}, 32, vcc
v_lshrrev_b32 v{n2}, 8, v{n1}
v_lshl_add_u32 v{vl}, v{n2}, 3, v{vl}
v_and_b32 v{n2}, 7, v{n1}
v_add_u32 v{vl}, v{vl}, v{n2}
v_mov_b32 v{n2}, 256
v_cmp_eq_u32 vcc, 0x400, v{n1}
v_cndmask_b32 v{vl}, v{vl}, v{n2}, vcc
v_lshlrev_b32 v{vl}, 7, v{vl}""")
            ld.append(f'buffer_load_dwordx2 {vr(old,2)}, v{vt2}, s[4:7], s38 offen {SC}'); ck += [old, old+1]
        gather(k, f'{name}_gs{layer}', '\n'.join(ld), ck_sent(vt, ck), 1, 's[54:55]')
        k(f"""s_mul_i32 s26, s22, {28*128}
s_add_u32 s26, s26, {hex(H1 if layer == 1 else H2)}
v_mul_f32 v{n1}, s27, v{st+2}
v_exp_f32 v{n1}, v{n1}
v_and_b32 v{old+3}, 0xffff0000, v{old+1}
v_lshlrev_b32 v{old+2}, 16, v{old+1}
v_add_f32 v{n1}, 1.0, v{n1}
v_and_b32 v{old+1}, 0xffff0000, v{old}
v_lshlrev_b32 v{old}, 16, v{old}
v_rcp_f32 v{n1}, v{n1}""")
        if layer == 2:
            k(f's_mov_b32 s36, {hex(KEY2 + 64)}')
            gather(k, f'{name}_gd', f'buffer_load_dword v{fg}, v{vl}, s[4:7], s36 offen {SC}', ck_tag(0, [fg]), 1, 's[54:55]')
        ld = [f'buffer_load_dwordx4 {vr(Af+4*kap,4)}, v{vw}, s[4:7], s26 offen offset:{256*kap} {SC}' for kap in range(14)]
        if OPT['hpre']: k(f's_sleep {OPT["hpre"]}')
        gather(k, f'{name}_gh{layer}', '\n'.join(ld), ck_sent(vt, range(Af, Af+56, 2)))
        k.stamp(5 + 6*(layer-1))
        for kap in range(14):
            d = vr(D+4*(kap&1), 4)
            k(f'v_mfma_f32_16x16x32_bf16 {d}, {vr(Fr+4*kap,4)}, {vr(Af+4*kap,4)}, {d if kap > 1 else 0}')
        k(f's_lshl_b32 s36, s23, 2\ns_add_u32 s36, s36, {hex(UPD)}\ns_cmp_lg_u32 s22, 0')
        for r in range(4): k(f'v_add_f32 v{D+r}, v{D+r}, v{D+4+r}')
        k(f"""s_mov_b64 exec, s[54:55]
ds_write_b128 v{vlw}, {vr(D,4)} offset:{RED+128}
s_waitcnt lgkmcnt(0)
s_barrier
s_cbranch_scc1 {name}_cn{layer}""")
        for i in range(1, 4): k(f'ds_read_b128 {vr(R_+4*i,4)}, v{vtr} offset:{RED+128+128*i}')
        for w in range(1, 4):
            k(f's_waitcnt lgkmcnt({3-w})')
            for r in range(4): k(f'v_add_f32 v{D+r}, v{D+r}, v{R_+4*w+r}')
        if layer == 2:
            for r in range(4): k(f'v_fma_f32 v{D+r}, v{D+r}, v{n1}, v{old+r}')
            k(f"""v_cvt_pk_bf16_f32 v{m1}, v{D}, v{D+1}
v_cvt_pk_bf16_f32 v{m2}, v{D+2}, v{D+3}
buffer_store_dwordx2 {vr(m1,2)}, v{vo}, s[8:11], s23 offen""")
        else:
            for r in range(4): k(f'v_mul_f32 v{D+r}, v{D+r}, v{n1}')
            k(f'buffer_store_dwordx4 {vr(D,4)}, v{vtr}, s[4:7], s36 offen {SC}')
        k.lab(f'{name}_cn{layer}')
        k('s_mov_b64 exec, -1')
        k.stamp(6 + 6*(layer-1))
    k.endpgm()

CPF = '''s_getpc_b64 s[62:63]
v_lshlrev_b32 v2, 7, v0
v_min_u32 v2, CODE_END, v2
global_load_dword v239, v2, s[62:63]'''
def build(name):
    k = K(name); k.kidx = 0
    k.stamp(0)
    k(f"""s_load_dwordx2 s[32:33], s[0:1], 0
s_load_dwordx2 s[30:31], s[0:1], 96
s_load_dwordx8 s[44:51], s[0:1], 48
s_load_dwordx2 s[58:59], s[0:1], 80
{CPF if OPT['cpf'] else ''}
v_lshrrev_b32 v1, 6, v0
s_sub_u32 s3, s2, {NMAIN}
v_readfirstlane_b32 s22, v1
s_cbranch_scc0 L_ffn""")
    k.dbgsel = [(0,0),(1,2),(2,3),(3,4),(4,6),(5,8),(6,9),(7,10),(8,12),(9,15),(10,16)]
    main_role(k, 'M')
    k.dbgsel = [(11,2),(12,3),(13,6),(14,9),(15,16)]
    k.lab('L_ffn')
    k(f's_cmp_ge_u32 s3, {NFFN}\ns_cbranch_scc1 F_end')
    k('s_memrealtime s[96:97]')
    ffn_role(k, 'F')
    k.lab('F_end'); k('s_endpgm')
    k(f'.set CODE_END, F_end - {name} - 64')
    return k

def emit(k, grid, lds, path, aslist):
    hdr = open('cdna_kernels/' + NAME + '.s.ref').read().split('\n')
    out = [l for l in hdr if l.startswith(';') and '@launch' not in l and 'Override launch' not in l and 'grid=ceil' not in l]
    out.append(f'; @launch {"kernel="+k.name+" " if aslist else ""}grid=({grid},1,1) block=(256,1,1) lds={lds}')
    out.append('.amdgcn_target "amdgcn-amd-amdhsa--gfx950"\n.text')
    out.append(f'.globl {k.name}\n.p2align 8\n.type {k.name},@function\n{k.name}:')
    out += fix_hazards(k.L)
    out.append('.section .rodata,"a"')
    nv = (k.maxv + 7) // 8 * 8
    out.append(f""".p2align 6
.amdhsa_kernel {k.name}
  .amdhsa_next_free_vgpr {nv}
  .amdhsa_next_free_sgpr 102
  .amdhsa_accum_offset {nv}
  .amdhsa_group_segment_fixed_size 0
  .amdhsa_kernarg_size 104
  .amdhsa_user_sgpr_count 2
  .amdhsa_user_sgpr_kernarg_segment_ptr 1
  .amdhsa_system_sgpr_workgroup_id_x 1
.end_amdhsa_kernel""")
    open(path, 'w').write('\n'.join(out) + '\n')

if __name__ == '__main__':
    for a in sys.argv[2:]:
        if a == 'stamp': K.STAMP = True
        elif a == 'list': pass
        elif a == 'dbg': K.STAMP = True; K.DBG = True
        else:
            kk, vv = a.split('='); OPT[kk] = int(vv)
    K.NST = 17
    k = build(NAME + '_kernel')
    print('vgprs', k.maxv, 'instrs', len(k.L))
    emit(k, NMAIN + NFFN, 57344 + 2304, sys.argv[1], 'list' in sys.argv or 'stamp' in sys.argv)
```

```python
import sys, struct
from asmlib import *
from gen import fl, srd, red_half, merge, unpack_direct, unpack_mirror, DPP, NAME, PITCH
Q1, Q2, U1, U2 = 0x000000, 0x210000, 0x320000, 0x430000
X2, XP = 0x540000, 1152
KEY1, KEY2 = 0x780000, 0x790000
H1, H2, UPD = 0x7B0000, 0x7B4000, 0x7B8000
HU, EPOCH = 0x7C0000, 0x7C1000
WS_BYTES = 0x10000000
SC = 'sc0 sc1'
NMAIN, NFFN = 257, 248
OPT = dict(sleep=0, fsleep=0, gsleep=4, nf=2, pref=1, drain=1, pre=0, cpf=1, fdel=20, odel=40, hpre=0, tp=400, tc=400, nfc=2, ns=2, now=0, w256=20, prio=1)
L_U, L_Q, L_KEY, L_UD, L_X, L_KT, L_TR, L_OLD = 0, 4096, 8192, 8448, 12544, 21760, 23808, 32000
XOR4 = ('quad_perm:[1,0,3,2]', 'quad_perm:[2,3,0,1]', 'row_half_mirror', 'row_mirror')

def gather(k, lab, loads, check, sleep=0, restore='-1', first=True):
    k('s_mov_b32 s37, 0x10000')
    if not first: k(f's_branch {lab}c')
    elif sleep: k(f's_branch {lab}')
    if sleep:
        k.lab(f'{lab}s'); k(f's_sleep {sleep}')
    k.lab(lab)
    k(loads)
    if not first: k.lab(f'{lab}c')
    k(f's_sub_u32 s37, s37, 1\ns_waitcnt vmcnt(0)'); k(check)
    k(f's_cbranch_scc1 {lab}x\ns_mov_b64 exec, vcc\ns_cbranch_vccnz {lab}{"s" if sleep else ""}')
    k.lab(f'{lab}x')
    k(f's_mov_b64 exec, {restore}')
def ck_tag(t, regs):
    if len(regs) == 1: return f'v_cmp_ne_u32 vcc, s40, v{regs[0]}'
    o = [f'v_bitop3_b32 v{t}, v{regs[0]}, v{regs[1]}, s40 bitop3:0x7e']
    o += [f'v_bitop3_b32 v{t}, v{t}, v{r}, s40 bitop3:0xf6' for r in regs[2:]]
    return '\n'.join(o + [f'v_cmp_ne_u32 vcc, 0, v{t}'])
def ck_sent(t, regs, val='-1'):
    regs = list(regs); o = []
    if len(regs) % 2 == 0: o.append(f'v_max_u32 v{t}, v{regs[0]}, v{regs[1]}'); regs = regs[2:]
    else: o.append(f'v_max3_u32 v{t}, v{regs[0]}, v{regs[1]}, v{regs[2]}'); regs = regs[3:]
    for i in range(0, len(regs), 2): o.append(f'v_max3_u32 v{t}, v{t}, v{regs[i]}, v{regs[i+1]}')
    return '\n'.join(o + [f'v_cmp_eq_u32 vcc, {val}, v{t}'])
def poll_keys(k, name, layer, vky, fg, fx, t, sleep):
    KEY = KEY1 if layer == 1 else KEY2
    k(f's_mov_b32 s36, {hex(KEY)}\ns_mov_b32 s38, {hex(KEY + 256*128)}')
    lx = f'buffer_load_dwordx2 {vr(fx,2)}, off, s[4:7], s38 {SC}'
    k(lx)
    gather(k, f'{name}_pk{layer}', f'buffer_load_dwordx3 {vr(fg,3)}, v{vky}, s[4:7], s36 offen {SC}', ck_tag(t, [fg]), sleep)
    gather(k, f'{name}_px{layer}', lx, ck_tag(t, [fx]), sleep, first=False)
def sel_decode(k, layer, rows):
    k(f"""s_and_b32 s42, s56, 0x73f
s_and_b32 s43, s57, 0x73f
s_cmp_eq_u32 s42, s43
s_cselect_b32 s36, 64, 0
s_add_u32 s43, s43, s36
s_mul_i32 s42, s42, {XP}
s_mul_i32 s43, s43, {XP}
s_add_u32 s42, s42, {hex(X2 + (layer-1)*128*XP)}
s_add_u32 s43, s43, {hex(X2 + (layer-1)*128*XP)}""")
    if rows:
        for r in (56, 57):
            k(f's_and_b32 s36, s{r}, 2047\ns_sub_u32 s37, 2048, s36\ns_bitcmp1_b32 s{r}, 11\ns_cselect_b32 s{r}, s37, s36')

def wait_until(k, lab, T):
    k(f's_mov_b32 s37, 64\n{lab}:\ns_memrealtime s[98:99]\ns_sub_u32 s37, s37, 1\ns_cbranch_scc1 {lab}x\ns_waitcnt lgkmcnt(0)\ns_sub_u32 s98, s98, s96\ns_cmp_ge_u32 s98, {T}\ns_cbranch_scc1 {lab}x\ns_sleep 2\ns_branch {lab}\n{lab}x:')
def trickle(k, l0, l1):
    ns = OPT['ns']
    if ns == 1: k(f'{l0}\n{l1}')
    elif ns == 2: k(f'{l0}\ns_waitcnt vmcnt(0)\n{l1}')
    else:
        n = ns // 2; w = 64 // n
        for l in (l0, l1):
            for i in range(n):
                m = ((1 << w) - 1) << (w*i)
                k(f's_mov_b32 exec_lo, {hex(m & 0xffffffff)}\ns_mov_b32 exec_hi, {hex(m >> 32)}\n{l}\ns_waitcnt vmcnt(0)')
        k('s_mov_b64 exec, -1')
    k('s_waitcnt vmcnt(0)')
def top2_merge(k, m1, m2, n1, n2):
    k(f'v_max_u32 v{m2}, v{m2}, v{n2}\nv_med3_u32 v{m2}, v{m1}, v{m2}, v{n1}\nv_max_u32 v{m1}, v{m1}, v{n1}')
def top2_row(k, m1, m2, n1, n2):
    for m in XOR4:
        k(f'v_mov_b32_dpp v{n1}, v{m1} {m} {DPP}\nv_mov_b32_dpp v{n2}, v{m2} {m} {DPP}')
        top2_merge(k, m1, m2, n1, n2)
def top2_wave(k, m1, m2, n1, n2):
    top2_row(k, m1, m2, n1, n2)
    for sw in ('v_permlane16_swap_b32', 'v_permlane32_swap_b32'):
        k(f'v_mov_b32 v{n1}, v{m1}\nv_mov_b32 v{n2}, v{m2}\n{sw} v{m1}, v{n1}\n{sw} v{m2}, v{n2}')
        top2_merge(k, m1, m2, n1, n2)

def twiddle(k, re, im, c_, s_, t0, t1, dst):
    k(f'''v_mul_f32 v{t0}, v{re}, v{c_}
v_mul_f32 v{t1}, v{im}, v{c_}
v_fmac_f32 v{t0}, v{im}, v{s_}
v_fma_f32 v{t1}, -v{re}, v{s_}, v{t1}
v_cvt_pk_f16_f32 v{dst}, v{t0}, v{t1}''')

def main_role(k, name):
    k.nv = 1
    V = k.v
    vl = V(); vn = V(); vg = V(); vch = V(); vod = V(); vom = V(); vom0 = V(); vp = V(); vt = V(); vt2 = V()
    vfa = V(); bpf = V(); vqw = V(); bpm = V(); vra = V(); vrb = V(); vsg = V(); sw = V()
    va = V(); vst = V(); xa = V(6); vq1 = V(); vq2 = V(); vqr = V(); vqr2 = V()
    fg = V(4, 4); fx = V(2, 2)
    a = V(8); b = V(8); wa = V(8); wb = V(8)
    RB1 = V(16, 4); RTW = V(16); RB2 = V(4, 4)
    CB1 = V(32, 4); CTW = V(16); CA2 = V(16, 4)
    T0 = V(0, 4)
    xd = V(4, 4); xm = V(4, 4); wd = V(4, 4); wm = V(4, 4); cl = V(4, 4); xm0 = V(); wm0 = V()
    k(f'''s_lshr_b32 s20, s2, 3
s_and_b32 s21, s2, 7
s_cmp_eq_u32 s20, 0
s_cselect_b32 s26, s21, 0
s_cmp_ge_u32 s26, 4
s_cselect_b32 s20, 32, s20
s_cselect_b32 s26, 4, 0
s_sub_u32 s21, s21, s26
s_cmp_eq_u32 s2, 256
s_cselect_b32 s20, 0, s20
s_cselect_b32 s21, 4, s21
s_cselect_b32 s60, s22, 0
s_lshl_b32 s23, s21, 2
s_add_u32 s23, s23, s22
s_lshl_b32 s23, s23, 6
s_add_u32 s23, s23, s20
s_sub_u32 s24, 2048, s23
s_and_b32 s24, s24, 2047
s_lshl_b32 s28, s23, 10
s_lshl_b32 s29, s24, 10
v_and_b32 v{vn}, 15, v0
v_bfe_u32 v{vg}, v0, 4, 2
v_lshl_add_u32 v{vch}, v{vn}, 2, v{vg}
v_lshlrev_b32 v{vod}, 4, v{vch}
v_sub_u32 v{vom}, 1008, v{vod}
v_sub_u32 v{vom0}, 1024, v{vod}
v_and_b32 v{vom0}, 1023, v{vom0}
s_lshr_b32 s36, s2, 1
s_mul_i32 s36, s36, {PITCH}
s_bitcmp1_b32 s2, 0
s_cselect_b32 s37, 4096, 0
s_add_u32 s36, s36, s37
s_cmp_eq_u32 s2, 256
s_cselect_b32 s36, 8192, s36
s_cselect_b32 s37, {PITCH-128}, 0
s_add_u32 s36, s36, {hex(U1)}
v_lshlrev_b32 v{vfa}, 4, v0
v_lshrrev_b32 v{vt}, 3, v0
v_mad_u32_u24 v{vt}, v{vt}, s37, v{vfa}
v_mov_b32 v{cl}, -1
v_mov_b32 v{cl+1}, -1
v_mov_b32 v{cl+2}, -1
v_mov_b32 v{cl+3}, -1
s_mov_b32 s6, {hex(WS_BYTES)}
s_mov_b32 s7, 0x20000
s_mov_b32 s10, {hex(2048*1024)}
s_mov_b32 s11, 0x20000
s_waitcnt lgkmcnt(0)''')
    k.stamp(1)
    k('s_mov_b32 s8, s32\ns_mov_b32 s9, s33')
    k(f'''buffer_load_dwordx4 {vr(xd,4)}, v{vod}, s[8:11], s28 offen
buffer_load_dwordx4 {vr(xm,4)}, v{vom}, s[8:11], s29 offen
buffer_load_ushort v{xm0}, v{vom0}, s[8:11], s29 offen
s_mov_b32 s4, s30
s_mov_b32 s5, s31
buffer_store_dwordx4 {vr(cl,4)}, v{vt}, s[4:7], s36 offen {SC}
s_add_u32 s38, s30, {hex(EPOCH)}
s_addc_u32 s39, s31, 0
s_load_dword s40, s[38:39], 0''')
    srd(k, 12, 44, 1024); srd(k, 16, 58, 2048*1024)
    k(f'''buffer_load_dwordx4 {vr(wd,4)}, v{vod}, s[12:15], 0 offen
buffer_load_dwordx4 {vr(wm,4)}, v{vom}, s[12:15], 0 offen
buffer_load_ushort v{wm0}, v{vom0}, s[12:15], 0 offen
v_and_b32 v{vl}, 63, v0
s_cmp_lg_u32 s2, 256
s_cbranch_scc1 {name}_clr2
s_add_u32 s36, s36, {32*PITCH}
buffer_store_dwordx4 {vr(cl,4)}, v{vt}, s[4:7], s36 offen {SC}
s_add_u32 s36, s36, {32*PITCH}
buffer_store_dwordx4 {vr(cl,4)}, v{vt}, s[4:7], s36 offen {SC}
s_add_u32 s36, s36, {32*PITCH}
buffer_store_dwordx4 {vr(cl,4)}, v{vt}, s[4:7], s36 offen {SC}
{name}_clr2:
s_lshl_b32 s25, s21, 10
s_lshl_b32 s26, s20, 4
s_add_u32 s25, s25, s26
s_sub_u32 s27, 8192, s25
s_lshl_b32 s26, s21, 4
s_add_u32 s36, s26, 8192
s_sub_u32 s37, {8192+116}, s26
s_cmp_eq_u32 s20, 0
s_cselect_b32 s25, s36, s25
s_cselect_b32 s27, s37, s27
s_cmp_ge_u32 s22, 2
s_cselect_b32 s25, s27, s25
v_and_b32 v{vp}, 127, v0
v_mul_u32_u24 v{vp}, {PITCH}, v{vp}
s_lshl_b32 s61, s2, 12
s_add_u32 s61, s61, {hex(Q2)}
s_bfe_u32 s37, s2, 0x40004
s_and_b32 s36, s2, 7
s_lshl_b32 s36, s36, 4
s_add_u32 s3, s37, s36
s_mul_i32 s41, s3, {PITCH}
s_bfe_u32 s26, s2, 0x10003
s_lshl_b32 s26, s26, 5
s_lshr_b32 s37, s22, 1
s_lshl_b32 s37, s37, 4
s_add_u32 s26, s26, s37
s_and_b32 s27, s22, 1
v_add_u32 v{vt}, s26, v{vn}
v_lshl_add_u32 v{vt2}, s27, 2, v{vg}
v_lshlrev_b32 v{vst}, 10, v{vt2}
v_lshl_add_u32 v{vst}, v{vt}, 4, v{vst}
v_cmp_eq_u32 vcc, 0, v{vt}
v_lshlrev_b32 v{vt2}, 4, v{vt2}
v_add_u32 v{vt2}, 8192, v{vt2}
v_cndmask_b32 v{vst}, v{vst}, v{vt2}, vcc
s_cmp_lg_u32 s2, 256
s_cbranch_scc1 {name}_clr3
buffer_store_dwordx4 {vr(cl,4)}, v{vfa}, s[4:7], s61 offen {SC}
{name}_clr3:''')
    def lane_of(dst, chreg):
        k(f'v_and_b32 v{vt2}, 3, v{chreg}\nv_and_b32 v{dst}, 60, v{chreg}\nv_lshl_add_u32 v{dst}, v{vt2}, 6, v{dst}')
    k(f'''v_cmp_lt_u32 s[44:45], 31, v{vch}
v_add_u32 v{vt}, 1, v{vch}
v_cndmask_b32 v{vt}, v{vch}, v{vt}, s[44:45]
v_and_b32 v{vt}, 63, v{vt}
v_cmp_eq_u32 vcc, 0, v{vt}
v_cndmask_b32 v{vt}, v{vt}, 32, vcc''')
    lane_of(bpf, vt)
    k(f'''v_sub_u32 v{vt}, 95, v{vch}
v_cndmask_b32 v{vt}, v{vch}, v{vt}, s[44:45]
s_lshl_b32 s36, s22, 2
s_sub_u32 s37, {L_Q+12}, s36
s_add_u32 s36, s36, {L_Q}
v_mov_b32 v{vt2}, s36
v_mov_b32 v{vqw}, s37
v_cndmask_b32 v{vqw}, v{vt2}, v{vqw}, s[44:45]
v_lshl_add_u32 v{vqw}, v{vt}, 6, v{vqw}
v_add_u32 v{vt}, 1, v{vch}
v_and_b32 v{vt}, 63, v{vt}''')
    lane_of(bpm, vt)
    k(f'''v_and_b32 v{vt}, 2, v0
v_lshlrev_b32 v{vt}, 10, v{vt}
v_and_b32 v{vt2}, 1, v0
v_lshl_add_u32 v{vt}, v{vt2}, 3, v{vt}
v_and_b32 v{vt2}, 252, v0
v_lshl_add_u32 v{vqr}, v{vt2}, 2, v{vt}''')

    def stats_and_out(mode):
        k.nv = T0 + 24
        sa = V(); qa = V(); sb = V(); qb = V(); ra = V(); rb = V()
        for (S_, Q_, base, R_, W_) in ((sa, qa, a, ra, wa), (sb, qb, b, rb, wb)):
            k(f'v_add_f32 v{S_}, v{base}, v{base+1}\nv_mul_f32 v{Q_}, v{base}, v{base}')
            if mode != 1: k(f'v_mul_f32 v{R_}, v{base}, v{W_}')
            for i in range(1, 8):
                if i > 1: k(f'v_add_f32 v{S_}, v{S_}, v{base+i}')
                k(f'v_fmac_f32 v{Q_}, v{base+i}, v{base+i}')
                if mode != 1: k(f'v_fmac_f32 v{R_}, v{base+i}, v{W_+i}')
        merge(k, sa, sb); merge(k, qa, qb)
        if mode != 1: merge(k, ra, rb)
        red_half(k, [sa, qa] + ([ra] if mode != 1 else []))
        k(f'''v_mul_f32 v{sa}, {fl(1/512)}, v{sa}
v_mul_f32 v{qa}, {fl(1/512)}, v{qa}
v_fma_f32 v{qa}, -v{sa}, v{sa}, v{qa}
v_max_f32 v{qa}, 0, v{qa}
v_add_f32 v{qb}, {fl(1e-5)}, v{qa}
v_rsq_f32 v{qb}, v{qb}''')
        if mode == 1: zc = qb
        else:
            st = V(4, 4); one = V(); nb = V(); zc = V()
            k(f'''v_add_f32 v{one}, 1.0, v{qb}
v_fma_f32 v{ra}, -v{sa}, v{sw}, v{ra}
v_mul_f32 v{nb}, v{sa}, v{qb}
v_mul_f32 v{qa}, v{qa}, v{one}
v_rcp_f32 v{st+1}, v{one}
v_mul_f32 v{qa}, v{qa}, v{one}
v_mul_f32 v{st+2}, v{ra}, v{qb}
v_add_f32 v{qa}, {fl(1e-5)}, v{qa}
v_mov_b32 v{st}, v{sa}
v_rsq_f32 v{st+3}, v{qa}
v_mul_f32 v{st+1}, v{st+1}, v{qb}
v_readlane_b32 s48, v{one}, 16
v_readlane_b32 s49, v{one}, 48
v_readlane_b32 s50, v{nb}, 16
v_readlane_b32 s51, v{nb}, 48
v_mul_f32 v{zc}, v{st+3}, v{one}''')
        pk = V(4, 4)
        if mode != 5:
            k(f'''v_mul_f32 v{sb}, v{sa}, v{zc}
v_readlane_b32 s52, v{zc}, 16
v_readlane_b32 s53, v{zc}, 48
v_readlane_b32 s54, v{sb}, 16
v_readlane_b32 s55, v{sb}, 48''')
            fv = V(8); t0 = V(); t1 = V()
            k(f'v_mov_b32 v{vt}, s54\nv_add_f32 v{vt}, s55, v{vt}')
            for i in range(8):
                k(f'v_fma_f32 v{fv+i}, v{a+i}, s52, -v{vt}\nv_fmac_f32 v{fv+i}, s53, v{b+i}')
                if i == 0: k(f'ds_bpermute_b32 v{fv}, v{bpf}, v{fv}')
            def sel(dst, i):
                if i == 4: return fv + 4
                k(f'v_cndmask_b32 v{dst}, v{fv+i}, v{fv+8-i}, s[44:45]'); return dst
            for i in (1, 2, 3):
                lo = sel(t0, 2*i); hi = sel(t1, 2*i+1)
                k(f'v_cvt_pk_f16_f32 v{pk+i}, v{lo}, v{hi}')
            hi = sel(t1, 1)
            k(f'''ds_write2_b32 v{vqw}, v{pk+2}, v{pk+3} offset0:8 offset1:12
s_waitcnt lgkmcnt(1)
v_cvt_pk_f16_f32 v{pk}, v{fv}, v{hi}
ds_write2_b32 v{vqw}, v{pk}, v{pk+1} offset0:0 offset1:4''')
        if mode != 1:
            k(f'''v_and_b32 v{vt}, 32, v0
v_ashrrev_i32 v{one}, 31, v{st+2}
v_lshl_add_u32 v{vt}, v{vt}, 6, s23
v_or_b32 v{one}, 0x80000000, v{one}
v_lshrrev_b32 v{vt2}, 3, v0
v_xor_b32 v{one}, v{one}, v{st+2}
v_and_b32 v{vt2}, 60, v{vt2}
v_and_b32 v{one}, 0xfffff000, v{one}
s_cmp_eq_u32 s23, s24
s_cselect_b32 s36, 0, 0x10000
v_or_b32 v{one}, v{one}, v{vt}
s_cmp_lg_u32 s60, 0
s_cbranch_scc1 {name}_nokey{mode}
s_mov_b32 exec_lo, 0x10000
s_mov_b32 exec_hi, s36
ds_write_b32 v{vt2}, v{one} offset:{L_KEY}
s_mov_b64 exec, -1
{name}_nokey{mode}:''')
        if mode == 1:
            p2 = V(4, 4)
            k(f'''s_lshl_b32 s38, s2, 13
s_add_u32 s39, s38, 4096
v_mov_b32 v{p2+2}, s40
v_mov_b32 v{p2+3}, s40
s_waitcnt vmcnt(0) lgkmcnt(0)
v_mov_b32 v{pk+2}, s40
v_mov_b32 v{pk+3}, s40
s_barrier
ds_read_b64 {vr(pk,2)}, v{vqr} offset:{L_Q}
ds_read_b64 {vr(p2,2)}, v{vqr} offset:{L_Q+1024}
s_waitcnt lgkmcnt(1)
buffer_store_dwordx4 {vr(pk,4)}, v{vfa}, s[4:7], s38 offen {SC}
s_waitcnt lgkmcnt(0)
buffer_store_dwordx4 {vr(p2,4)}, v{vfa}, s[4:7], s39 offen {SC}''')
            return
        o1 = V(4, 4); o2 = V(4, 4); b0 = V(); n1 = V(); n2 = V()
        layer = mode // 2
        def resid():
            k(f'v_mov_b32 v{vt}, s50\nv_mov_b32 v{vt2}, s51')
            for i in range(8):
                k(f'v_fma_f32 v{b+i}, v{b+i}, s49, -v{vt2}')
                if i == 0: k(f'ds_bpermute_b32 v{b0}, v{bpm}, v{b}')
            for i in range(8): k(f'v_fma_f32 v{a+i}, v{a+i}, s48, -v{vt}')
            for i in range(4): k(f'v_cvt_pk_bf16_f32 v{o1+i}, v{a+2*i}, v{a+2*i+1}')
            for i in range(1, 4): k(f'v_cvt_pk_bf16_f32 v{o2+i}, v{b+8-2*i}, v{b+7-2*i}')
            k(f'''s_lshl_b32 s36, s22, 11
v_add_u32 v{vt}, s36, v{vod}
v_add_u32 v{vt2}, s36, v{vom}
ds_write_b128 v{vt}, {vr(o1,4)} offset:{L_TR}
v_lshl_add_u32 v{vt}, v{vl}, 4, s36
s_waitcnt lgkmcnt(1)
v_cvt_pk_bf16_f32 v{o2}, v{b0}, v{b+7}
ds_write_b128 v{vt2}, {vr(o2,4)} offset:{L_TR+1024}
v_lshlrev_b32 v{b0}, 4, v{vl}
ds_read_b128 {vr(o1,4)}, v{vt} offset:{L_TR}
ds_read_b128 {vr(o2,4)}, v{vt} offset:{L_TR+1024}''')
        if mode == 5: resid()
        k(f'''v_lshlrev_b32 v{vt}, 2, v{vn}
v_mov_b32 v{fg+2}, 0
v_mov_b32 v{fg}, s40
s_lshl_b32 s38, s2, 7
s_add_u32 s38, s38, {hex(KEY1 if mode == 3 else KEY2)}
s_waitcnt lgkmcnt(0)
s_barrier
ds_read_b32 v{fg+1}, v{vt} offset:{L_KEY}''')
        if mode == 3:
            k(f'ds_read_b128 {vr(pk,4)}, v{vqr2} offset:{L_Q}\ns_waitcnt lgkmcnt(0)\nbuffer_store_dwordx4 {vr(pk,4)}, v{vfa}, s[4:7], s61 offen {SC}')
        else: k('s_waitcnt lgkmcnt(0)')
        for m in XOR4[:3]:
            k(f'v_mov_b32_dpp v{n1}, v{fg+1} {m} {DPP}\nv_mov_b32_dpp v{n2}, v{fg+2} {m} {DPP}')
            top2_merge(k, fg+1, fg+2, n1, n2)
        k(f'''s_cmp_lg_u32 s22, 0
s_cbranch_scc1 {name}_nopub{mode}
s_mov_b64 exec, 1
buffer_store_dwordx4 {vr(fg,4)}, off, s[4:7], s38 {SC}
s_mov_b64 exec, -1
{name}_nopub{mode}:
v_readfirstlane_b32 s52, v{fg+1}
v_readfirstlane_b32 s53, v{fg+2}''')
        k.stamp(5 if mode == 3 else 11)
        if mode == 3: resid()
        k(f'''s_and_b32 s36, s23, 0x73f
s_mul_i32 s36, s36, {XP}
s_add_u32 s36, s36, {hex(X2 + (layer-1)*128*XP)}
s_waitcnt lgkmcnt(0)''')
        for sl in range(2):
            k(f'''s_and_b32 s37, s{52+sl}, 2047
s_cmp_lg_u32 s37, s23
s_cbranch_scc1 {name}_cd{mode}{sl}
s_bitcmp1_b32 s{52+sl}, 11
s_cbranch_scc1 {name}_cb{mode}{sl}
buffer_store_dwordx4 {vr(o1,4)}, v{b0}, s[4:7], s36 offen {SC}
s_mov_b64 exec, 0x10000
s_branch {name}_cs{mode}{sl}
{name}_cb{mode}{sl}:
buffer_store_dwordx4 {vr(o2,4)}, v{b0}, s[4:7], s36 offen {SC}
s_mov_b32 exec_lo, 0
s_mov_b32 exec_hi, 0x10000
{name}_cs{mode}{sl}:
buffer_store_dwordx4 {vr(st,4)}, off, s[4:7], s36 offset:1024 {SC}
s_mov_b64 exec, -1
{name}_cd{mode}{sl}:''')
            if sl == 0: k(f's_add_u32 s36, s36, {64*XP}')
        if mode == 5:
            if OPT['odel']: k(f's_sleep {OPT["odel"]}')
            k(f'''s_cmp_lg_u32 s60, 0
s_cbranch_scc1 {name}_noout
buffer_store_dwordx4 {vr(o1,4)}, v{b0}, s[16:19], s28 offen {SC}
s_cmp_eq_u32 s23, s24
s_cbranch_scc1 {name}_noout
buffer_store_dwordx4 {vr(o2,4)}, v{b0}, s[16:19], s29 offen {SC}
{name}_noout:''')

    def predelay():
        if OPT['drain']: k('s_waitcnt vmcnt(0)')
        if OPT['pre']: k(f's_sleep {OPT["pre"]}')
    def headsup(layer):
        k(f'''s_lshr_b32 s36, s2, 3
s_or_b32 s36, s36, s22
s_cbranch_scc1 {name}_hu{layer}
s_lshl_b32 s36, s2, 7
s_add_u32 s36, s36, {hex(HU + 1024*(layer-1))}
v_mov_b32 v{vt}, s40
s_mov_b64 exec, 1
buffer_store_dword v{vt}, off, s[4:7], s36 {SC}
s_mov_b64 exec, -1
{name}_hu{layer}:''')

    def col_consts():
        k.nv = T0 + 24
        fk = V(); fgf = V(); c = V(); s = V(); ang = V(); f1 = V(); f2 = V()
        def xaddr(dst, sh, nxt):
            k(f'''v_lshrrev_b32 v{vt}, {sh+3}, v0
v_mul_u32_u24 v{vt}, 144, v{vt}
v_bfe_u32 v{vt2}, v0, {sh}, 3
v_lshl_add_u32 v{vt}, v{vt2}, 4, v{vt}
v_and_b32 v{vt2}, {1 << (sh-1)}, v0
v_cmp_ne_u32 s[38:39], 0, v{vt2}
v_sub_u32 v{vt2}, 9328, v{vt}
v_mov_b32 v{c}, {1152*(4 >> sh)}
v_mov_b32 v{s}, {-1152*(4 >> sh)}
v_cndmask_b32 v{dst+1}, v{vt}, v{vt2}, s[38:39]
v_cndmask_b32 v{c}, v{c}, v{s}, s[38:39]
v_lshrrev_b32 v{s}, 6, v{vt}
v_add_u32 v{vt2}, 4544, v{vt}
v_cmp_eq_u32 vcc, 1, v{s}
v_cndmask_b32 v{vt}, v{vt}, v{vt2}, vcc
v_sub_u32 v{vt2}, 9328, v{vt}
v_sub_u32 v{dst}, 116, v{vt}
v_cmp_eq_u32 vcc, 0, v{s}
v_cndmask_b32 v{vt2}, v{vt2}, v{dst}, vcc
v_cndmask_b32 v{dst}, v{vt}, v{vt2}, s[38:39]''')
            if sh == 2: k(f'v_and_b32 v{vt}, 1, v0\nv_lshl_add_u32 v{dst}, v{vt}, 3, v{dst}\nv_lshl_add_u32 v{dst+1}, v{vt}, 3, v{dst+1}')
            k(f'v_add_u32 v{dst}, {L_X}, v{dst}')
            for i in range(nxt): k(f'v_add_u32 v{dst+1+i}, v{dst+max(i,1)}, v{c}')
        xaddr(xa, 2, 3); xaddr(xa+4, 1, 1)
        k(f'''v_lshrrev_b32 v{vt}, 2, v0
v_and_b32 v{vt2}, 3, v0
v_lshlrev_b32 v{vt}, 13, v{vt}
v_lshl_add_u32 v{vq1}, v{vt2}, 4, v{vt}
v_lshrrev_b32 v{vt}, 1, v0
v_and_b32 v{vt2}, 1, v0
v_lshlrev_b32 v{vqr2}, 4, v{vt}
v_lshl_add_u32 v{vqr2}, v{vt2}, 11, v{vqr2}
v_lshlrev_b32 v{vt}, 12, v{vt}
v_lshl_add_u32 v{vq2}, v{vt2}, 4, v{vt}
v_mul_u32_u24 v{va}, 144, v{vn}
v_lshl_add_u32 v{va}, v{vg}, 5, v{va}
v_add_u32 v{vt}, s26, v{vn}
v_cvt_f32_u32 v{fk}, v{vt}
v_cvt_f32_u32 v{fgf}, v{vg}
v_mul_f32 v{f1}, {fl(1/64)}, v{fk}
v_add_f32 v{f2}, v{f1}, v{f1}
v_mul_f32 v{vt2}, {fl(16.0)}, v{fgf}
v_mul_f32 v{vt2}, v{vt2}, v{f1}''')
        for hi in range(2):
            k(f'v_add_f32 v{ang}, v{vt2}, v{f1}' if hi else f'v_mov_b32 v{ang}, v{vt2}')
            for half in range(2):
                for r in range(4):
                    if half or r: k(f'v_add_f32 v{ang}, v{ang}, v{f2}')
                    o = CB1 + 16*hi + 8*half
                    k(f'v_cos_f32 v{c}, v{ang}\nv_sin_f32 v{s}, v{ang}\nv_cvt_pk_f16_f32 v{o+r}, v{c}, v{s}\nv_cvt_pk_f16_f32 v{o+4+r}, -v{s}, v{c}')
        k(f'''v_mul_f32 v{f1}, {fl(1/2048)}, v{fk}
v_mul_f32 v{fgf}, 4.0, v{fgf}
s_mov_b32 s38, {fl(0.125)}
s_mov_b32 s39, {fl(13.0)}
v_mul_f32 v{ang}, v{fgf}, v{f1}''')
        for T in range(2):
            for r in range(4):
                if r: k(f'v_add_f32 v{ang}, v{ang}, v{f1}')
                elif T: k(f'v_fmac_f32 v{ang}, s39, v{f1}')
                k(f'v_cos_f32 v{c}, v{ang}\nv_sin_f32 v{s}, v{ang}\nv_mul_f32 v{CTW+8*T+2*r}, s38, v{c}\nv_mul_f32 v{CTW+8*T+2*r+1}, s38, v{s}')
        k(f'''v_lshl_add_u32 v{vt}, s27, 4, v{vn}
v_cvt_f32_u32 v{fk}, v{vt}
v_mul_f32 v{f1}, {fl(1/32)}, v{fk}
v_mul_f32 v{ang}, v{fgf}, v{f1}''')
        for T in range(2):
            for r in range(4):
                if r: k(f'v_add_f32 v{ang}, v{ang}, v{f1}')
                elif T: k(f'v_fmac_f32 v{ang}, s39, v{f1}')
                o = CA2 + 4*T
                k(f'v_cos_f32 v{c}, v{ang}\nv_sin_f32 v{s}, v{ang}\nv_cvt_pk_f16_f32 v{o+r}, v{c}, v{s}\nv_cvt_pk_f16_f32 v{o+8+r}, -v{s}, v{c}')

    def col_phase(tag, Qo, Uo):
        k.nv = T0
        X = V(32, 4); D1 = V(16, 4); Bd = V(8, 4); D2 = V(8, 4)
        G = X
        if Qo == Q2:
            k(f'''s_and_b32 s36, s20, 31
s_cbranch_scc1 {name}_nospec
s_xor_b32 s36, s20, 32
s_lshl_b32 s36, s36, 4
s_add_u32 s36, s36, {hex(U1+16)}''')
            gather(k, f'{name}_gsp', f'buffer_load_dword v{G}, v{vp}, s[4:7], s36 offen {SC}', f'v_cmp_eq_u32 vcc, -1, v{G}')
            k(f's_barrier\n{name}_nospec:')
        predelay()
        if Qo == Q1:
            k(f's_lshl_b32 s48, s3, 6')
            for i in range(1, 5): k(f's_add_u32 s{48+i}, s48, {hex(64*8192*i)}')
            ld = [f'buffer_load_dwordx3 {vr(G+4*i,3)}, v{vq1}, s[4:7], s{48+i} offen {SC}' for i in range(4)]
            lx = f'buffer_load_dwordx3 {vr(G+16,3)}, off, s[4:7], s52 {SC}'; cx = ck_tag(vt, [G+18])
            k(f's_cmp_lg_u32 s22, 3\ns_cbranch_scc1 {name}_e1{tag}\n{lx}\n{name}_e1{tag}:')
            gather(k, f'{name}_gq1', '\n'.join(ld), ck_tag(vt, [G+4*i+2 for i in range(4)]), OPT['sleep'])
            k.stamp(tag)
            k(f'ds_write2_b32 v{xa}, v{G}, v{G+1} offset0:0 offset1:1')
            for i in range(1, 4): k(f'ds_write_b64 v{xa+i}, {vr(G+4*i,2)} offset:{L_X}')
        else:
            k(f's_lshl_b32 s48, s3, 5\ns_add_u32 s48, s48, {hex(Q2)}')
            for i in range(1, 3): k(f's_add_u32 s{48+i}, s48, {hex(128*4096*i)}')
            ld = [f'buffer_load_dwordx4 {vr(G+4*i,4)}, v{vq2}, s[4:7], s{48+i} offen {SC}' for i in range(2)]
            lx = f'buffer_load_dword v{G+16}, off, s[4:7], s50 {SC}'; cx = f'v_cmp_eq_u32 vcc, -1, v{G+16}'
            k(f's_cmp_lg_u32 s22, 3\ns_cbranch_scc1 {name}_e1{tag}\n{lx}\n{name}_e1{tag}:')
            gather(k, f'{name}_gq2', '\n'.join(ld), ck_sent(vt, [G, G+4]), OPT['sleep'])
            k.stamp(tag)
            k(f'''ds_write2_b32 v{xa+4}, v{G}, v{G+1} offset0:0 offset1:1
ds_write2_b32 v{xa+4}, v{G+2}, v{G+3} offset0:2 offset1:3
ds_write_b128 v{xa+5}, {vr(G+4,4)} offset:{L_X}''')
        k(f's_cmp_lg_u32 s22, 3\ns_cbranch_scc1 {name}_e2{tag}')
        gather(k, f'{name}_gx{tag}', lx, cx, OPT['sleep'], '1', first=False)
        k(f'''ds_write_b32 v{va}, v{G+16} offset:{L_X+64}
s_mov_b64 exec, -1
{name}_e2{tag}:
s_cmp_eq_u32 s2, 256
s_waitcnt lgkmcnt(0)
s_barrier
s_cbranch_scc1 {name}_cx{tag}''')
        for T in range(2):
            for hi in range(2):
                for half in range(2):
                    q = T + 2*hi
                    k(f'ds_read_b128 {vr(X+16*T+8*hi+4*half,4)}, v{va} offset:{L_X + 16*half + 144*16*q}')
        for T in range(2):
            for kap in range(4):
                k(f's_waitcnt lgkmcnt({7-4*T-kap})')
                for z in range(2):
                    d = vr(D1+8*T+4*z, 4)
                    k(f'v_mfma_f32_16x16x32_f16 {d}, {vr(X+16*T+4*kap,4)}, {vr(CB1+8*kap+4*z,4)}, {d if kap else 0}')
        for T in range(2):
            for r in range(4):
                twiddle(k, D1+8*T+r, D1+8*T+4+r, CTW+8*T+2*r, CTW+8*T+2*r+1, vt, vt2, Bd+4*T+r)
            for z in range(2):
                d = vr(D2+4*z, 4)
                k(f'v_mfma_f32_16x16x32_f16 {d}, {vr(CA2+8*z+4*T,4)}, {vr(Bd+4*T,4)}, {d if T else 0}')
        k(f's_add_u32 s36, s41, {hex(Uo)}')
        for r in range(4): k(f'v_cvt_pk_f16_f32 v{X+r}, v{D2+r}, v{D2+4+r}')
        k(f'buffer_store_dwordx4 {vr(X,4)}, v{vst}, s[4:7], s36 offen {SC}')
        if Qo == Q1:
            for r in range(4): k(f'v_mov_b32 v{X+4+r}, -1')
            k(f's_add_u32 s37, s41, {hex(U2)}\nbuffer_store_dwordx4 {vr(X+4,4)}, v{vst}, s[4:7], s37 offen {SC}')
        k(f's_branch {name}_cy{tag}\n{name}_cx{tag}:\ns_sleep {OPT["w256"]}\n{name}_cy{tag}:')

    def row_consts():
        k.nv = T0 + 24
        fe = V(); fgf = V(); c = V(); s = V(); ang = V(); f1 = V()
        k(f'''v_lshrrev_b32 v{vt}, 2, v{vn}
v_and_b32 v{vt2}, 3, v{vn}
v_lshl_add_u32 v{vt}, v{vt}, 3, v{vt2}
v_cvt_f32_u32 v{fe}, v{vt}
v_lshlrev_b32 v{vt}, 2, v{vg}
v_cvt_f32_u32 v{fgf}, v{vt}
s_mov_b32 s36, {fl(1/32)}
s_mov_b32 s37, {fl(0.25)}''')
        for h in range(2):
            if h: k(f'v_add_f32 v{fe}, 4.0, v{fe}')
            k(f'v_mul_f32 v{f1}, s36, v{fe}\nv_mul_f32 v{ang}, v{fgf}, v{f1}')
            for r in range(4):
                if r: k(f'v_add_f32 v{ang}, v{ang}, v{f1}')
                k(f'v_cos_f32 v{c}, v{ang}\nv_sin_f32 v{s}, v{ang}\nv_mul_f32 v{vt}, {fl(1/16)}, v{ang}')
                if r & 1: k(f'v_add_f32 v{vt}, s37, v{vt}')
                k(f'''v_cvt_pk_f16_f32 v{RB1+8*h+r}, v{c}, v{s}
v_cvt_pk_f16_f32 v{RB1+8*h+4+r}, -v{s}, v{c}
v_cos_f32 v{c}, v{vt}
v_sin_f32 v{s}, v{vt}
v_mul_f32 v{RTW+8*h+2*r}, s37, v{c}
v_mul_f32 v{RTW+8*h+2*r+1}, s37, v{s}''')
        k(f'v_cvt_f32_u32 v{f1}, v{vn}\nv_mul_f32 v{f1}, {fl(1/16)}, v{f1}\nv_mul_f32 v{ang}, v{fgf}, v{f1}')
        for r in range(4):
            if r: k(f'v_add_f32 v{ang}, v{ang}, v{f1}')
            k(f'v_cos_f32 v{c}, v{ang}\nv_sin_f32 v{s}, v{ang}\nv_cvt_pk_f16_f32 v{RB2+r}, v{c}, v{s}')
        k(f'''v_lshrrev_b32 v{vt}, 1, v{vn}
v_lshl_add_u32 v{vt}, v{vg}, 5, v{vt}
s_lshl_b32 s36, s22, 2
s_sub_u32 s37, {2048+12}, s36
s_cmp_eq_u32 s23, 0
s_cselect_b32 s37, s36, s37
s_cmp_eq_u32 s25, {8192+116}
s_cselect_b32 s21, 0, -1
v_lshl_add_u32 v{vra}, v{vt}, 4, s36
v_lshl_add_u32 v{vrb}, v{vt}, 4, s37
v_and_b32 v{vt}, 1, v0
v_cmp_eq_u32 s[46:47], 1, v{vt}
v_mov_b32 v{vt}, 0xbc003c00
v_mov_b32 v{vt2}, 0x3c00bc00
v_cndmask_b32 v{vsg}, v{vt}, v{vt2}, s[46:47]''')

    def u_load(tag, Uo, ug):
        k(f's_add_u32 s38, s25, {hex(Uo)}')
        predelay()
        gather(k, f'{name}_gu{tag}', f'buffer_load_dwordx4 {vr(ug,4)}, v{vp}, s[4:7], s38 offen {SC}', f'v_and_b32 v{ug+3}, s21, v{ug+3}\n' + ck_sent(vt, range(ug, ug+4)), OPT['sleep'])
        k(f'ds_write_b128 v{vfa}, {vr(ug,4)} offset:{L_U}')
    def u_read(u1, u2, extra=''):
        k(f'''s_waitcnt lgkmcnt(0)
s_barrier
{extra}
ds_read2_b32 {vr(u1,2)}, v{vra} offset0:0 offset1:32
ds_read2_b32 {vr(u2,2)}, v{vrb} offset0:0 offset1:32
ds_read2_b32 {vr(u1+2,2)}, v{vra} offset0:64 offset1:96
ds_read2_b32 {vr(u2+2,2)}, v{vrb} offset0:64 offset1:96
s_waitcnt lgkmcnt(0)''')
        for r in range(4): k(f'v_pk_fma_f16 v{u1+r}, v{u2+r}, v{vsg}, v{u1+r}')
    def hid_dft(u1):
        D1 = V(16, 4); A2 = V(8, 4); D2 = V(8, 4)
        for h in range(2):
            for z in range(2):
                k(f'v_mfma_f32_16x16x32_f16 {vr(D1+8*h+4*z,4)}, {vr(u1,4)}, {vr(RB1+8*h+4*z,4)}, 0')
        k(f'v_cvt_f32_f16 v{vt2}, v{u1}\ns_mov_b32 s54, {fl(16.0)}\nv_readlane_b32 s52, v{vt2}, 0')
        for h in range(2):
            for r in range(4):
                twiddle(k, D1+8*h+r, D1+8*h+4+r, RTW+8*h+2*r, RTW+8*h+2*r+1, vt, vt2, A2+4*h+r)
            k(f'v_mfma_f32_16x16x32_f16 {vr(D2+4*h,4)}, {vr(A2+4*h,4)}, {vr(RB2,4)}, 0')
        k(f'''v_readlane_b32 s53, v{D2}, 0
v_mov_b32 v{vt2}, s52
v_mul_f32 v{vt2}, -4.0, v{vt2}
v_mov_b32 v{vt}, s53
v_mul_f32 v{vt}, {fl(-16.0)}, v{vt}
v_add_f32 v{vt2}, v{vt2}, v{vt}''')
        for i in range(8):
            k(f'''v_fma_f32 v{D2+i}, v{D2+i}, s54, v{vt2 if i & 1 else vt}
v_add_f32 v{a+i}, v{a+i}, v{D2+i}
v_add_f32 v{b+i}, v{b+i}, v{D2+i}''')

    k(f'v_mov_b32 v{vt}, 0\nv_lshlrev_b32 v{vt2}, 2, v{vn}\nds_write_b32 v{vt2}, v{vt} offset:{L_KEY}')
    col_consts()
    if OPT['prio']: k(f's_cmp_lg_u32 s60, 0\ns_cbranch_scc1 {name}_pr\ns_setprio 2\n{name}_pr:')
    k('s_waitcnt vmcnt(4) lgkmcnt(0)\ns_mul_i32 s40, s40, 0x9e3779b1\ns_add_u32 s40, s40, 0x7f4a7c15')
    k.stamp(2)
    unpack_direct(k, a, xd); unpack_mirror(k, b, xm, xm0)
    stats_and_out(1)
    k.stamp(3)
    k(f'''s_mul_i32 s36, s23, {XP}
s_add_u32 s36, s36, {hex(X2)}
buffer_store_dwordx4 {vr(cl,4)}, v{vfa}, s[4:7], s61 offen {SC}
v_lshlrev_b32 v{vt}, 4, v{vl}
buffer_store_dwordx4 {vr(cl,4)}, v{vt}, s[4:7], s36 offen {SC}
s_mov_b64 exec, 1
buffer_store_dwordx4 {vr(cl,4)}, off, s[4:7], s36 offset:1024 {SC}
s_mov_b64 exec, -1
s_sub_u32 s36, s2, 8
s_cmp_ge_u32 s36, 9
s_cbranch_scc1 {name}_clr4
s_lshl_b32 s36, s36, 12
s_add_u32 s36, s36, {hex(H1)}
buffer_store_dwordx4 {vr(cl,4)}, v{vfa}, s[4:7], s36 offen {SC}
{name}_clr4:''')
    unpack_direct(k, wa, wd); unpack_mirror(k, wb, wm, wm0)
    row_consts()
    k(f'v_add_f32 v{sw}, v{wa}, v{wa+1}')
    for i in range(2, 8): k(f'v_add_f32 v{sw}, v{sw}, v{wa+i}')
    k(f'v_mov_b32 v{vt}, v{sw}'); merge(k, sw, vt); red_half(k, [sw])
    k.stamp(7)
    col_phase(4, Q1, U1)
    k.stamp(6)
    k.nv = T0
    u1 = V(4, 4); u2 = V(4, 4)
    u_load('a', U1, u1)
    k.stamp(8)
    headsup(1)
    u_read(u1, u2)
    hid_dft(u1)
    stats_and_out(3)
    k.stamp(9)
    col_phase(10, Q2, U2)
    k.stamp(12)
    k.nv = T0
    u1 = V(4, 4); u2 = V(4, 4)
    OA = V(16, 4); up = V(16, 4); m1 = V(); m2 = V(); n1 = V(); n2 = V(); cs = V(4); vo = V(2); vup = V()
    k(f'v_lshlrev_b32 v{vup}, 7, v0')
    poll_keys(k, name, 1, vup, fg, fx, vt, 1)
    k(f'v_lshrrev_b32 v{vt}, 1, v{vfa}\nv_mov_b32 v{fg}, v{fg+2}\nds_write_b64 v{vt}, {vr(fg,2)} offset:{L_KT}\ns_waitcnt lgkmcnt(0)\ns_barrier')
    k(f'v_lshlrev_b32 v{vt}, 4, v{vl}\nds_read_b128 {vr(OA,4)}, v{vt} offset:{L_KT}\nds_read_b128 {vr(OA+4,4)}, v{vt} offset:{L_KT+1024}\ns_waitcnt lgkmcnt(0)')
    k(f'v_mov_b32 v{m1}, v{OA+1}\nv_mov_b32 v{m2}, v{OA}')
    for i in (2, 4, 6): top2_merge(k, m1, m2, OA+i+1, OA+i)
    top2_wave(k, m1, m2, n1, n2)
    k(f'v_med3_u32 v{m2}, v{m1}, v{m2}, v{fx+1}\nv_max_u32 v{m1}, v{m1}, v{fx+1}')
    k(f'''s_mov_b32 s36, {L_UD}
v_readfirstlane_b32 s56, v{m1}
v_readfirstlane_b32 s57, v{m2}
v_lshlrev_b32 v{vo}, 7, v{vg}
v_lshl_add_u32 v{vo}, v{vn}, 1, v{vo}
v_sub_u32 v{vo+1}, 928, v{vo}
v_cmp_eq_u32 vcc, 0, v{vl}
v_mov_b32 v{n1}, 512
v_add_u32 v{n2}, 96, v{vo+1}
v_cndmask_b32 v{n1}, v{vo}, v{n1}, vcc
v_and_b32 v{n2}, 1023, v{n2}
v_lshrrev_b32 v{vup}, 3, v0
v_lshlrev_b32 v{vup}, 7, v{vup}
v_and_b32 v{vt}, 3, v0
v_lshl_add_u32 v{vup}, v{vt}, 5, v{vup}
v_and_b32 v{vt}, 4, v0
v_add3_u32 v{vup}, v{vup}, v{vt}, s36''')
    sel_decode(k, 1, True)
    k(f'''s_cmp_ge_u32 s22, 2
s_cselect_b32 s36, s43, s42
v_lshrrev_b32 v{m1}, 1, v{vfa}
v_and_b32 v{m2}, 1023, v{m1}''')
    ld = [f'buffer_load_dwordx4 {vr(up+4*j,4)}, off, s[4:7], s{42+j} offset:1024 {SC}' for j in range(2)]
    ld.append(f'buffer_load_dwordx2 {vr(up+8,2)}, v{m2}, s[4:7], s36 offen {SC}')
    gather(k, f'{name}_go', '\n'.join(ld), ck_sent(vt, [up, up+4, up+8]), 1)
    k(f'ds_write_b64 v{m1}, {vr(up+8,2)} offset:{L_OLD}')
    for i in range(16): k(f'v_mov_b32 v{OA+i}, 0')
    k('s_waitcnt lgkmcnt(0)\ns_barrier')
    for j in range(2):
        o = L_OLD + 1024*j
        k(f'ds_read_u16_d16_hi v{OA+8*j}, v{n1} offset:{o}')
        for r in range(1, 4): k(f'ds_read_u16_d16_hi v{OA+8*j+r}, v{vo} offset:{o+32*r}')
        k(f'ds_read_u16_d16_hi v{OA+8*j+4}, v{n2} offset:{o}')
        for r in range(1, 4): k(f'ds_read_u16_d16_hi v{OA+8*j+4+r}, v{vo+1} offset:{o+96-32*r}')
    k(f'''s_mul_i32 s36, s56, s23
s_mul_i32 s37, s57, s23
s_and_b32 s36, s36, 2047
s_and_b32 s37, s37, 2047
v_cvt_f32_u32 v{cs}, s36
v_cvt_f32_u32 v{cs+2}, s37
v_mul_f32 v{cs}, {fl(1/2048)}, v{cs}
v_mul_f32 v{cs+2}, {fl(1/2048)}, v{cs+2}
v_sin_f32 v{cs+1}, v{cs}
v_sin_f32 v{cs+3}, v{cs+2}
v_cos_f32 v{cs}, v{cs}
v_cos_f32 v{cs+2}, v{cs+2}''')
    for i in range(4): k(f'v_mul_f32 v{cs+i}, {fl(0.25)}, v{cs+i}')
    OB = V(16)
    k('s_waitcnt lgkmcnt(0)')
    for j in range(2):
        for i in range(8):
            o = OA + 8*j + i
            k(f'v_sub_f32 v{OB+8*j+i}, v{o}, v{up+4*j}\nv_mul_f32 v{OB+8*j+i}, v{OB+8*j+i}, v{up+4*j+3}')
    for r in (vo, vo+1, n1, n2): k(f'v_lshlrev_b32 v{r}, 2, v{r}')
    k.stamp(13)
    u_load('b', U2, u1)
    k.stamp(14)
    k(f's_mov_b32 s36, {hex(UPD)}')
    gather(k, f'{name}_gup', f'buffer_load_dwordx4 {vr(up,4)}, v{vfa}, s[4:7], s36 offen {SC}', ck_sent(vt, range(up, up+4)), OPT['sleep'])
    k(f'ds_write2_b32 v{vup}, v{up}, v{up+1} offset0:0 offset1:2\nds_write2_b32 v{vup}, v{up+2}, v{up+3} offset0:4 offset1:6')
    headsup(2)
    rd = [f'ds_read_b64 {vr(up,2)}, v{n1} offset:{L_UD}'] + [f'ds_read_b64 {vr(up+2*r,2)}, v{vo} offset:{L_UD+128*r}' for r in range(1, 4)]
    rd += [f'ds_read_b64 {vr(up+8,2)}, v{n2} offset:{L_UD}'] + [f'ds_read_b64 {vr(up+8+2*r,2)}, v{vo+1} offset:{L_UD+384-128*r}' for r in range(1, 4)]
    u_read(u1, u2, '\n'.join(rd))
    k.stamp(15)
    for i in range(8): k(f'v_add_f32 v{OA+i}, v{OA+i}, v{up+2*i}\nv_add_f32 v{OA+8+i}, v{OA+8+i}, v{up+2*i+1}')
    sa, qa, sb, qb = m1, m2, n1, n2
    for (S_, Q_, base) in ((sa, qa, OA), (sb, qb, OA+8)):
        k(f'v_add_f32 v{S_}, v{base}, v{base+1}\nv_mul_f32 v{Q_}, v{base}, v{base}')
        for i in range(1, 8):
            if i > 1: k(f'v_add_f32 v{S_}, v{S_}, v{base+i}')
            k(f'v_fmac_f32 v{Q_}, v{base+i}, v{base+i}')
    merge(k, sa, sb); merge(k, qa, qb)
    red_half(k, [sa, qa])
    k(f'''v_mul_f32 v{sa}, {fl(1/512)}, v{sa}
v_mul_f32 v{qa}, {fl(1/512)}, v{qa}
v_fma_f32 v{qa}, -v{sa}, v{sa}, v{qa}
v_max_f32 v{qa}, 0, v{qa}
v_add_f32 v{qa}, {fl(1e-5)}, v{qa}
v_rsq_f32 v{qa}, v{qa}
v_cmp_eq_u32 vcc, 0, v{vl}
v_mul_f32 v{sa}, v{sa}, v{qa}
v_readlane_b32 s48, v{qa}, 16
v_readlane_b32 s49, v{qa}, 48
v_readlane_b32 s50, v{sa}, 16
v_readlane_b32 s51, v{sa}, 48''')
    for j in range(2):
        A_ = OA + 8*j; B_ = OB + 8*j
        for i in range(8): k(f'v_fma_f32 v{A_+i}, v{A_+i}, s{48+j}, -v{B_+i}')
        k(f'v_cndmask_b32 v{A_+4}, v{A_+4}, v{A_}, vcc\nv_mov_b32 v{vt}, s{50+j}')
        for i in range(4):
            k(f'v_add_f32 v{B_+i}, v{A_+i}, v{A_+4+i}\nv_sub_f32 v{B_+4+i}, v{A_+i}, v{A_+4+i}\nv_fma_f32 v{B_+i}, v{vt}, -2.0, v{B_+i}')
    for i in range(4):
        k(f'''v_mul_f32 v{OB+i}, v{OB+i}, v{cs}
v_mul_f32 v{OB+4+i}, v{OB+4+i}, v{cs+1}
v_fmac_f32 v{OB+i}, v{OB+8+i}, v{cs+2}
v_fmac_f32 v{OB+4+i}, v{OB+12+i}, v{cs+3}
v_cndmask_b32 v{vt}, v{OB+i}, v{OB+4+i}, s[46:47]
v_cndmask_b32 v{vt2}, -v{OB+4+i}, v{OB+i}, s[46:47]
v_cvt_pk_f16_f32 v{vt}, v{vt}, v{vt2}
v_pk_add_f16 v{u1+i}, v{u1+i}, v{vt}''')
    k(f'''s_cmp_eq_u32 s56, s23
s_cselect_b32 s36, 1, 0
s_cmp_eq_u32 s56, s24
s_cselect_b32 s37, 1, 0
s_cmp_eq_u32 s57, s23
s_cselect_b32 s38, 1, 0
s_cmp_eq_u32 s57, s24
s_cselect_b32 s39, 1, 0
s_or_b32 s48, s36, s37
s_or_b32 s49, s38, s39
s_or_b32 s48, s48, s49
s_cbranch_scc0 {name}_noown
v_lshlrev_b32 v{m1}, 2, v{vod}
v_sub_u32 v{m2}, {4096-56}, v{m1}
v_lshlrev_b32 v{n1}, 2, v{vom0}
v_cvt_f32_u32 v{cs}, s36
v_cvt_f32_u32 v{cs+1}, s37
v_cvt_f32_u32 v{cs+2}, s38
v_cvt_f32_u32 v{cs+3}, s39''')
    for i in range(4): k(f'ds_read_b128 {vr(OA+4*i,4)}, v{m1} offset:{L_UD+16*i}')
    k(f'ds_read_b64 {vr(up,2)}, v{n1} offset:{L_UD}')
    for i in range(1, 8): k(f'ds_read_b64 {vr(up+2*i,2)}, v{m2} offset:{L_UD+56-8*i}')
    k('s_waitcnt lgkmcnt(0)')
    for i in range(8):
        for (row, src, o) in ((a, OA, 0), (b, up, 1)):
            k(f'v_fmac_f32 v{row+i}, v{src+2*i}, v{cs+o}\nv_fmac_f32 v{row+i}, v{src+2*i+1}, v{cs+2+o}')
    k.lab(f'{name}_noown')
    k.nv = T0 + 8
    hid_dft(u1)
    stats_and_out(5)
    k(f'''s_or_b32 s36, s2, s22
s_cbranch_scc1 {name}_noep
v_mov_b32 v{vt}, s40
v_mov_b32 v{vt2}, 0
s_mov_b32 s36, {hex(EPOCH)}
buffer_store_dword v{vt}, v{vt2}, s[4:7], s36 offen {SC}''')
    k.lab(f'{name}_noep')
    k(f'''s_cmp_lg_u32 s22, 0
s_waitcnt vmcnt(0)
s_barrier
s_cbranch_scc1 {name}_fin
s_mov_b64 exec, 1
buffer_store_dword v{fg}, off, s[4:7], s38 offset:64 {SC}
{name}_fin:''')
    k.endpgm()


def ffn_role(k, name):
    k.nv = 1
    V = k.v
    vl = V(); vn = V(); vg = V(); vt = V(); vt2 = V(); vw = V(); vtr = V(); vlw = V(); vky = V(); vo = V(); vro = V()
    fg = V(4, 4); fx = V(2, 2); m1 = V(2, 2); m2 = m1 + 1; n1 = V(); n2 = V(); old = V(4, 2)
    st = V(4, 4); Fr = V(56, 4); Wt = V(56, 4); Af = Wt; D = V(8, 4); R_ = V(32, 4); CS = V(8, 4)
    RED = 57344
    NF = OPT['nf']
    k(f"""v_and_b32 v{vl}, 63, v0
v_and_b32 v{vn}, 15, v0
v_bfe_u32 v{vg}, v0, 4, 2
v_lshlrev_b32 v{vky}, 7, v0
s_and_b32 s20, s3, 7
s_bfe_u32 s21, s3, 0x20003
v_lshrrev_b32 v{vt}, 1, v{vl}
v_and_b32 v{vt2}, 1, v{vl}
v_cmp_eq_u32 s[52:53], 1, v{vt2}
v_lshlrev_b32 v{vt2}, 4, v{vt2}
v_lshlrev_b32 v{vtr}, 8, v{vg}
v_lshl_add_u32 v{vtr}, v{vn}, 3, v{vtr}
v_lshlrev_b32 v{vlw}, 4, v{vl}
v_cmp_gt_u32 s[54:55], 2, v{vn}
s_lshl_b32 s61, s20, 7
s_add_u32 s61, s61, {hex(HU)}
s_mov_b32 s27, {fl(-1.4426950408889634)}
s_waitcnt lgkmcnt(0)
s_add_u32 s38, s30, {hex(EPOCH)}
s_addc_u32 s39, s31, 0
s_load_dword s40, s[38:39], 0""")
    k.stamp(1)
    srd(k, 4, 30, WS_BYTES); srd(k, 8, 58, 2048*1024)
    if OPT['fdel']: k(f's_sleep {OPT["fdel"]}')
    k(f's_cmp_ge_u32 s3, 128\ns_cbranch_scc1 {name}_cons')

    def select(layer, role):
        nm = f'{name}_{role}'
        gather(k, f'{nm}_g{layer}', f'buffer_load_dword v{fg}, off, s[4:7], s61 offset:{1024*(layer-1)} {SC}', ck_tag(0, [fg]), OPT['gsleep'])
        poll_keys(k, nm, layer, vky, fg, fx, vt, OPT['fsleep'])
        if OPT['prio']: k('s_setprio 3')
        k.stamp(3 + 6*(layer-1))
        k(f'v_mov_b32 v{m1}, v{fg+1}\nv_mov_b32 v{m2}, v{fg+2}')
        top2_row(k, m1, m2, n1, n2)
        k(f"""v_lshrrev_b32 v{vt}, 4, v0
v_lshlrev_b32 v{vt}, 3, v{vt}
v_lshlrev_b32 v{vt2}, 3, v{vn}
ds_write_b64 v{vt}, {vr(m1,2)} offset:{RED}
s_waitcnt lgkmcnt(0)
s_barrier
ds_read_b64 {vr(m1,2)}, v{vt2} offset:{RED}
s_waitcnt lgkmcnt(0)""")
        top2_row(k, m1, m2, n1, n2)
        k(f"""v_med3_u32 v{m2}, v{m1}, v{m2}, v{fx+1}
v_max_u32 v{m1}, v{m1}, v{fx+1}
v_and_b32 v{n2}, 0x73f, v{m2}
v_and_b32 v{n1}, 0x73f, v{m1}
v_add_u32 v{vt}, 64, v{n2}
v_cmp_eq_u32 vcc, v{n1}, v{n2}
s_mov_b32 s36, {hex(X2 + (layer-1)*128*XP)}
v_cndmask_b32 v{n2}, v{n2}, v{vt}, vcc
v_cndmask_b32 v{n1}, v{n1}, v{n2}, s[52:53]
v_mul_u32_u24 v{vro}, {XP}, v{n1}""")
        k.stamp(4 + 6*(layer-1))
    def prefetch(rows_per_wave, pitch):
        if OPT['pref'] == 2:
            k(f'v_lshlrev_b32 v{vo}, 6, v{vl}\ns_lshr_b32 s36, s23, 3\ns_add_u32 s36, s36, s22\ns_mul_i32 s36, s36, {128*rows_per_wave}')
            return
        k(f"""v_mul_u32_u24 v{vo}, 3, v{vt2}
v_add_u32 v{vo}, v{vo}, v{vw}
s_lshl_b32 s36, s21, 2
s_add_u32 s36, s36, s22
s_mul_i32 s36, s36, {rows_per_wave*pitch}
s_andn2_b32 s37, s23, 127
s_add_u32 s36, s36, s37""")

    k(f"""s_lshr_b32 s23, s3, 5
s_lshl_b32 s23, s23, 3
s_add_u32 s23, s23, s20
s_cmp_ge_u32 s23, 28
s_cbranch_scc1 {name}_end
s_lshl_b32 s23, s23, 7
s_lshl_b32 s24, s21, 5
s_add_u32 s23, s23, s24
s_mul_i32 s24, s22, {128*3584}
s_add_u32 s24, s24, s23
s_mov_b32 s25, 3584
v_mad_u32_u24 v{vw}, v{vt}, s25, v{vt2}""")
    srd(k, 12, 46, 512*3584); srd(k, 16, 48, 512*3584)
    if OPT['pref']:
        prefetch(32, 3584)
        trickle(k, f'buffer_load_dword v{Wt}, v{vo}, s[12:15], s36 offen', f'buffer_load_dword v{Wt+1}, v{vo}, s[16:19], s36 offen')
        k.stamp(7)
        wait_until(k, f'{name}_wp', OPT['tp'])
        k.stamp(8)
    for kap in range(4):
        k(f'buffer_load_dwordx4 {vr(Wt+4*kap,4)}, v{vw}, s[12:15], s24 offen\ns_waitcnt vmcnt({NF-1})')
        k(f'buffer_load_dwordx4 {vr(Wt+16+4*kap,4)}, v{vw}, s[16:19], s24 offen\ns_waitcnt vmcnt({NF-1})')
        if kap < 3: k(f's_add_u32 s24, s24, {32*3584}')
    k(f"""s_lshl_b32 s25, s22, 13
v_add_u32 v{vtr}, s25, v{vtr}
v_add_u32 v{vlw}, s25, v{vlw}
s_waitcnt vmcnt(0)""")
    for i in range(8): k(f'ds_write_b128 v{vlw}, {vr(Wt+4*i,4)} offset:{1024*i}')
    k('s_waitcnt lgkmcnt(0)\ns_mul_i32 s40, s40, 0x9e3779b1\ns_add_u32 s40, s40, 0x7f4a7c15')
    for i in range(8):
        for u in range(2): k(f'ds_read_b64_tr_b16 {vr(Fr+4*i+2*u,2)}, v{vtr} offset:{1024*i+128*u}')
    for i in range(16): k(f'v_mov_b32 v{Af+i}, 0x3f803f80')
    k(f"""v_lshlrev_b32 v{vo}, 5, v{vn}
v_lshl_add_u32 v{vo}, v{vg}, 3, v{vo}
v_lshlrev_b32 v{vtr}, 6, v{vn}
v_lshl_add_u32 v{vtr}, v{vg}, 4, v{vtr}
s_lshl_b32 s26, s22, 8
v_add_u32 v{vlw}, s26, v{vtr}
v_lshl_add_u32 v{vw}, v{vg}, 4, s26
s_lshl_b32 s23, s23, 2
s_waitcnt lgkmcnt(0)""")
    for kap in range(4):
        for mat in range(2):
            d = vr(CS+4*mat, 4)
            k(f'v_mfma_f32_16x16x32_bf16 {d}, {vr(Fr+16*mat+4*kap,4)}, {vr(Af,4)}, {d if kap else 0}')
    k.stamp(2)
    for layer in (1, 2):
        select(layer, 'p')
        k(f'v_add_u32 v{vt2}, v{vro}, v{vw}\ns_mov_b64 exec, s[54:55]')
        ld = [f'buffer_load_dwordx4 {vr(Af+4*kap,4)}, v{vt2}, s[4:7], s36 offen offset:{64*kap} {SC}' for kap in range(4)]
        ld.append(f'buffer_load_dwordx2 {vr(st,2)}, v{vro}, s[4:7], s36 offen offset:1024 {SC}')
        gather(k, f'{name}_gr{layer}', '\n'.join(ld), ck_sent(vt, [st] + [Af+4*i for i in range(4)]))
        k.stamp(5 + 6*(layer-1))
        for i in range(8): k(f'v_mul_f32 v{D+i}, -v{CS+i}, v{st}')
        for kap in range(4):
            for mat in range(2):
                d = vr(D+4*mat, 4)
                k(f'v_mfma_f32_16x16x32_bf16 {d}, {vr(Fr+16*mat+4*kap,4)}, {vr(Af+4*kap,4)}, {d}')
        k(f"""s_mov_b64 exec, s[54:55]
s_add_u32 s36, s23, {hex(H1 if layer == 1 else H2)}
s_cmp_lg_u32 s22, 0
ds_write_b128 v{vlw}, {vr(D,4)} offset:{RED+128}
ds_write_b128 v{vlw}, {vr(D+4,4)} offset:{RED+128+128}
v_mul_f32 v{n1}, s27, v{st+1}
v_mul_f32 v{n2}, v{st+1}, v{st+1}
s_waitcnt lgkmcnt(0)
s_barrier
s_cbranch_scc1 {name}_pn{layer}""")
        for i in range(2, 8): k(f'ds_read_b128 {vr(R_+4*i,4)}, v{vtr} offset:{RED+128+128*i}')
        for w in range(1, 4):
            k(f's_waitcnt lgkmcnt({6-2*w})')
            for i in range(8): k(f'v_add_f32 v{D+i}, v{D+i}, v{R_+8*w+i}')
        for r in range(4): k(f'v_mul_f32 v{R_+r}, v{n1}, v{D+r}')
        for r in range(4): k(f'v_exp_f32 v{R_+r}, v{R_+r}\nv_mul_f32 v{D+r}, v{D+r}, v{D+4+r}')
        for r in range(4): k(f'v_add_f32 v{R_+r}, 1.0, v{R_+r}')
        for r in range(4): k(f'v_rcp_f32 v{R_+r}, v{R_+r}\nv_mul_f32 v{D+r}, v{D+r}, v{n2}')
        for r in range(4): k(f'v_mul_f32 v{D+r}, v{D+r}, v{R_+r}')
        k(f"""v_cvt_pk_bf16_f32 v{m1}, v{D}, v{D+1}
v_cvt_pk_bf16_f32 v{m2}, v{D+2}, v{D+3}
buffer_store_dwordx2 {vr(m1,2)}, v{vo}, s[4:7], s36 offen {SC}""")
        k.lab(f'{name}_pn{layer}')
        k('s_mov_b64 exec, -1')
        if OPT['prio']: k('s_setprio 0')
        k.stamp(6 + 6*(layer-1))
    k.endpgm()
    k.lab(f'{name}_cons')
    k(f"""s_lshl_b32 s23, s20, 7
s_lshl_b32 s24, s21, 5
s_add_u32 s23, s23, s24
s_mul_i32 s24, s22, {448*1024}
s_add_u32 s24, s24, s23
v_lshl_add_u32 v{vw}, v{vt}, 10, v{vt2}""")
    srd(k, 12, 50, 1792*1024)
    k(f'''s_cmp_lt_u32 s3, 160
s_cbranch_scc1 {name}_cons2
s_sub_u32 s36, s3, 160
s_lshr_b32 s36, s36, 3
s_lshl_b32 s36, s36, 2
s_add_u32 s36, s36, s22
s_mul_i32 s36, s36, {41*1024}
s_lshl_b32 s37, s20, 7
s_add_u32 s36, s36, s37
s_add_u32 s37, s36, {21*1024}
v_mul_u32_u24 v{vo}, 3, v{vt2}
v_add_u32 v{vo}, v{vo}, v{vw}
''')
    trickle(k, f'buffer_load_dword v{Wt}, v{vo}, s[12:15], s36 offen', f'buffer_load_dword v{Wt+1}, v{vo}, s[12:15], s37 offen')
    k(f's_endpgm\n{name}_cons2:')
    wait_until(k, f'{name}_wc', OPT['tc'])
    k.stamp(8)
    NF = OPT['nfc']
    for kap in range(14):
        k(f'buffer_load_dwordx4 {vr(Wt+4*kap,4)}, v{vw}, s[12:15], s24 offen\ns_waitcnt vmcnt({NF-1})')
        if kap < 13: k(f's_add_u32 s24, s24, {32*1024}')
    k(f"""s_mul_i32 s25, s22, {14*1024}
v_add_u32 v{vtr}, s25, v{vtr}
v_add_u32 v{vlw}, s25, v{vlw}
s_waitcnt vmcnt(0)""")
    for i in range(14): k(f'ds_write_b128 v{vlw}, {vr(Wt+4*i,4)} offset:{1024*i}')
    k('s_waitcnt lgkmcnt(0)\ns_mul_i32 s40, s40, 0x9e3779b1\ns_add_u32 s40, s40, 0x7f4a7c15')
    for i in range(14):
        for u in range(2): k(f'ds_read_b64_tr_b16 {vr(Fr+4*i+2*u,2)}, v{vtr} offset:{1024*i+128*u}')
    for i in range(56): k(f'v_mov_b32 v{Af+i}, 0')
    k(f"""v_lshrrev_b32 v{vt}, 1, v{vg}
v_and_b32 v{vt2}, 1, v{vg}
v_lshlrev_b32 v{vw}, 7, v{vt}
v_lshl_add_u32 v{vw}, v{vt2}, 4, v{vw}
v_lshl_add_u32 v{vw}, v{vn}, 5, v{vw}
s_waitcnt lgkmcnt(0)
v_lshlrev_b32 v{vtr}, 6, v{vn}
v_lshl_add_u32 v{vtr}, v{vg}, 4, v{vtr}
s_lshl_b32 s26, s22, 7
v_add_u32 v{vlw}, s26, v{vtr}""")
    k.stamp(2)
    for layer in (1, 2):
        select(layer, 'c')
        k('s_mov_b64 exec, s[54:55]')
        ld = [f'buffer_load_dwordx4 {vr(st,4)}, v{vro}, s[4:7], s36 offen offset:1024 {SC}']; ck = [st, st+2]
        if layer == 2:
            k(f"""v_cndmask_b32 v{m1}, v{m1}, v{m2}, s[52:53]
s_add_u32 s38, s36, s23
v_lshl_add_u32 v{vt2}, v{vg}, 3, v{vro}
v_and_b32 v{n1}, 2047, v{m1}
v_sub_u32 v{n2}, 2048, v{n1}
v_and_b32 v{vt}, 2048, v{m1}
v_cmp_ne_u32 vcc, 0, v{vt}
v_and_b32 v{vl}, 63, v{n1}
v_cndmask_b32 v{vo}, v{n1}, v{n2}, vcc
v_lshlrev_b32 v{vo}, 10, v{vo}
v_lshl_add_u32 v{vo}, v{vg}, 3, v{vo}
v_cmp_eq_u32 vcc, 32, v{vl}
v_lshlrev_b32 v{vl}, 3, v{vl}
v_cndmask_b32 v{vl}, v{vl}, 4, vcc
v_lshrrev_b32 v{n2}, 8, v{n1}
v_add_u32 v{vl}, v{vl}, v{n2}
v_mov_b32 v{n2}, 256
v_cmp_eq_u32 vcc, 0x400, v{n1}
v_cndmask_b32 v{vl}, v{vl}, v{n2}, vcc
v_lshlrev_b32 v{vl}, 7, v{vl}""")
            ld.append(f'buffer_load_dwordx2 {vr(old,2)}, v{vt2}, s[4:7], s38 offen {SC}'); ck += [old, old+1]
        gather(k, f'{name}_gs{layer}', '\n'.join(ld), ck_sent(vt, ck), 1, 's[54:55]')
        k(f"""s_mul_i32 s26, s22, {28*128}
s_add_u32 s26, s26, {hex(H1 if layer == 1 else H2)}
v_mul_f32 v{n1}, s27, v{st+2}
v_exp_f32 v{n1}, v{n1}
v_and_b32 v{old+3}, 0xffff0000, v{old+1}
v_lshlrev_b32 v{old+2}, 16, v{old+1}
v_add_f32 v{n1}, 1.0, v{n1}
v_and_b32 v{old+1}, 0xffff0000, v{old}
v_lshlrev_b32 v{old}, 16, v{old}
v_rcp_f32 v{n1}, v{n1}""")
        if layer == 2:
            k(f's_mov_b32 s36, {hex(KEY2 + 64)}')
            gather(k, f'{name}_gd', f'buffer_load_dword v{fg}, v{vl}, s[4:7], s36 offen {SC}', ck_tag(0, [fg]), 1, 's[54:55]')
        ld = [f'buffer_load_dwordx4 {vr(Af+4*kap,4)}, v{vw}, s[4:7], s26 offen offset:{256*kap} {SC}' for kap in range(14)]
        if OPT['hpre']: k(f's_sleep {OPT["hpre"]}')
        gather(k, f'{name}_gh{layer}', '\n'.join(ld), ck_sent(vt, range(Af, Af+56, 2)))
        k.stamp(5 + 6*(layer-1))
        for kap in range(14):
            d = vr(D+4*(kap&1), 4)
            k(f'v_mfma_f32_16x16x32_bf16 {d}, {vr(Fr+4*kap,4)}, {vr(Af+4*kap,4)}, {d if kap > 1 else 0}')
        k(f's_lshl_b32 s36, s23, 2\ns_add_u32 s36, s36, {hex(UPD)}\ns_cmp_lg_u32 s22, 0')
        for r in range(4): k(f'v_add_f32 v{D+r}, v{D+r}, v{D+4+r}')
        k(f"""s_mov_b64 exec, s[54:55]
ds_write_b128 v{vlw}, {vr(D,4)} offset:{RED+128}
s_waitcnt lgkmcnt(0)
s_barrier
s_cbranch_scc1 {name}_cn{layer}""")
        for i in range(1, 4): k(f'ds_read_b128 {vr(R_+4*i,4)}, v{vtr} offset:{RED+128+128*i}')
        for w in range(1, 4):
            k(f's_waitcnt lgkmcnt({3-w})')
            for r in range(4): k(f'v_add_f32 v{D+r}, v{D+r}, v{R_+4*w+r}')
        if layer == 2:
            for r in range(4): k(f'v_fma_f32 v{D+r}, v{D+r}, v{n1}, v{old+r}')
            k(f"""v_cvt_pk_bf16_f32 v{m1}, v{D}, v{D+1}
v_cvt_pk_bf16_f32 v{m2}, v{D+2}, v{D+3}
buffer_store_dwordx2 {vr(m1,2)}, v{vo}, s[8:11], s23 offen""")
        else:
            for r in range(4): k(f'v_mul_f32 v{D+r}, v{D+r}, v{n1}')
            k(f'buffer_store_dwordx4 {vr(D,4)}, v{vtr}, s[4:7], s36 offen {SC}')
        k.lab(f'{name}_cn{layer}')
        k('s_mov_b64 exec, -1')
        if OPT['prio']: k('s_setprio 0')
        k.stamp(6 + 6*(layer-1))
    k.endpgm()

CPF = '''s_getpc_b64 s[62:63]
v_lshlrev_b32 v2, 7, v0
v_min_u32 v2, CODE_END, v2
global_load_dword v239, v2, s[62:63]'''
def build(name):
    k = K(name); k.kidx = 0
    k.stamp(0)
    k(f"""s_load_dwordx2 s[32:33], s[0:1], 0
s_load_dwordx2 s[30:31], s[0:1], 96
s_load_dwordx8 s[44:51], s[0:1], 48
s_load_dwordx2 s[58:59], s[0:1], 80
{CPF if OPT['cpf'] else ''}
v_lshrrev_b32 v1, 6, v0
s_sub_u32 s3, s2, {NMAIN}
v_readfirstlane_b32 s22, v1
s_cbranch_scc0 L_ffn""")
    k.dbgsel = [(0,0),(1,2),(2,3),(3,4),(4,6),(5,8),(6,9),(7,10),(8,12),(9,15),(10,16)]
    main_role(k, 'M')
    k.dbgsel = [(11,2),(12,3),(13,6),(14,9),(15,16)]
    k.lab('L_ffn')
    k(f's_cmp_ge_u32 s3, {NFFN}\ns_cbranch_scc1 F_end')
    k('s_memrealtime s[96:97]')
    ffn_role(k, 'F')
    k.lab('F_end'); k('s_endpgm')
    k(f'.set CODE_END, F_end - {name} - 64')
    return k

def emit(k, grid, lds, path, aslist):
    hdr = open('cdna_kernels/' + NAME + '.s.ref').read().split('\n')
    out = [l for l in hdr if l.startswith(';') and '@launch' not in l and 'Override launch' not in l and 'grid=ceil' not in l]
    out.append(f'; @launch {"kernel="+k.name+" " if aslist else ""}grid=({grid},1,1) block=(256,1,1) lds={lds}')
    out.append('.amdgcn_target "amdgcn-amd-amdhsa--gfx950"\n.text')
    out.append(f'.globl {k.name}\n.p2align 8\n.type {k.name},@function\n{k.name}:')
    L = k.L
    if OPT['now']:
        i0 = L.index('L_ffn:')
        def keep(l):
            if 's[12:15]' in l or 's[16:19]' in l:
                return not (OPT['now'] == 1 or (OPT['now'] == 2 and 'x4' in l) or (OPT['now'] == 3 and 'x4' not in l))
            return True
        L = L[:i0] + [l for l in L[i0:] if keep(l)]
    out += fix_hazards(L)
    out.append('.section .rodata,"a"')
    nv = (k.maxv + 7) // 8 * 8
    out.append(f""".p2align 6
.amdhsa_kernel {k.name}
  .amdhsa_next_free_vgpr {nv}
  .amdhsa_next_free_sgpr 102
  .amdhsa_accum_offset {nv}
  .amdhsa_group_segment_fixed_size 0
  .amdhsa_kernarg_size 104
  .amdhsa_user_sgpr_count 2
  .amdhsa_user_sgpr_kernarg_segment_ptr 1
  .amdhsa_system_sgpr_workgroup_id_x 1
.end_amdhsa_kernel""")
    open(path, 'w').write('\n'.join(out) + '\n')

if __name__ == '__main__':
    for a in sys.argv[2:]:
        if a == 'stamp': K.STAMP = True
        elif a == 'list': pass
        elif a == 'dbg': K.STAMP = True; K.DBG = True
        else:
            kk, vv = a.split('='); OPT[kk] = int(vv)
    K.NST = 17
    k = build(NAME + '_kernel')
    print('vgprs', k.maxv, 'instrs', len(k.L))
    emit(k, NMAIN + NFFN, 57344 + 2304, sys.argv[1], 'list' in sys.argv or 'stamp' in sys.argv)
```

```python
import sys, struct
from asmlib import *
from gen import fl, srd, red_half, merge, unpack_direct, unpack_mirror, DPP, NAME, PITCH
Q1, Q2, U1, U2 = 0x000000, 0x210000, 0x320000, 0x430000
X2, XP = 0x540000, 1152
KEY1, KEY2 = 0x780000, 0x790000
H1, H2, UPD = 0x7B0000, 0x7B4000, 0x7B8000
HU, EPOCH = 0x7C0000, 0x7C1000
WS_BYTES = 0x10000000
SC = 'sc0 sc1'
NMAIN, NFFN = 257, 248
KR1, KR2 = 0x800000, 0x940000
def krs(): return (257*OPT['kp'] + 127)//128*128 + 128*(1 - ((257*OPT['kp'] + 127)//128) % 2)
PG, PP = 0xA80000, 4352
def hpg(layer): return PG + PP*(OPT['ru'] + (layer-1)*4*OPT['rh'])
OPT = dict(tq1=0, tu1=0, tq2=0, p256=0, dsk=1, hpre2=14, u256=60, upre=420, osc=0, usleep=0, hsleep=0, hu=1, hdel=6, pk=0, pgap=5, ek=1, pu=0, kp=16, kr=4, kx=1, ru=32, rh=8, ro=1, ro5=1, qdel=10, sleep=0, fsleep=0, gsleep=4, nf=2, pref=1, drain=1, pre=0, cpf=1, fdel=20, odel=0, hpre=26, tp=400, tc=400, nfc=2, ns=2, now=0, w256=20, prio=1)
L_U, L_Q, L_KEY, L_UD, L_X, L_KT, L_TR, L_OLD = 0, 4096, 8192, 8448, 12544, 21760, 23808, 32000
XOR4 = ('quad_perm:[1,0,3,2]', 'quad_perm:[2,3,0,1]', 'row_half_mirror', 'row_mirror')

def gather(k, lab, loads, check, sleep=0, restore='-1', first=True):
    k('s_mov_b32 s37, 0x10000')
    if not first: k(f's_branch {lab}c')
    elif sleep: k(f's_branch {lab}')
    if sleep:
        k.lab(f'{lab}s'); k(f's_sleep {sleep}')
    k.lab(lab)
    k(loads)
    if not first: k.lab(f'{lab}c')
    k(f's_sub_u32 s37, s37, 1\ns_waitcnt vmcnt(0)'); k(check)
    k(f's_cbranch_scc1 {lab}x\ns_mov_b64 exec, vcc\ns_cbranch_vccnz {lab}{"s" if sleep else ""}')
    k.lab(f'{lab}x')
    k(f's_mov_b64 exec, {restore}')
def pgather(k, lab, loads, check, fin, np_, nl, gap):
    k('s_mov_b32 s37, 0x4000')
    for j in range(np_):
        k(loads(j))
        if j < np_ - 1 and gap: k(f's_sleep {gap}')
    k.lab(lab)
    for j in range(np_):
        k(f's_waitcnt vmcnt({(np_-1)*nl})'); k(check(j))
        k(f's_cbranch_vccz {lab}f{j}'); k(loads(j))
    k(f's_sub_u32 s37, s37, 1\ns_cbranch_scc0 {lab}\ns_waitcnt vmcnt(0)')
    for j in range(np_):
        k.lab(f'{lab}f{j}'); k(fin(j))
        if j < np_ - 1: k(f's_branch {lab}x')
    k.lab(f'{lab}x')
def ck_tag(t, regs):
    if len(regs) == 1: return f'v_cmp_ne_u32 vcc, s40, v{regs[0]}'
    o = [f'v_bitop3_b32 v{t}, v{regs[0]}, v{regs[1]}, s40 bitop3:0x7e']
    o += [f'v_bitop3_b32 v{t}, v{t}, v{r}, s40 bitop3:0xf6' for r in regs[2:]]
    return '\n'.join(o + [f'v_cmp_ne_u32 vcc, 0, v{t}'])
def ck_sent(t, regs, val='-1'):
    regs = list(regs); o = []
    if len(regs) % 2 == 0: o.append(f'v_max_u32 v{t}, v{regs[0]}, v{regs[1]}'); regs = regs[2:]
    else: o.append(f'v_max3_u32 v{t}, v{regs[0]}, v{regs[1]}, v{regs[2]}'); regs = regs[3:]
    for i in range(0, len(regs), 2): o.append(f'v_max3_u32 v{t}, v{t}, v{regs[i]}, v{regs[i+1]}')
    return '\n'.join(o + [f'v_cmp_eq_u32 vcc, {val}, v{t}'])
def poll_keys(k, name, layer, vky, fg, fx, t, sleep, sid, regs=0, early=0):
    KEY = KR1 if layer == 1 else KR2
    k(f's_and_b32 s36, {sid}, {OPT["kr"]-1}\ns_mul_i32 s36, s36, {krs()}\ns_add_u32 s36, s36, {hex(KEY)}\ns_add_u32 s38, s36, {256*OPT["kp"]}')
    if regs:
        pgather(k, f'{name}_pp{layer}', lambda j: f'buffer_load_dwordx3 {vr(regs+8*j,3)}, v{vky}, s[4:7], s36 offen {SC}\nbuffer_load_dwordx2 {vr(regs+8*j+4,2)}, off, s[4:7], s38 {SC}',
                lambda j: ck_tag(t, [regs+8*j, regs+8*j+4]), lambda j: f'v_mov_b32 v{fg+1}, v{regs+8*j+1}\nv_mov_b32 v{fg+2}, v{regs+8*j+2}\nv_mov_b32 v{fx+1}, v{regs+8*j+5}', OPT['pk'], 2, OPT['pgap'])
        return
    lx = f'buffer_load_dwordx2 {vr(fx,2)}, off, s[4:7], s38 {SC}'
    lk = f'buffer_load_dwordx3 {vr(fg,3)}, v{vky}, s[4:7], s36 offen {SC}'
    if early == 1: k(lx + '\n' + lk); return
    if early == 2: k(ck_tag(t, [fg, fx]) + f'\ns_cbranch_vccz {name}_pz{layer}')
    k(lx)
    gather(k, f'{name}_pk{layer}', f'buffer_load_dwordx3 {vr(fg,3)}, v{vky}, s[4:7], s36 offen {SC}', ck_tag(t, [fg]), sleep)
    gather(k, f'{name}_px{layer}', lx, ck_tag(t, [fx]), sleep, first=False)
    if early == 2: k.lab(f'{name}_pz{layer}')
def sel_decode(k, layer, rows):
    k(f"""s_and_b32 s42, s56, 0x73f
s_and_b32 s43, s57, 0x73f
s_cmp_eq_u32 s42, s43
s_cselect_b32 s36, 64, 0
s_add_u32 s43, s43, s36
s_mul_i32 s42, s42, {XP}
s_mul_i32 s43, s43, {XP}
s_add_u32 s42, s42, {hex(X2 + (layer-1)*128*XP)}
s_add_u32 s43, s43, {hex(X2 + (layer-1)*128*XP)}""")
    if rows:
        for r in (56, 57):
            k(f's_and_b32 s36, s{r}, 2047\ns_sub_u32 s37, 2048, s36\ns_bitcmp1_b32 s{r}, 11\ns_cselect_b32 s{r}, s37, s36')

def wait_until(k, lab, T):
    k(f's_mov_b32 s37, 64\n{lab}:\ns_memrealtime s[98:99]\ns_sub_u32 s37, s37, 1\ns_cbranch_scc1 {lab}x\ns_waitcnt lgkmcnt(0)\ns_sub_u32 s98, s98, s96\ns_cmp_ge_u32 s98, {T}\ns_cbranch_scc1 {lab}x\ns_sleep 2\ns_branch {lab}\n{lab}x:')
def trickle(k, l0, l1):
    ns = OPT['ns']
    if ns == 1: k(f'{l0}\n{l1}')
    elif ns == 2: k(f'{l0}\ns_waitcnt vmcnt(0)\n{l1}')
    else:
        n = ns // 2; w = 64 // n
        for l in (l0, l1):
            for i in range(n):
                m = ((1 << w) - 1) << (w*i)
                k(f's_mov_b32 exec_lo, {hex(m & 0xffffffff)}\ns_mov_b32 exec_hi, {hex(m >> 32)}\n{l}\ns_waitcnt vmcnt(0)')
        k('s_mov_b64 exec, -1')
    k('s_waitcnt vmcnt(0)')
def top2_merge(k, m1, m2, n1, n2):
    k(f'v_max_u32 v{m2}, v{m2}, v{n2}\nv_med3_u32 v{m2}, v{m1}, v{m2}, v{n1}\nv_max_u32 v{m1}, v{m1}, v{n1}')
def top2_row(k, m1, m2, n1, n2):
    for m in XOR4:
        k(f'v_mov_b32_dpp v{n1}, v{m1} {m} {DPP}\nv_mov_b32_dpp v{n2}, v{m2} {m} {DPP}')
        top2_merge(k, m1, m2, n1, n2)
def top2_wave(k, m1, m2, n1, n2):
    top2_row(k, m1, m2, n1, n2)
    for sw in ('v_permlane16_swap_b32', 'v_permlane32_swap_b32'):
        k(f'v_mov_b32 v{n1}, v{m1}\nv_mov_b32 v{n2}, v{m2}\n{sw} v{m1}, v{n1}\n{sw} v{m2}, v{n2}')
        top2_merge(k, m1, m2, n1, n2)

def twiddle(k, re, im, c_, s_, t0, t1, dst):
    k(f'''v_mul_f32 v{t0}, v{re}, v{c_}
v_mul_f32 v{t1}, v{im}, v{c_}
v_fmac_f32 v{t0}, v{im}, v{s_}
v_fma_f32 v{t1}, -v{re}, v{s_}, v{t1}
v_cvt_pk_f16_f32 v{dst}, v{t0}, v{t1}''')

def main_role(k, name):
    k.nv = 1
    V = k.v
    vl = V(); vn = V(); vg = V(); vch = V(); vod = V(); vom = V(); vom0 = V(); vp = V(); vt = V(); vt2 = V()
    vfa = V(); bpf = V(); vqw = V(); bpm = V(); vra = V(); vrb = V(); vsg = V(); sw = V()
    va = V(); vst = V(); xa = V(6); vq1 = V(); vq2 = V(); vqr = V(); vqr2 = V()
    fg = V(4, 4); fx = V(2, 2)
    a = V(8); b = V(8); wa = V(8); wb = V(8)
    RB1 = V(16, 4); RTW = V(16); RB2 = V(4, 4)
    CB1 = V(32, 4); CTW = V(16); CA2 = V(16, 4)
    T0 = V(0, 4)
    xd = V(4, 4); xm = V(4, 4); wd = V(4, 4); wm = V(4, 4); cl = V(4, 4); xm0 = V(); wm0 = V()
    k(f'''s_lshr_b32 s20, s2, 3
s_and_b32 s21, s2, 7
s_cmp_eq_u32 s20, 0
s_cselect_b32 s26, s21, 0
s_cmp_ge_u32 s26, 4
s_cselect_b32 s20, 32, s20
s_cselect_b32 s26, 4, 0
s_sub_u32 s21, s21, s26
s_cmp_eq_u32 s2, 256
s_cselect_b32 s20, 0, s20
s_cselect_b32 s21, 4, s21
s_cselect_b32 s60, s22, 0
s_lshl_b32 s23, s21, 2
s_add_u32 s23, s23, s22
s_lshl_b32 s23, s23, 6
s_add_u32 s23, s23, s20
s_sub_u32 s24, 2048, s23
s_and_b32 s24, s24, 2047
s_lshl_b32 s28, s23, 10
s_lshl_b32 s29, s24, 10
v_and_b32 v{vn}, 15, v0
v_bfe_u32 v{vg}, v0, 4, 2
v_lshl_add_u32 v{vch}, v{vn}, 2, v{vg}
v_lshlrev_b32 v{vod}, 4, v{vch}
v_sub_u32 v{vom}, 1008, v{vod}
v_sub_u32 v{vom0}, 1024, v{vod}
v_and_b32 v{vom0}, 1023, v{vom0}
s_lshr_b32 s36, s2, 1
s_mul_i32 s36, s36, {PITCH}
s_bitcmp1_b32 s2, 0
s_cselect_b32 s37, 4096, 0
s_add_u32 s36, s36, s37
s_cmp_eq_u32 s2, 256
s_cselect_b32 s36, 8192, s36
s_cselect_b32 s37, {PITCH-128}, 0
s_add_u32 s36, s36, {hex(U1)}
v_lshlrev_b32 v{vfa}, 4, v0
v_lshrrev_b32 v{vt}, 3, v0
v_mad_u32_u24 v{vt}, v{vt}, s37, v{vfa}
v_mov_b32 v{cl}, -1
v_mov_b32 v{cl+1}, -1
v_mov_b32 v{cl+2}, -1
v_mov_b32 v{cl+3}, -1
s_mov_b32 s6, {hex(WS_BYTES)}
s_mov_b32 s7, 0x20000
s_mov_b32 s10, {hex(2048*1024)}
s_mov_b32 s11, 0x20000
s_waitcnt lgkmcnt(0)''')
    k.stamp(1)
    k('s_mov_b32 s8, s32\ns_mov_b32 s9, s33')
    k(f'''buffer_load_dwordx4 {vr(xd,4)}, v{vod}, s[8:11], s28 offen
buffer_load_dwordx4 {vr(xm,4)}, v{vom}, s[8:11], s29 offen
buffer_load_ushort v{xm0}, v{vom0}, s[8:11], s29 offen
s_mov_b32 s4, s30
s_mov_b32 s5, s31
buffer_store_dwordx4 {vr(cl,4)}, v{vt}, s[4:7], s36 offen {SC}
s_add_u32 s38, s30, {hex(EPOCH)}
s_addc_u32 s39, s31, 0
s_load_dword s40, s[38:39], 0''')
    srd(k, 12, 44, 1024); srd(k, 16, 58, 2048*1024)
    k(f'''buffer_load_dwordx4 {vr(wd,4)}, v{vod}, s[12:15], 0 offen
buffer_load_dwordx4 {vr(wm,4)}, v{vom}, s[12:15], 0 offen
buffer_load_ushort v{wm0}, v{vom0}, s[12:15], 0 offen
v_and_b32 v{vl}, 63, v0
s_cmp_lg_u32 s2, 256
s_cbranch_scc1 {name}_clr2
s_add_u32 s36, s36, {32*PITCH}
buffer_store_dwordx4 {vr(cl,4)}, v{vt}, s[4:7], s36 offen {SC}
s_add_u32 s36, s36, {32*PITCH}
buffer_store_dwordx4 {vr(cl,4)}, v{vt}, s[4:7], s36 offen {SC}
s_add_u32 s36, s36, {32*PITCH}
buffer_store_dwordx4 {vr(cl,4)}, v{vt}, s[4:7], s36 offen {SC}
{name}_clr2:
s_lshl_b32 s25, s21, 10
s_lshl_b32 s26, s20, 4
s_add_u32 s25, s25, s26
s_sub_u32 s27, 8192, s25
s_lshl_b32 s26, s21, 4
s_add_u32 s36, s26, 8192
s_sub_u32 s37, {8192+116}, s26
s_cmp_eq_u32 s20, 0
s_cselect_b32 s25, s36, s25
s_cselect_b32 s27, s37, s27
s_cmp_ge_u32 s22, 2
s_cselect_b32 s25, s27, s25
v_and_b32 v{vp}, 127, v0
v_mul_u32_u24 v{vp}, {PITCH}, v{vp}
s_lshl_b32 s61, s2, 12
s_add_u32 s61, s61, {hex(Q2)}
s_bfe_u32 s37, s2, 0x40004
s_and_b32 s36, s2, 7
s_lshl_b32 s36, s36, 4
s_add_u32 s3, s37, s36
s_mul_i32 s41, s3, {PITCH}
s_bfe_u32 s26, s2, 0x10003
s_lshl_b32 s26, s26, 5
s_lshr_b32 s37, s22, 1
s_lshl_b32 s37, s37, 4
s_add_u32 s26, s26, s37
s_and_b32 s27, s22, 1
v_add_u32 v{vt}, s26, v{vn}
v_lshl_add_u32 v{vt2}, s27, 2, v{vg}
v_lshlrev_b32 v{vst}, 10, v{vt2}
v_lshl_add_u32 v{vst}, v{vt}, 4, v{vst}
v_cmp_eq_u32 vcc, 0, v{vt}
v_lshlrev_b32 v{vt2}, 4, v{vt2}
v_add_u32 v{vt2}, 8192, v{vt2}
v_cndmask_b32 v{vst}, v{vst}, v{vt2}, vcc
s_cmp_lg_u32 s2, 256
s_cbranch_scc1 {name}_clr3
buffer_store_dwordx4 {vr(cl,4)}, v{vfa}, s[4:7], s61 offen {SC}
{name}_clr3:''')
    def lane_of(dst, chreg):
        k(f'v_and_b32 v{vt2}, 3, v{chreg}\nv_and_b32 v{dst}, 60, v{chreg}\nv_lshl_add_u32 v{dst}, v{vt2}, 6, v{dst}')
    k(f'''v_cmp_lt_u32 s[44:45], 31, v{vch}
v_add_u32 v{vt}, 1, v{vch}
v_cndmask_b32 v{vt}, v{vch}, v{vt}, s[44:45]
v_and_b32 v{vt}, 63, v{vt}
v_cmp_eq_u32 vcc, 0, v{vt}
v_cndmask_b32 v{vt}, v{vt}, 32, vcc''')
    lane_of(bpf, vt)
    k(f'''v_sub_u32 v{vt}, 95, v{vch}
v_cndmask_b32 v{vt}, v{vch}, v{vt}, s[44:45]
s_lshl_b32 s36, s22, 2
s_sub_u32 s37, {L_Q+12}, s36
s_add_u32 s36, s36, {L_Q}
v_mov_b32 v{vt2}, s36
v_mov_b32 v{vqw}, s37
v_cndmask_b32 v{vqw}, v{vt2}, v{vqw}, s[44:45]
v_lshl_add_u32 v{vqw}, v{vt}, 6, v{vqw}
v_add_u32 v{vt}, 1, v{vch}
v_and_b32 v{vt}, 63, v{vt}''')
    lane_of(bpm, vt)
    k(f'''v_and_b32 v{vt}, 2, v0
v_lshlrev_b32 v{vt}, 10, v{vt}
v_and_b32 v{vt2}, 1, v0
v_lshl_add_u32 v{vt}, v{vt2}, 3, v{vt}
v_and_b32 v{vt2}, 252, v0
v_lshl_add_u32 v{vqr}, v{vt2}, 2, v{vt}''')

    def stats_and_out(mode):
        k.nv = T0 + 24
        sa = V(); qa = V(); sb = V(); qb = V(); ra = V(); rb = V()
        for (S_, Q_, base, R_, W_) in ((sa, qa, a, ra, wa), (sb, qb, b, rb, wb)):
            k(f'v_add_f32 v{S_}, v{base}, v{base+1}\nv_mul_f32 v{Q_}, v{base}, v{base}')
            if mode != 1: k(f'v_mul_f32 v{R_}, v{base}, v{W_}')
            for i in range(1, 8):
                if i > 1: k(f'v_add_f32 v{S_}, v{S_}, v{base+i}')
                k(f'v_fmac_f32 v{Q_}, v{base+i}, v{base+i}')
                if mode != 1: k(f'v_fmac_f32 v{R_}, v{base+i}, v{W_+i}')
        merge(k, sa, sb); merge(k, qa, qb)
        if mode != 1: merge(k, ra, rb)
        red_half(k, [sa, qa] + ([ra] if mode != 1 else []))
        k(f'''v_mul_f32 v{sa}, {fl(1/512)}, v{sa}
v_mul_f32 v{qa}, {fl(1/512)}, v{qa}
v_fma_f32 v{qa}, -v{sa}, v{sa}, v{qa}
v_max_f32 v{qa}, 0, v{qa}
v_add_f32 v{qb}, {fl(1e-5)}, v{qa}
v_rsq_f32 v{qb}, v{qb}''')
        if mode == 1: zc = qb
        else:
            st = V(4, 4); one = V(); nb = V(); zc = V()
            k(f'''v_add_f32 v{one}, 1.0, v{qb}
v_fma_f32 v{ra}, -v{sa}, v{sw}, v{ra}
v_mul_f32 v{nb}, v{sa}, v{qb}
v_mul_f32 v{qa}, v{qa}, v{one}
v_rcp_f32 v{st+1}, v{one}
v_mul_f32 v{qa}, v{qa}, v{one}
v_mul_f32 v{st+2}, v{ra}, v{qb}
v_add_f32 v{qa}, {fl(1e-5)}, v{qa}
v_mov_b32 v{st}, v{sa}
v_rsq_f32 v{st+3}, v{qa}
v_mul_f32 v{st+1}, v{st+1}, v{qb}
v_readlane_b32 s48, v{one}, 16
v_readlane_b32 s49, v{one}, 48
v_readlane_b32 s50, v{nb}, 16
v_readlane_b32 s51, v{nb}, 48
v_mul_f32 v{zc}, v{st+3}, v{one}''')
        pk = V(4, 4)
        fv = V(8); t0 = V(); t1 = V()
        def qcomp():
            k(f'''v_mul_f32 v{sb}, v{sa}, v{zc}
v_readlane_b32 s52, v{zc}, 16
v_readlane_b32 s53, v{zc}, 48
v_readlane_b32 s54, v{sb}, 16
v_readlane_b32 s55, v{sb}, 48''')
            k(f'v_mov_b32 v{vt}, s54\nv_add_f32 v{vt}, s55, v{vt}')
            for i in range(8):
                k(f'v_fma_f32 v{fv+i}, v{a+i}, s52, -v{vt}\nv_fmac_f32 v{fv+i}, s53, v{b+i}')
                if i == 0: k(f'ds_bpermute_b32 v{fv}, v{bpf}, v{fv}')
            def sel(dst, i):
                if i == 4: return fv + 4
                k(f'v_cndmask_b32 v{dst}, v{fv+i}, v{fv+8-i}, s[44:45]'); return dst
            for i in (1, 2, 3):
                lo = sel(t0, 2*i); hi = sel(t1, 2*i+1)
                k(f'v_cvt_pk_f16_f32 v{pk+i}, v{lo}, v{hi}')
            hi = sel(t1, 1)
            k(f'''ds_write2_b32 v{vqw}, v{pk+2}, v{pk+3} offset0:8 offset1:12
s_waitcnt lgkmcnt(1)
v_cvt_pk_f16_f32 v{pk}, v{fv}, v{hi}
ds_write2_b32 v{vqw}, v{pk}, v{pk+1} offset0:0 offset1:4''')
        if mode == 1 or (mode == 3 and not OPT['ro']): qcomp()
        if mode != 1 and OPT['hu'] == 2: headsup(mode // 2)
        if mode != 1:
            k(f'''v_and_b32 v{vt}, 32, v0
v_ashrrev_i32 v{one}, 31, v{st+2}
v_lshl_add_u32 v{vt}, v{vt}, 6, s23
v_or_b32 v{one}, 0x80000000, v{one}
v_lshrrev_b32 v{vt2}, 3, v0
v_xor_b32 v{one}, v{one}, v{st+2}
v_and_b32 v{vt2}, 60, v{vt2}
v_and_b32 v{one}, 0xfffff000, v{one}
s_cmp_eq_u32 s23, s24
s_cselect_b32 s36, 0, 0x10000
v_or_b32 v{one}, v{one}, v{vt}
s_cmp_lg_u32 s60, 0
s_cbranch_scc1 {name}_nokey{mode}
s_mov_b32 exec_lo, 0x10000
s_mov_b32 exec_hi, s36
ds_write_b32 v{vt2}, v{one} offset:{L_KEY}
s_mov_b64 exec, -1
{name}_nokey{mode}:''')
        if mode == 1:
            p2 = V(4, 4)
            k(f'''s_lshl_b32 s38, s2, 13
s_add_u32 s39, s38, 4096
v_mov_b32 v{p2+2}, s40
v_mov_b32 v{p2+3}, s40
s_waitcnt vmcnt(0) lgkmcnt(0)
v_mov_b32 v{pk+2}, s40
v_mov_b32 v{pk+3}, s40
s_barrier
ds_read_b64 {vr(pk,2)}, v{vqr} offset:{L_Q}
ds_read_b64 {vr(p2,2)}, v{vqr} offset:{L_Q+1024}
s_waitcnt lgkmcnt(1)
buffer_store_dwordx4 {vr(pk,4)}, v{vfa}, s[4:7], s38 offen {SC}
s_waitcnt lgkmcnt(0)
buffer_store_dwordx4 {vr(p2,4)}, v{vfa}, s[4:7], s39 offen {SC}''')
            return
        o1 = V(4, 4); o2 = V(4, 4); b0 = V(); n1 = V(); n2 = V()
        layer = mode // 2
        def resid():
            k(f'v_mov_b32 v{vt}, s50\nv_mov_b32 v{vt2}, s51')
            for i in range(8):
                k(f'v_fma_f32 v{b+i}, v{b+i}, s49, -v{vt2}')
                if i == 0: k(f'ds_bpermute_b32 v{b0}, v{bpm}, v{b}')
            for i in range(8): k(f'v_fma_f32 v{a+i}, v{a+i}, s48, -v{vt}')
            for i in range(4): k(f'v_cvt_pk_bf16_f32 v{o1+i}, v{a+2*i}, v{a+2*i+1}')
            for i in range(1, 4): k(f'v_cvt_pk_bf16_f32 v{o2+i}, v{b+8-2*i}, v{b+7-2*i}')
            k(f'''s_lshl_b32 s36, s22, 11
v_add_u32 v{vt}, s36, v{vod}
v_add_u32 v{vt2}, s36, v{vom}
ds_write_b128 v{vt}, {vr(o1,4)} offset:{L_TR}
v_lshl_add_u32 v{vt}, v{vl}, 4, s36
s_waitcnt lgkmcnt(1)
v_cvt_pk_bf16_f32 v{o2}, v{b0}, v{b+7}
ds_write_b128 v{vt2}, {vr(o2,4)} offset:{L_TR+1024}
v_lshlrev_b32 v{b0}, 4, v{vl}
ds_read_b128 {vr(o1,4)}, v{vt} offset:{L_TR}
ds_read_b128 {vr(o2,4)}, v{vt} offset:{L_TR+1024}''')
        if mode == 5 and not OPT['ro5']: resid()
        kv = V()
        kslot = 's_mov_b32 s39, s2' if not OPT['kx'] else 's_and_b32 s39, s2, 7\ns_lshl_b32 s39, s39, 5\ns_bfe_u32 s37, s2, 0x50003\ns_add_u32 s39, s39, s37\ns_and_b32 s37, s2, 256\ns_add_u32 s39, s39, s37'
        kex = {1: 's_mov_b64 exec, 1', 2: 's_mov_b64 exec, 3', 4: 's_mov_b64 exec, 15', 8: 's_mov_b64 exec, 0xff', 16: 's_mov_b64 exec, 0xff00ff', 32: 's_mov_b32 exec_lo, 0xff00ff\ns_mov_b32 exec_hi, 0xff00ff'}[min(OPT['kr'], 32)]
        k(f'''v_lshlrev_b32 v{vt}, 2, v{vn}
v_mov_b32 v{fg+2}, 0
v_mov_b32 v{fg}, s40
s_lshl_b32 s38, s2, 7
s_add_u32 s38, s38, {hex(KEY2)}
{kslot}
s_mul_i32 s39, s39, {OPT['kp']}
s_add_u32 s39, s39, {hex(KR1 if mode == 3 else KR2)}
s_mul_i32 s37, s22, {32*krs()}
s_add_u32 s39, s39, s37
v_lshrrev_b32 v{kv}, 1, v{vl}
v_and_b32 v{kv}, 24, v{kv}
v_and_or_b32 v{kv}, v{vl}, 7, v{kv}
v_mul_u32_u24 v{kv}, {krs()}, v{kv}
s_waitcnt lgkmcnt(0)
s_barrier
ds_read_b32 v{fg+1}, v{vt} offset:{L_KEY}''')
        q2st = f'ds_read_b128 {vr(pk,4)}, v{vqr2} offset:{L_Q}\ns_waitcnt lgkmcnt(0)\nbuffer_store_dwordx4 {vr(pk,4)}, v{vfa}, s[4:7], s61 offen {SC}'
        if mode == 3 and not OPT['ro']: k(q2st)
        else: k('s_waitcnt lgkmcnt(0)')
        for m in XOR4[:3]:
            k(f'v_mov_b32_dpp v{n1}, v{fg+1} {m} {DPP}\nv_mov_b32_dpp v{n2}, v{fg+2} {m} {DPP}')
            top2_merge(k, fg+1, fg+2, n1, n2)
        k(f'''s_cmp_ge_u32 s22, {max(OPT['kr']//32, 1)}
s_cbranch_scc1 {name}_nopub{mode}
{kex}
buffer_store_dwordx4 {vr(fg,4)}, v{kv}, s[4:7], s39 offen {SC}
s_mov_b64 exec, -1
{name}_nopub{mode}:''')
        k.stamp(5 if mode == 3 else 11)
        if OPT['hu'] == 1: headsup(layer)
        if mode == 3 and OPT['upre']: k(f's_lshr_b32 s36, s2, 8\ns_mul_i32 s36, s36, {OPT["u256"]}\ns_memrealtime s[96:97]\ns_waitcnt lgkmcnt(0)\ns_sub_u32 s96, s96, s36')
        if OPT['dsk']:
            assert OPT['ro'] and OPT['ro5']
            k(f's_cmp_lg_u32 s60, 0\ns_cbranch_scc1 {name}_cd{mode}1')
        if mode == 3 and OPT['ro']: qcomp()
        k(f'v_readfirstlane_b32 s52, v{fg+1}\nv_readfirstlane_b32 s53, v{fg+2}')
        if mode == 3 or OPT['ro5']: resid()
        k(f'''s_and_b32 s36, s23, 0x73f
s_mul_i32 s36, s36, {XP}
s_add_u32 s36, s36, {hex(X2 + (layer-1)*128*XP)}
s_mov_b32 s54, 0
s_waitcnt lgkmcnt(0)''')
        for sl in range(2):
            k(f'''s_and_b32 s37, s{52+sl}, 2047
s_cmp_lg_u32 s37, s23
s_cbranch_scc1 {name}_cd{mode}{sl}
s_bitcmp1_b32 s{52+sl}, 11
s_cbranch_scc1 {name}_cb{mode}{sl}
buffer_store_dwordx4 {vr(o1,4)}, v{b0}, s[4:7], s36 offen {SC}
s_mov_b64 exec, 0x10000
s_bitset1_b32 s54, 0
s_branch {name}_cs{mode}{sl}
{name}_cb{mode}{sl}:
buffer_store_dwordx4 {vr(o2,4)}, v{b0}, s[4:7], s36 offen {SC}
s_mov_b32 exec_lo, 0
s_mov_b32 exec_hi, 0x10000
s_bitset1_b32 s54, 1
{name}_cs{mode}{sl}:
buffer_store_dwordx4 {vr(st,4)}, off, s[4:7], s36 offset:1024 {SC}
s_mov_b64 exec, -1
{name}_cd{mode}{sl}:''')
            if sl == 0: k(f's_add_u32 s36, s36, {64*XP}')
        if mode == 3 and OPT['ro']:
            k('s_barrier')
            if OPT['qdel']: k(f's_sleep {OPT["qdel"]}')
            k(q2st)
        if mode == 5 and not OPT['osc']:
            k(f'''s_cmp_eq_u32 s23, s24
s_cselect_b32 s55, 1, 3
s_cmp_lg_u32 s60, 0
s_cbranch_scc1 {name}_noout
s_andn2_b32 s36, s55, s54
s_and_b32 s55, s55, s54''')
            for ph, sr, fl_ in ((0, 's36', OPT.get('ofl', '')), (1, 's55', SC)):
                if ph and OPT['odel']: k(f's_sleep {OPT["odel"]}')
                for i, (o, so) in enumerate(((o1, 's28'), (o2, 's29'))):
                    k(f's_bitcmp1_b32 {sr}, {i}\ns_cbranch_scc0 {name}_o{ph}{i}\nbuffer_store_dwordx4 {vr(o,4)}, v{b0}, s[16:19], {so} offen {fl_}\n{name}_o{ph}{i}:')
            k.lab(f'{name}_noout')
        elif mode == 5:
            if OPT['odel']: k(f's_sleep {OPT["odel"]}')
            k(f'''s_cmp_lg_u32 s60, 0
s_cbranch_scc1 {name}_noout
buffer_store_dwordx4 {vr(o1,4)}, v{b0}, s[16:19], s28 offen {SC}
s_cmp_eq_u32 s23, s24
s_cbranch_scc1 {name}_noout
buffer_store_dwordx4 {vr(o2,4)}, v{b0}, s[16:19], s29 offen {SC}
{name}_noout:''')

    def predelay():
        if OPT['drain']: k('s_waitcnt vmcnt(0)')
        if OPT['pre']: k(f's_sleep {OPT["pre"]}')
    def headsup(layer):
        k(f'''s_lshr_b32 s36, s2, 3
s_or_b32 s36, s36, s22
s_cbranch_scc1 {name}_hu{layer}
s_lshl_b32 s36, s2, 7
s_add_u32 s36, s36, {hex(HU + 1024*(layer-1))}
v_mov_b32 v{vt}, s40
s_mov_b64 exec, 1
buffer_store_dword v{vt}, off, s[4:7], s36 {SC}
s_mov_b64 exec, -1
{name}_hu{layer}:''')

    def col_consts():
        k.nv = T0 + 24
        fk = V(); fgf = V(); c = V(); s = V(); ang = V(); f1 = V(); f2 = V()
        def xaddr(dst, sh, nxt):
            k(f'''v_lshrrev_b32 v{vt}, {sh+3}, v0
v_mul_u32_u24 v{vt}, 144, v{vt}
v_bfe_u32 v{vt2}, v0, {sh}, 3
v_lshl_add_u32 v{vt}, v{vt2}, 4, v{vt}
v_and_b32 v{vt2}, {1 << (sh-1)}, v0
v_cmp_ne_u32 s[38:39], 0, v{vt2}
v_sub_u32 v{vt2}, 9328, v{vt}
v_mov_b32 v{c}, {1152*(4 >> sh)}
v_mov_b32 v{s}, {-1152*(4 >> sh)}
v_cndmask_b32 v{dst+1}, v{vt}, v{vt2}, s[38:39]
v_cndmask_b32 v{c}, v{c}, v{s}, s[38:39]
v_lshrrev_b32 v{s}, 6, v{vt}
v_add_u32 v{vt2}, 4544, v{vt}
v_cmp_eq_u32 vcc, 1, v{s}
v_cndmask_b32 v{vt}, v{vt}, v{vt2}, vcc
v_sub_u32 v{vt2}, 9328, v{vt}
v_sub_u32 v{dst}, 116, v{vt}
v_cmp_eq_u32 vcc, 0, v{s}
v_cndmask_b32 v{vt2}, v{vt2}, v{dst}, vcc
v_cndmask_b32 v{dst}, v{vt}, v{vt2}, s[38:39]''')
            if sh == 2: k(f'v_and_b32 v{vt}, 1, v0\nv_lshl_add_u32 v{dst}, v{vt}, 3, v{dst}\nv_lshl_add_u32 v{dst+1}, v{vt}, 3, v{dst+1}')
            k(f'v_add_u32 v{dst}, {L_X}, v{dst}')
            for i in range(nxt): k(f'v_add_u32 v{dst+1+i}, v{dst+max(i,1)}, v{c}')
        xaddr(xa, 2, 3); xaddr(xa+4, 1, 1)
        k(f'''v_lshrrev_b32 v{vt}, 2, v0
v_and_b32 v{vt2}, 3, v0
v_lshlrev_b32 v{vt}, 13, v{vt}
v_lshl_add_u32 v{vq1}, v{vt2}, 4, v{vt}
v_lshrrev_b32 v{vt}, 1, v0
v_and_b32 v{vt2}, 1, v0
v_lshlrev_b32 v{vqr2}, 4, v{vt}
v_lshl_add_u32 v{vqr2}, v{vt2}, 11, v{vqr2}
v_lshlrev_b32 v{vt}, 12, v{vt}
v_lshl_add_u32 v{vq2}, v{vt2}, 4, v{vt}
v_mul_u32_u24 v{va}, 144, v{vn}
v_lshl_add_u32 v{va}, v{vg}, 5, v{va}
v_add_u32 v{vt}, s26, v{vn}
v_cvt_f32_u32 v{fk}, v{vt}
v_cvt_f32_u32 v{fgf}, v{vg}
v_mul_f32 v{f1}, {fl(1/64)}, v{fk}
v_add_f32 v{f2}, v{f1}, v{f1}
v_mul_f32 v{vt2}, {fl(16.0)}, v{fgf}
v_mul_f32 v{vt2}, v{vt2}, v{f1}''')
        for hi in range(2):
            k(f'v_add_f32 v{ang}, v{vt2}, v{f1}' if hi else f'v_mov_b32 v{ang}, v{vt2}')
            for half in range(2):
                for r in range(4):
                    if half or r: k(f'v_add_f32 v{ang}, v{ang}, v{f2}')
                    o = CB1 + 16*hi + 8*half
                    k(f'v_cos_f32 v{c}, v{ang}\nv_sin_f32 v{s}, v{ang}\nv_cvt_pk_f16_f32 v{o+r}, v{c}, v{s}\nv_cvt_pk_f16_f32 v{o+4+r}, -v{s}, v{c}')
        k(f'''v_mul_f32 v{f1}, {fl(1/2048)}, v{fk}
v_mul_f32 v{fgf}, 4.0, v{fgf}
s_mov_b32 s38, {fl(0.125)}
s_mov_b32 s39, {fl(13.0)}
v_mul_f32 v{ang}, v{fgf}, v{f1}''')
        for T in range(2):
            for r in range(4):
                if r: k(f'v_add_f32 v{ang}, v{ang}, v{f1}')
                elif T: k(f'v_fmac_f32 v{ang}, s39, v{f1}')
                k(f'v_cos_f32 v{c}, v{ang}\nv_sin_f32 v{s}, v{ang}\nv_mul_f32 v{CTW+8*T+2*r}, s38, v{c}\nv_mul_f32 v{CTW+8*T+2*r+1}, s38, v{s}')
        k(f'''v_lshl_add_u32 v{vt}, s27, 4, v{vn}
v_cvt_f32_u32 v{fk}, v{vt}
v_mul_f32 v{f1}, {fl(1/32)}, v{fk}
v_mul_f32 v{ang}, v{fgf}, v{f1}''')
        for T in range(2):
            for r in range(4):
                if r: k(f'v_add_f32 v{ang}, v{ang}, v{f1}')
                elif T: k(f'v_fmac_f32 v{ang}, s39, v{f1}')
                o = CA2 + 4*T
                k(f'v_cos_f32 v{c}, v{ang}\nv_sin_f32 v{s}, v{ang}\nv_cvt_pk_f16_f32 v{o+r}, v{c}, v{s}\nv_cvt_pk_f16_f32 v{o+8+r}, -v{s}, v{c}')

    def col_phase(tag, Qo, Uo):
        k.nv = T0
        X = V(32, 4); D1 = V(16, 4); Bd = V(8, 4); D2 = V(8, 4)
        G = X
        if Qo == Q2:
            k(f'''s_and_b32 s36, s20, 31
s_cbranch_scc1 {name}_nospec
s_xor_b32 s36, s20, 32
s_lshl_b32 s36, s36, 4
s_add_u32 s36, s36, {hex(U1+16)}''')
            gather(k, f'{name}_gsp', f'buffer_load_dword v{G}, v{vp}, s[4:7], s36 offen {SC}', f'v_cmp_eq_u32 vcc, -1, v{G}')
            k(f's_barrier\n{name}_nospec:')
        predelay()
        tq = OPT['tq1'] if Qo == Q1 else OPT['tq2']
        if tq: wait_until(k, f'{name}_wq{tag}', tq)
        if Qo == Q1:
            k(f's_lshl_b32 s48, s3, 6')
            for i in range(1, 5): k(f's_add_u32 s{48+i}, s48, {hex(64*8192*i)}')
            ld = [f'buffer_load_dwordx3 {vr(G+4*i,3)}, v{vq1}, s[4:7], s{48+i} offen {SC}' for i in range(4)]
            lx = f'buffer_load_dwordx3 {vr(G+16,3)}, off, s[4:7], s52 {SC}'; cx = ck_tag(vt, [G+18])
            k(f's_cmp_lg_u32 s22, 3\ns_cbranch_scc1 {name}_e1{tag}\n{lx}\n{name}_e1{tag}:')
            gather(k, f'{name}_gq1', '\n'.join(ld), ck_tag(vt, [G+4*i+2 for i in range(4)]), OPT['sleep'])
            k.stamp(tag)
            k(f'ds_write2_b32 v{xa}, v{G}, v{G+1} offset0:0 offset1:1')
            for i in range(1, 4): k(f'ds_write_b64 v{xa+i}, {vr(G+4*i,2)} offset:{L_X}')
        else:
            k(f's_lshl_b32 s48, s3, 5\ns_add_u32 s48, s48, {hex(Q2)}')
            for i in range(1, 3): k(f's_add_u32 s{48+i}, s48, {hex(128*4096*i)}')
            ld = [f'buffer_load_dwordx4 {vr(G+4*i,4)}, v{vq2}, s[4:7], s{48+i} offen {SC}' for i in range(2)]
            lx = f'buffer_load_dword v{G+16}, off, s[4:7], s50 {SC}'; cx = f'v_cmp_eq_u32 vcc, -1, v{G+16}'
            k(f's_cmp_lg_u32 s22, 3\ns_cbranch_scc1 {name}_e1{tag}\n{lx}\n{name}_e1{tag}:')
            gather(k, f'{name}_gq2', '\n'.join(ld), ck_sent(vt, [G, G+4]), OPT['sleep'])
            k.stamp(tag)
            k(f'''ds_write2_b32 v{xa+4}, v{G}, v{G+1} offset0:0 offset1:1
ds_write2_b32 v{xa+4}, v{G+2}, v{G+3} offset0:2 offset1:3
ds_write_b128 v{xa+5}, {vr(G+4,4)} offset:{L_X}''')
        k(f's_cmp_lg_u32 s22, 3\ns_cbranch_scc1 {name}_e2{tag}')
        gather(k, f'{name}_gx{tag}', lx, cx, OPT['sleep'], '1', first=False)
        k(f'''ds_write_b32 v{va}, v{G+16} offset:{L_X+64}
s_mov_b64 exec, -1
{name}_e2{tag}:
''')
        if Qo == Q2 and OPT['ek']:
            k(f'v_mul_u32_u24 v{vt2}, {OPT["kp"]}, v0')
            poll_keys(k, name, 1, vt2, fg, fx, vt, 1, 's2', early=1)
        k(f'''s_cmp_eq_u32 s2, 256
s_waitcnt lgkmcnt(0)
s_barrier
s_cbranch_scc1 {name}_cx{tag}''')
        for T in range(2):
            for hi in range(2):
                for half in range(2):
                    q = T + 2*hi
                    k(f'ds_read_b128 {vr(X+16*T+8*hi+4*half,4)}, v{va} offset:{L_X + 16*half + 144*16*q}')
        for T in range(2):
            for kap in range(4):
                k(f's_waitcnt lgkmcnt({7-4*T-kap})')
                for z in range(2):
                    d = vr(D1+8*T+4*z, 4)
                    k(f'v_mfma_f32_16x16x32_f16 {d}, {vr(X+16*T+4*kap,4)}, {vr(CB1+8*kap+4*z,4)}, {d if kap else 0}')
        for T in range(2):
            for r in range(4):
                twiddle(k, D1+8*T+r, D1+8*T+4+r, CTW+8*T+2*r, CTW+8*T+2*r+1, vt, vt2, Bd+4*T+r)
            for z in range(2):
                d = vr(D2+4*z, 4)
                k(f'v_mfma_f32_16x16x32_f16 {d}, {vr(CA2+8*z+4*T,4)}, {vr(Bd+4*T,4)}, {d if T else 0}')
        k(f's_add_u32 s36, s41, {hex(Uo)}\ns_waitcnt vmcnt(0)')
        for r in range(4): k(f'v_cvt_pk_f16_f32 v{X+r}, v{D2+r}, v{D2+4+r}')
        k(f'buffer_store_dwordx4 {vr(X,4)}, v{vst}, s[4:7], s36 offen {SC}')
        if Qo == Q1:
            for r in range(4): k(f'v_mov_b32 v{X+4+r}, -1')
            k(f's_add_u32 s37, s41, {hex(U2)}\nbuffer_store_dwordx4 {vr(X+4,4)}, v{vst}, s[4:7], s37 offen {SC}')
        k(f's_branch {name}_cy{tag}\n{name}_cx{tag}:\ns_sleep {OPT["w256"]}\ns_waitcnt vmcnt(0)\n{name}_cy{tag}:')

    def row_consts():
        k.nv = T0 + 24
        fe = V(); fgf = V(); c = V(); s = V(); ang = V(); f1 = V()
        k(f'''v_lshrrev_b32 v{vt}, 2, v{vn}
v_and_b32 v{vt2}, 3, v{vn}
v_lshl_add_u32 v{vt}, v{vt}, 3, v{vt2}
v_cvt_f32_u32 v{fe}, v{vt}
v_lshlrev_b32 v{vt}, 2, v{vg}
v_cvt_f32_u32 v{fgf}, v{vt}
s_mov_b32 s36, {fl(1/32)}
s_mov_b32 s37, {fl(0.25)}''')
        for h in range(2):
            if h: k(f'v_add_f32 v{fe}, 4.0, v{fe}')
            k(f'v_mul_f32 v{f1}, s36, v{fe}\nv_mul_f32 v{ang}, v{fgf}, v{f1}')
            for r in range(4):
                if r: k(f'v_add_f32 v{ang}, v{ang}, v{f1}')
                k(f'v_cos_f32 v{c}, v{ang}\nv_sin_f32 v{s}, v{ang}\nv_mul_f32 v{vt}, {fl(1/16)}, v{ang}')
                if r & 1: k(f'v_add_f32 v{vt}, s37, v{vt}')
                k(f'''v_cvt_pk_f16_f32 v{RB1+8*h+r}, v{c}, v{s}
v_cvt_pk_f16_f32 v{RB1+8*h+4+r}, -v{s}, v{c}
v_cos_f32 v{c}, v{vt}
v_sin_f32 v{s}, v{vt}
v_mul_f32 v{RTW+8*h+2*r}, s37, v{c}
v_mul_f32 v{RTW+8*h+2*r+1}, s37, v{s}''')
        k(f'v_cvt_f32_u32 v{f1}, v{vn}\nv_mul_f32 v{f1}, {fl(1/16)}, v{f1}\nv_mul_f32 v{ang}, v{fgf}, v{f1}')
        for r in range(4):
            if r: k(f'v_add_f32 v{ang}, v{ang}, v{f1}')
            k(f'v_cos_f32 v{c}, v{ang}\nv_sin_f32 v{s}, v{ang}\nv_cvt_pk_f16_f32 v{RB2+r}, v{c}, v{s}')
        k(f'''v_lshrrev_b32 v{vt}, 1, v{vn}
v_lshl_add_u32 v{vt}, v{vg}, 5, v{vt}
s_lshl_b32 s36, s22, 2
s_sub_u32 s37, {2048+12}, s36
s_cmp_eq_u32 s23, 0
s_cselect_b32 s37, s36, s37
s_cmp_eq_u32 s25, {8192+116}
s_cselect_b32 s21, 0, -1
v_lshl_add_u32 v{vra}, v{vt}, 4, s36
v_lshl_add_u32 v{vrb}, v{vt}, 4, s37
v_and_b32 v{vt}, 1, v0
v_cmp_eq_u32 s[46:47], 1, v{vt}
v_mov_b32 v{vt}, 0xbc003c00
v_mov_b32 v{vt2}, 0x3c00bc00
v_cndmask_b32 v{vsg}, v{vt}, v{vt2}, s[46:47]''')

    def u_load(tag, Uo, ug):
        k(f's_add_u32 s38, s25, {hex(Uo)}')
        if tag == 'a': predelay()
        if tag == 'a' and OPT['tu1']: wait_until(k, f'{name}_wu1', OPT['tu1'])
        gather(k, f'{name}_gu{tag}', f'buffer_load_dwordx4 {vr(ug,4)}, v{vp}, s[4:7], s38 offen {SC}', f'v_and_b32 v{ug+3}, s21, v{ug+3}\n' + ck_sent(vt, range(ug, ug+4)), OPT['sleep'])
        k(f'ds_write_b128 v{vfa}, {vr(ug,4)} offset:{L_U}')
    def u_read(u1, u2, extra=''):
        k(f'''s_waitcnt lgkmcnt(0)
s_barrier
{extra}
ds_read2_b32 {vr(u1,2)}, v{vra} offset0:0 offset1:32
ds_read2_b32 {vr(u2,2)}, v{vrb} offset0:0 offset1:32
ds_read2_b32 {vr(u1+2,2)}, v{vra} offset0:64 offset1:96
ds_read2_b32 {vr(u2+2,2)}, v{vrb} offset0:64 offset1:96
s_waitcnt lgkmcnt(0)''')
        for r in range(4): k(f'v_pk_fma_f16 v{u1+r}, v{u2+r}, v{vsg}, v{u1+r}')
    def hid_dft(u1):
        D1 = V(16, 4); A2 = V(8, 4); D2 = V(8, 4)
        for h in range(2):
            for z in range(2):
                k(f'v_mfma_f32_16x16x32_f16 {vr(D1+8*h+4*z,4)}, {vr(u1,4)}, {vr(RB1+8*h+4*z,4)}, 0')
        k(f'v_cvt_f32_f16 v{vt2}, v{u1}\ns_mov_b32 s54, {fl(16.0)}\nv_readlane_b32 s52, v{vt2}, 0')
        for h in range(2):
            for r in range(4):
                twiddle(k, D1+8*h+r, D1+8*h+4+r, RTW+8*h+2*r, RTW+8*h+2*r+1, vt, vt2, A2+4*h+r)
            k(f'v_mfma_f32_16x16x32_f16 {vr(D2+4*h,4)}, {vr(A2+4*h,4)}, {vr(RB2,4)}, 0')
        k(f'''v_readlane_b32 s53, v{D2}, 0
v_mov_b32 v{vt2}, s52
v_mul_f32 v{vt2}, -4.0, v{vt2}
v_mov_b32 v{vt}, s53
v_mul_f32 v{vt}, {fl(-16.0)}, v{vt}
v_add_f32 v{vt2}, v{vt2}, v{vt}''')
        for i in range(8):
            k(f'''v_fma_f32 v{D2+i}, v{D2+i}, s54, v{vt2 if i & 1 else vt}
v_add_f32 v{a+i}, v{a+i}, v{D2+i}
v_add_f32 v{b+i}, v{b+i}, v{D2+i}''')

    k(f'v_mov_b32 v{vt}, 0\nv_lshlrev_b32 v{vt2}, 2, v{vn}\nds_write_b32 v{vt2}, v{vt} offset:{L_KEY}')
    col_consts()
    if OPT['prio']: k(f's_cmp_lg_u32 s60, 0\ns_cbranch_scc1 {name}_pr\ns_setprio 2\n{name}_pr:')
    if OPT['p256']: k(f's_cmp_lg_u32 s2, 256\ns_cbranch_scc1 {name}_pr2\ns_setprio 3\n{name}_pr2:')
    k('s_waitcnt vmcnt(4) lgkmcnt(0)\ns_mul_i32 s40, s40, 0x9e3779b1\ns_add_u32 s40, s40, 0x7f4a7c15')
    k.stamp(2)
    unpack_direct(k, a, xd); unpack_mirror(k, b, xm, xm0)
    stats_and_out(1)
    k.stamp(3)
    k(f'''s_mul_i32 s36, s23, {XP}
s_add_u32 s36, s36, {hex(X2)}
buffer_store_dwordx4 {vr(cl,4)}, v{vfa}, s[4:7], s61 offen {SC}
v_lshlrev_b32 v{vt}, 4, v{vl}
buffer_store_dwordx4 {vr(cl,4)}, v{vt}, s[4:7], s36 offen {SC}
s_mov_b64 exec, 1
buffer_store_dwordx4 {vr(cl,4)}, off, s[4:7], s36 offset:1024 {SC}
s_mov_b64 exec, -1
s_sub_u32 s36, s2, 8
s_cmp_ge_u32 s36, {OPT['ru'] + 8*OPT['rh']}
s_cbranch_scc1 {name}_clr4
s_mul_i32 s36, s36, {PP}
s_add_u32 s36, s36, {hex(PG)}
buffer_store_dwordx4 {vr(cl,4)}, v{vfa}, s[4:7], s36 offen {SC}
{name}_clr4:''')
    unpack_direct(k, wa, wd); unpack_mirror(k, wb, wm, wm0)
    row_consts()
    k(f'v_add_f32 v{sw}, v{wa}, v{wa+1}')
    for i in range(2, 8): k(f'v_add_f32 v{sw}, v{sw}, v{wa+i}')
    k(f'v_mov_b32 v{vt}, v{sw}'); merge(k, sw, vt); red_half(k, [sw])
    k.stamp(7)
    col_phase(4, Q1, U1)
    k.stamp(6)
    k.nv = T0
    u1 = V(4, 4); u2 = V(4, 4)
    u_load('a', U1, u1)
    k.stamp(8)
    if not OPT['hu']: headsup(1)
    u_read(u1, u2)
    if OPT['dsk']: k(f's_cmp_lg_u32 s60, 0\ns_cbranch_scc1 {name}_nokey3')
    hid_dft(u1)
    stats_and_out(3)
    k.stamp(9)
    col_phase(10, Q2, U2)
    k.stamp(12)
    k.nv = T0
    u1 = V(4, 4); u2 = V(4, 4)
    OA = V(16, 4); up = V(16, 4); m1 = V(); m2 = V(); n1 = V(); n2 = V(); cs = V(4); vo = V(2); vup = V()
    k(f'v_mul_u32_u24 v{vup}, {OPT["kp"]}, v0')
    poll_keys(k, name, 1, vup, fg, fx, vt, 1, 's2', early=2*OPT['ek'])
    k(f'v_lshrrev_b32 v{vt}, 1, v{vfa}\nv_mov_b32 v{fg}, v{fg+2}\nds_write_b64 v{vt}, {vr(fg,2)} offset:{L_KT}\ns_waitcnt lgkmcnt(0)\ns_barrier')
    k(f'v_lshlrev_b32 v{vt}, 4, v{vl}\nds_read_b128 {vr(OA,4)}, v{vt} offset:{L_KT}\nds_read_b128 {vr(OA+4,4)}, v{vt} offset:{L_KT+1024}\ns_waitcnt lgkmcnt(0)')
    k(f'v_mov_b32 v{m1}, v{OA+1}\nv_mov_b32 v{m2}, v{OA}')
    for i in (2, 4, 6): top2_merge(k, m1, m2, OA+i+1, OA+i)
    top2_wave(k, m1, m2, n1, n2)
    k(f'v_med3_u32 v{m2}, v{m1}, v{m2}, v{fx+1}\nv_max_u32 v{m1}, v{m1}, v{fx+1}')
    k(f'''s_mov_b32 s36, {L_UD}
v_readfirstlane_b32 s56, v{m1}
v_readfirstlane_b32 s57, v{m2}
v_lshlrev_b32 v{vo}, 7, v{vg}
v_lshl_add_u32 v{vo}, v{vn}, 1, v{vo}
v_sub_u32 v{vo+1}, 928, v{vo}
v_cmp_eq_u32 vcc, 0, v{vl}
v_mov_b32 v{n1}, 512
v_add_u32 v{n2}, 96, v{vo+1}
v_cndmask_b32 v{n1}, v{vo}, v{n1}, vcc
v_and_b32 v{n2}, 1023, v{n2}
v_lshrrev_b32 v{vup}, 3, v0
v_lshlrev_b32 v{vup}, 7, v{vup}
v_and_b32 v{vt}, 3, v0
v_lshl_add_u32 v{vup}, v{vt}, 5, v{vup}
v_and_b32 v{vt}, 4, v0
v_add3_u32 v{vup}, v{vup}, v{vt}, s36''')
    sel_decode(k, 1, True)
    k(f'''s_cmp_ge_u32 s22, 2
s_cselect_b32 s36, s43, s42
v_lshrrev_b32 v{m1}, 1, v{vfa}
v_and_b32 v{m2}, 1023, v{m1}''')
    ld = [f'buffer_load_dwordx4 {vr(up+4*j,4)}, off, s[4:7], s{42+j} offset:1024 {SC}' for j in range(2)]
    ld.append(f'buffer_load_dwordx2 {vr(up+8,2)}, v{m2}, s[4:7], s36 offen {SC}')
    gather(k, f'{name}_go', '\n'.join(ld), ck_sent(vt, [up, up+4, up+8]), 1)
    k(f'ds_write_b64 v{m1}, {vr(up+8,2)} offset:{L_OLD}')
    for i in range(16): k(f'v_mov_b32 v{OA+i}, 0')
    k('s_waitcnt lgkmcnt(0)\ns_barrier')
    for j in range(2):
        o = L_OLD + 1024*j
        k(f'ds_read_u16_d16_hi v{OA+8*j}, v{n1} offset:{o}')
        for r in range(1, 4): k(f'ds_read_u16_d16_hi v{OA+8*j+r}, v{vo} offset:{o+32*r}')
        k(f'ds_read_u16_d16_hi v{OA+8*j+4}, v{n2} offset:{o}')
        for r in range(1, 4): k(f'ds_read_u16_d16_hi v{OA+8*j+4+r}, v{vo+1} offset:{o+96-32*r}')
    k(f'''s_mul_i32 s36, s56, s23
s_mul_i32 s37, s57, s23
s_and_b32 s36, s36, 2047
s_and_b32 s37, s37, 2047
v_cvt_f32_u32 v{cs}, s36
v_cvt_f32_u32 v{cs+2}, s37
v_mul_f32 v{cs}, {fl(1/2048)}, v{cs}
v_mul_f32 v{cs+2}, {fl(1/2048)}, v{cs+2}
v_sin_f32 v{cs+1}, v{cs}
v_sin_f32 v{cs+3}, v{cs+2}
v_cos_f32 v{cs}, v{cs}
v_cos_f32 v{cs+2}, v{cs+2}''')
    for i in range(4): k(f'v_mul_f32 v{cs+i}, {fl(0.25)}, v{cs+i}')
    OB = V(16)
    k('s_waitcnt lgkmcnt(0)')
    for j in range(2):
        for i in range(8):
            o = OA + 8*j + i
            k(f'v_sub_f32 v{OB+8*j+i}, v{o}, v{up+4*j}\nv_mul_f32 v{OB+8*j+i}, v{OB+8*j+i}, v{up+4*j+3}')
    for r in (vo, vo+1, n1, n2): k(f'v_lshlrev_b32 v{r}, 2, v{r}')
    k.stamp(13)
    k(f's_and_b32 s39, s2, {OPT["ru"]-1}\ns_mul_i32 s39, s39, {PP}\ns_add_u32 s39, s39, {hex(PG)}')
    pr = 240
    lu = lambda j: f'buffer_load_dwordx4 {vr(pr+4*j,4)}, v{vfa}, s[4:7], s39 offen {SC}'
    cu = lambda j: ck_sent(vt, range(pr+4*j, pr+4*j+4))
    wu = lambda j: f'ds_write2_b32 v{vup}, v{pr+4*j}, v{pr+4*j+1} offset0:0 offset1:2\nds_write2_b32 v{vup}, v{pr+4*j+2}, v{pr+4*j+3} offset0:4 offset1:6'
    if not OPT['upre']: k(lu(0))
    u_load('b', U2, u1)
    k.stamp(14)
    if OPT['pu']:
        k(cu(0) + f'\ns_cbranch_vccz {name}_gupf0')
        pgather(k, f'{name}_gup', lu, cu, wu, OPT['pu'], 1, OPT['pgap'])
    else:
        if OPT['upre']: wait_until(k, f'{name}_wu', OPT['upre'])
        gather(k, f'{name}_gup', lu(0), cu(0), OPT['usleep'], first=bool(OPT['upre']))
        k(wu(0))
    if not OPT['hu']: headsup(2)
    rd = [f'ds_read_b64 {vr(up,2)}, v{n1} offset:{L_UD}'] + [f'ds_read_b64 {vr(up+2*r,2)}, v{vo} offset:{L_UD+128*r}' for r in range(1, 4)]
    rd += [f'ds_read_b64 {vr(up+8,2)}, v{n2} offset:{L_UD}'] + [f'ds_read_b64 {vr(up+8+2*r,2)}, v{vo+1} offset:{L_UD+384-128*r}' for r in range(1, 4)]
    u_read(u1, u2, '\n'.join(rd))
    k.stamp(15)
    for i in range(8): k(f'v_add_f32 v{OA+i}, v{OA+i}, v{up+2*i}\nv_add_f32 v{OA+8+i}, v{OA+8+i}, v{up+2*i+1}')
    sa, qa, sb, qb = m1, m2, n1, n2
    for (S_, Q_, base) in ((sa, qa, OA), (sb, qb, OA+8)):
        k(f'v_add_f32 v{S_}, v{base}, v{base+1}\nv_mul_f32 v{Q_}, v{base}, v{base}')
        for i in range(1, 8):
            if i > 1: k(f'v_add_f32 v{S_}, v{S_}, v{base+i}')
            k(f'v_fmac_f32 v{Q_}, v{base+i}, v{base+i}')
    merge(k, sa, sb); merge(k, qa, qb)
    red_half(k, [sa, qa])
    k(f'''v_mul_f32 v{sa}, {fl(1/512)}, v{sa}
v_mul_f32 v{qa}, {fl(1/512)}, v{qa}
v_fma_f32 v{qa}, -v{sa}, v{sa}, v{qa}
v_max_f32 v{qa}, 0, v{qa}
v_add_f32 v{qa}, {fl(1e-5)}, v{qa}
v_rsq_f32 v{qa}, v{qa}
v_cmp_eq_u32 vcc, 0, v{vl}
v_mul_f32 v{sa}, v{sa}, v{qa}
v_readlane_b32 s48, v{qa}, 16
v_readlane_b32 s49, v{qa}, 48
v_readlane_b32 s50, v{sa}, 16
v_readlane_b32 s51, v{sa}, 48''')
    for j in range(2):
        A_ = OA + 8*j; B_ = OB + 8*j
        for i in range(8): k(f'v_fma_f32 v{A_+i}, v{A_+i}, s{48+j}, -v{B_+i}')
        k(f'v_cndmask_b32 v{A_+4}, v{A_+4}, v{A_}, vcc\nv_mov_b32 v{vt}, s{50+j}')
        for i in range(4):
            k(f'v_add_f32 v{B_+i}, v{A_+i}, v{A_+4+i}\nv_sub_f32 v{B_+4+i}, v{A_+i}, v{A_+4+i}\nv_fma_f32 v{B_+i}, v{vt}, -2.0, v{B_+i}')
    for i in range(4):
        k(f'''v_mul_f32 v{OB+i}, v{OB+i}, v{cs}
v_mul_f32 v{OB+4+i}, v{OB+4+i}, v{cs+1}
v_fmac_f32 v{OB+i}, v{OB+8+i}, v{cs+2}
v_fmac_f32 v{OB+4+i}, v{OB+12+i}, v{cs+3}
v_cndmask_b32 v{vt}, v{OB+i}, v{OB+4+i}, s[46:47]
v_cndmask_b32 v{vt2}, -v{OB+4+i}, v{OB+i}, s[46:47]
v_cvt_pk_f16_f32 v{vt}, v{vt}, v{vt2}
v_pk_add_f16 v{u1+i}, v{u1+i}, v{vt}''')
    k(f'''s_cmp_eq_u32 s56, s23
s_cselect_b32 s36, 1, 0
s_cmp_eq_u32 s56, s24
s_cselect_b32 s37, 1, 0
s_cmp_eq_u32 s57, s23
s_cselect_b32 s38, 1, 0
s_cmp_eq_u32 s57, s24
s_cselect_b32 s39, 1, 0
s_or_b32 s48, s36, s37
s_or_b32 s49, s38, s39
s_or_b32 s48, s48, s49
s_cbranch_scc0 {name}_noown
v_lshlrev_b32 v{m1}, 2, v{vod}
v_sub_u32 v{m2}, {4096-56}, v{m1}
v_lshlrev_b32 v{n1}, 2, v{vom0}
v_cvt_f32_u32 v{cs}, s36
v_cvt_f32_u32 v{cs+1}, s37
v_cvt_f32_u32 v{cs+2}, s38
v_cvt_f32_u32 v{cs+3}, s39''')
    for i in range(4): k(f'ds_read_b128 {vr(OA+4*i,4)}, v{m1} offset:{L_UD+16*i}')
    k(f'ds_read_b64 {vr(up,2)}, v{n1} offset:{L_UD}')
    for i in range(1, 8): k(f'ds_read_b64 {vr(up+2*i,2)}, v{m2} offset:{L_UD+56-8*i}')
    k('s_waitcnt lgkmcnt(0)')
    for i in range(8):
        for (row, src, o) in ((a, OA, 0), (b, up, 1)):
            k(f'v_fmac_f32 v{row+i}, v{src+2*i}, v{cs+o}\nv_fmac_f32 v{row+i}, v{src+2*i+1}, v{cs+2+o}')
    k.lab(f'{name}_noown')
    k.nv = T0 + 8
    if OPT['dsk']: k(f's_cmp_lg_u32 s60, 0\ns_cbranch_scc1 {name}_nokey5')
    hid_dft(u1)
    stats_and_out(5)
    k(f'''s_or_b32 s36, s2, s22
s_cbranch_scc1 {name}_noep
v_mov_b32 v{vt}, s40
v_mov_b32 v{vt2}, 0
s_mov_b32 s36, {hex(EPOCH)}
buffer_store_dword v{vt}, v{vt2}, s[4:7], s36 offen {SC}''')
    k.lab(f'{name}_noep')
    k(f'''s_cmp_lg_u32 s22, 0
s_waitcnt vmcnt(0)
s_barrier
s_cbranch_scc1 {name}_fin
s_mov_b64 exec, 1
buffer_store_dword v{fg}, off, s[4:7], s38 offset:64 {SC}
{name}_fin:''')
    k.endpgm()


def ffn_role(k, name):
    k.nv = 1
    V = k.v
    vl = V(); vn = V(); vg = V(); vt = V(); vt2 = V(); vw = V(); vtr = V(); vlw = V(); vky = V(); vo = V(); vro = V()
    fg = V(4, 4); fx = V(2, 2); m1 = V(2, 2); m2 = m1 + 1; n1 = V(); n2 = V(); old = V(4, 2)
    st = V(4, 4); Fr = V(56, 4); Wt = V(56, 4); Af = Wt; D = V(8, 4); R_ = V(32, 4); CS = V(8, 4)
    RED = 57344
    NF = OPT['nf']
    k(f"""v_and_b32 v{vl}, 63, v0
v_and_b32 v{vn}, 15, v0
v_bfe_u32 v{vg}, v0, 4, 2
v_mul_u32_u24 v{vky}, {OPT['kp']}, v0
s_and_b32 s20, s3, 7
s_bfe_u32 s21, s3, 0x20003
v_lshrrev_b32 v{vt}, 1, v{vl}
v_and_b32 v{vt2}, 1, v{vl}
v_cmp_eq_u32 s[52:53], 1, v{vt2}
v_lshlrev_b32 v{vt2}, 4, v{vt2}
v_lshlrev_b32 v{vtr}, 8, v{vg}
v_lshl_add_u32 v{vtr}, v{vn}, 3, v{vtr}
v_lshlrev_b32 v{vlw}, 4, v{vl}
v_cmp_gt_u32 s[54:55], 2, v{vn}
s_lshl_b32 s61, s20, 7
s_add_u32 s61, s61, {hex(HU)}
s_mov_b32 s27, {fl(-1.4426950408889634)}
s_waitcnt lgkmcnt(0)
s_add_u32 s38, s30, {hex(EPOCH)}
s_addc_u32 s39, s31, 0
s_load_dword s40, s[38:39], 0""")
    k.stamp(1)
    srd(k, 4, 30, WS_BYTES); srd(k, 8, 58, 2048*1024)
    if OPT['fdel']: k(f's_sleep {OPT["fdel"]}')
    k(f's_cmp_ge_u32 s3, 128\ns_cbranch_scc1 {name}_cons')

    def select(layer, role):
        nm = f'{name}_{role}'
        gather(k, f'{nm}_g{layer}', f'buffer_load_dword v{fg}, off, s[4:7], s61 offset:{1024*(layer-1)} {SC}', ck_tag(0, [fg]), OPT['gsleep'])
        if OPT['hdel']: k(f's_sleep {OPT["hdel"]}')
        poll_keys(k, nm, layer, vky, fg, fx, vt, OPT['fsleep'], 's3', regs=R_ if OPT['pk'] else 0)
        if OPT['prio']: k('s_setprio 3')
        k.stamp(3 + 6*(layer-1))
        k(f'v_mov_b32 v{m1}, v{fg+1}\nv_mov_b32 v{m2}, v{fg+2}')
        top2_row(k, m1, m2, n1, n2)
        k(f"""v_lshrrev_b32 v{vt}, 4, v0
v_lshlrev_b32 v{vt}, 3, v{vt}
v_lshlrev_b32 v{vt2}, 3, v{vn}
ds_write_b64 v{vt}, {vr(m1,2)} offset:{RED}
s_waitcnt lgkmcnt(0)
s_barrier
ds_read_b64 {vr(m1,2)}, v{vt2} offset:{RED}
s_waitcnt lgkmcnt(0)""")
        top2_row(k, m1, m2, n1, n2)
        k(f"""v_med3_u32 v{m2}, v{m1}, v{m2}, v{fx+1}
v_max_u32 v{m1}, v{m1}, v{fx+1}
v_and_b32 v{n2}, 0x73f, v{m2}
v_and_b32 v{n1}, 0x73f, v{m1}
v_add_u32 v{vt}, 64, v{n2}
v_cmp_eq_u32 vcc, v{n1}, v{n2}
s_mov_b32 s36, {hex(X2 + (layer-1)*128*XP)}
v_cndmask_b32 v{n2}, v{n2}, v{vt}, vcc
v_cndmask_b32 v{n1}, v{n1}, v{n2}, s[52:53]
v_mul_u32_u24 v{vro}, {XP}, v{n1}""")
        k.stamp(4 + 6*(layer-1))
    def prefetch(rows_per_wave, pitch):
        if OPT['pref'] == 2:
            k(f'v_lshlrev_b32 v{vo}, 6, v{vl}\ns_lshr_b32 s36, s23, 3\ns_add_u32 s36, s36, s22\ns_mul_i32 s36, s36, {128*rows_per_wave}')
            return
        k(f"""v_mul_u32_u24 v{vo}, 3, v{vt2}
v_add_u32 v{vo}, v{vo}, v{vw}
s_lshl_b32 s36, s21, 2
s_add_u32 s36, s36, s22
s_mul_i32 s36, s36, {rows_per_wave*pitch}
s_andn2_b32 s37, s23, 127
s_add_u32 s36, s36, s37""")

    k(f"""s_lshr_b32 s23, s3, 5
s_lshl_b32 s23, s23, 3
s_add_u32 s23, s23, s20
s_cmp_ge_u32 s23, 28
s_cbranch_scc1 {name}_end
s_lshl_b32 s23, s23, 7
s_lshl_b32 s24, s21, 5
s_add_u32 s23, s23, s24
s_mul_i32 s24, s22, {128*3584}
s_add_u32 s24, s24, s23
s_mov_b32 s25, 3584
v_mad_u32_u24 v{vw}, v{vt}, s25, v{vt2}""")
    srd(k, 12, 46, 512*3584); srd(k, 16, 48, 512*3584)
    if OPT['pref']:
        prefetch(32, 3584)
        trickle(k, f'buffer_load_dword v{Wt}, v{vo}, s[12:15], s36 offen', f'buffer_load_dword v{Wt+1}, v{vo}, s[16:19], s36 offen')
        k.stamp(7)
        wait_until(k, f'{name}_wp', OPT['tp'])
        k.stamp(8)
    for kap in range(4):
        k(f'buffer_load_dwordx4 {vr(Wt+4*kap,4)}, v{vw}, s[12:15], s24 offen\ns_waitcnt vmcnt({NF-1})')
        k(f'buffer_load_dwordx4 {vr(Wt+16+4*kap,4)}, v{vw}, s[16:19], s24 offen\ns_waitcnt vmcnt({NF-1})')
        if kap < 3: k(f's_add_u32 s24, s24, {32*3584}')
    k(f"""s_lshl_b32 s25, s22, 13
v_add_u32 v{vtr}, s25, v{vtr}
v_add_u32 v{vlw}, s25, v{vlw}
s_waitcnt vmcnt(0)""")
    for i in range(8): k(f'ds_write_b128 v{vlw}, {vr(Wt+4*i,4)} offset:{1024*i}')
    k('s_waitcnt lgkmcnt(0)\ns_mul_i32 s40, s40, 0x9e3779b1\ns_add_u32 s40, s40, 0x7f4a7c15')
    for i in range(8):
        for u in range(2): k(f'ds_read_b64_tr_b16 {vr(Fr+4*i+2*u,2)}, v{vtr} offset:{1024*i+128*u}')
    for i in range(16): k(f'v_mov_b32 v{Af+i}, 0x3f803f80')
    k(f"""v_lshlrev_b32 v{vo}, 5, v{vn}
v_lshl_add_u32 v{vo}, v{vg}, 3, v{vo}
v_lshlrev_b32 v{vtr}, 6, v{vn}
v_lshl_add_u32 v{vtr}, v{vg}, 4, v{vtr}
s_lshl_b32 s26, s22, 8
v_add_u32 v{vlw}, s26, v{vtr}
v_lshl_add_u32 v{vw}, v{vg}, 4, s26
s_lshr_b32 s23, s23, 5
s_mul_i32 s24, s23, 2341
s_lshr_b32 s24, s24, 16
s_mul_i32 s24, s24, {PP - 28*128}
s_lshl_b32 s23, s23, 7
s_add_u32 s23, s23, s24
s_mul_i32 s24, s22, {32*PP}
s_add_u32 s23, s23, s24
v_and_b32 v{vo}, 63, v{vo}
v_lshrrev_b32 v{vt}, 1, v{vn}
v_mul_u32_u24 v{vt}, {4*PP}, v{vt}
v_add_u32 v{vo}, v{vo}, v{vt}
v_and_b32 v{vtr}, 127, v{vtr}
v_cmp_gt_u32 s[62:63], {2*min(OPT['rh'],8)}, v{vn}
s_waitcnt lgkmcnt(0)""")
    for kap in range(4):
        for mat in range(2):
            d = vr(CS+4*mat, 4)
            k(f'v_mfma_f32_16x16x32_bf16 {d}, {vr(Fr+16*mat+4*kap,4)}, {vr(Af,4)}, {d if kap else 0}')
    k.stamp(2)
    for layer in (1, 2):
        select(layer, 'p')
        k(f'v_add_u32 v{vt2}, v{vro}, v{vw}\ns_mov_b64 exec, s[54:55]')
        ld = [f'buffer_load_dwordx4 {vr(Af+4*kap,4)}, v{vt2}, s[4:7], s36 offen offset:{64*kap} {SC}' for kap in range(4)]
        ld.append(f'buffer_load_dwordx2 {vr(st,2)}, v{vro}, s[4:7], s36 offen offset:1024 {SC}')
        gather(k, f'{name}_gr{layer}', '\n'.join(ld), ck_sent(vt, [st] + [Af+4*i for i in range(4)]))
        k.stamp(5 + 6*(layer-1))
        for i in range(8): k(f'v_mul_f32 v{D+i}, -v{CS+i}, v{st}')
        for kap in range(4):
            for mat in range(2):
                d = vr(D+4*mat, 4)
                k(f'v_mfma_f32_16x16x32_bf16 {d}, {vr(Fr+16*mat+4*kap,4)}, {vr(Af+4*kap,4)}, {d}')
        k(f"""s_mov_b64 exec, s[54:55]
s_add_u32 s36, s23, {hex(hpg(layer))}
s_cmp_ge_u32 s22, {max(OPT['rh']//8,1)}
ds_write_b128 v{vlw}, {vr(D,4)} offset:{RED+128}
ds_write_b128 v{vlw}, {vr(D+4,4)} offset:{RED+128+128}
s_mov_b64 exec, -1
v_mov_b32_dpp v{n1}, v{st+1} row_newbcast:0 row_mask:0xf bank_mask:0xf
v_mov_b32_dpp v{n2}, v{st+1} row_newbcast:1 row_mask:0xf bank_mask:0xf
s_mov_b64 exec, s[62:63]
v_cndmask_b32 v{n2}, v{n1}, v{n2}, s[52:53]
v_mul_f32 v{n1}, s27, v{n2}
v_mul_f32 v{n2}, v{n2}, v{n2}
s_waitcnt lgkmcnt(0)
s_barrier
s_cbranch_scc1 {name}_pn{layer}""")
        for i in range(2): k(f'ds_read_b128 {vr(D+4*i,4)}, v{vtr} offset:{RED+128+128*i}')
        for i in range(2, 8): k(f'ds_read_b128 {vr(R_+4*i,4)}, v{vtr} offset:{RED+128+128*i}')
        for w in range(1, 4):
            k(f's_waitcnt lgkmcnt({6-2*w})')
            for i in range(8): k(f'v_add_f32 v{D+i}, v{D+i}, v{R_+8*w+i}')
        for r in range(4): k(f'v_mul_f32 v{R_+r}, v{n1}, v{D+r}')
        for r in range(4): k(f'v_exp_f32 v{R_+r}, v{R_+r}\nv_mul_f32 v{D+r}, v{D+r}, v{D+4+r}')
        for r in range(4): k(f'v_add_f32 v{R_+r}, 1.0, v{R_+r}')
        for r in range(4): k(f'v_rcp_f32 v{R_+r}, v{R_+r}\nv_mul_f32 v{D+r}, v{D+r}, v{n2}')
        for r in range(4): k(f'v_mul_f32 v{D+r}, v{D+r}, v{R_+r}')
        k(f"""v_cvt_pk_bf16_f32 v{m1}, v{D}, v{D+1}
v_cvt_pk_bf16_f32 v{m2}, v{D+2}, v{D+3}
buffer_store_dwordx2 {vr(m1,2)}, v{vo}, s[4:7], s36 offen {SC}""")
        k.lab(f'{name}_pn{layer}')
        k('s_mov_b64 exec, -1')
        if OPT['prio']: k('s_setprio 0')
        k.stamp(6 + 6*(layer-1))
    k.endpgm()
    k.lab(f'{name}_cons')
    k(f"""s_lshl_b32 s23, s20, 7
s_lshl_b32 s24, s21, 5
s_add_u32 s23, s23, s24
s_mul_i32 s24, s22, {448*1024}
s_add_u32 s24, s24, s23
v_lshl_add_u32 v{vw}, v{vt}, 10, v{vt2}""")
    srd(k, 12, 50, 1792*1024)
    k(f'''s_cmp_lt_u32 s3, 160
s_cbranch_scc1 {name}_cons2
s_sub_u32 s36, s3, 160
s_lshr_b32 s36, s36, 3
s_lshl_b32 s36, s36, 2
s_add_u32 s36, s36, s22
s_mul_i32 s36, s36, {41*1024}
s_lshl_b32 s37, s20, 7
s_add_u32 s36, s36, s37
s_add_u32 s37, s36, {21*1024}
v_mul_u32_u24 v{vo}, 3, v{vt2}
v_add_u32 v{vo}, v{vo}, v{vw}
''')
    trickle(k, f'buffer_load_dword v{Wt}, v{vo}, s[12:15], s36 offen', f'buffer_load_dword v{Wt+1}, v{vo}, s[12:15], s37 offen')
    k(f's_endpgm\n{name}_cons2:')
    wait_until(k, f'{name}_wc', OPT['tc'])
    k.stamp(8)
    NF = OPT['nfc']
    for kap in range(14):
        k(f'buffer_load_dwordx4 {vr(Wt+4*kap,4)}, v{vw}, s[12:15], s24 offen\ns_waitcnt vmcnt({NF-1})')
        if kap < 13: k(f's_add_u32 s24, s24, {32*1024}')
    k(f"""s_mul_i32 s25, s22, {14*1024}
v_add_u32 v{vtr}, s25, v{vtr}
v_add_u32 v{vlw}, s25, v{vlw}
s_waitcnt vmcnt(0)""")
    for i in range(14): k(f'ds_write_b128 v{vlw}, {vr(Wt+4*i,4)} offset:{1024*i}')
    k('s_waitcnt lgkmcnt(0)\ns_mul_i32 s40, s40, 0x9e3779b1\ns_add_u32 s40, s40, 0x7f4a7c15')
    for i in range(14):
        for u in range(2): k(f'ds_read_b64_tr_b16 {vr(Fr+4*i+2*u,2)}, v{vtr} offset:{1024*i+128*u}')
    for i in range(56): k(f'v_mov_b32 v{Af+i}, 0')
    k(f"""v_lshrrev_b32 v{vt}, 1, v{vg}
v_and_b32 v{vt2}, 1, v{vg}
v_lshlrev_b32 v{vw}, 7, v{vt}
v_lshl_add_u32 v{vw}, v{vt2}, 4, v{vw}
v_lshl_add_u32 v{vw}, v{vn}, 5, v{vw}
s_waitcnt lgkmcnt(0)
v_lshlrev_b32 v{vtr}, 6, v{vn}
v_lshl_add_u32 v{vtr}, v{vg}, 4, v{vtr}
s_lshl_b32 s26, s22, 7
v_add_u32 v{vlw}, s26, v{vtr}
v_and_b32 v{vtr}, 127, v{vtr}
v_lshrrev_b32 v{vt}, 1, v{vn}
v_mul_u32_u24 v{vt}, {PP}, v{vt}
v_add_u32 v{vo}, v{vtr}, v{vt}
v_cmp_gt_u32 s[62:63], {2*min(OPT['ru'],8)}, v{vn}""")
    k.stamp(2)
    for layer in (1, 2):
        select(layer, 'c')
        ex = 's[54:55]' if layer == 2 else '-1'
        k(f's_mov_b64 exec, {ex}')
        ld = [f'buffer_load_dwordx4 {vr(st,4)}, v{vro}, s[4:7], s36 offen offset:1024 {SC}']; ck = [st, st+2]
        if layer == 2:
            k(f"""v_cndmask_b32 v{m1}, v{m1}, v{m2}, s[52:53]
s_add_u32 s38, s36, s23
v_lshl_add_u32 v{vt2}, v{vg}, 3, v{vro}
v_and_b32 v{n1}, 2047, v{m1}
v_sub_u32 v{n2}, 2048, v{n1}
v_and_b32 v{vt}, 2048, v{m1}
v_cmp_ne_u32 vcc, 0, v{vt}
v_and_b32 v{vl}, 63, v{n1}
v_cndmask_b32 v{vo}, v{n1}, v{n2}, vcc
v_lshlrev_b32 v{vo}, 10, v{vo}
v_lshl_add_u32 v{vo}, v{vg}, 3, v{vo}
v_cmp_eq_u32 vcc, 32, v{vl}
v_lshlrev_b32 v{vl}, 3, v{vl}
v_cndmask_b32 v{vl}, v{vl}, 4, vcc
v_lshrrev_b32 v{n2}, 8, v{n1}
v_add_u32 v{vl}, v{vl}, v{n2}
v_mov_b32 v{n2}, 256
v_cmp_eq_u32 vcc, 0x400, v{n1}
v_cndmask_b32 v{vl}, v{vl}, v{n2}, vcc
v_lshlrev_b32 v{vl}, 7, v{vl}""")
            ld.append(f'buffer_load_dwordx2 {vr(old,2)}, v{vt2}, s[4:7], s38 offen {SC}'); ck += [old, old+1]
        gather(k, f'{name}_gs{layer}', '\n'.join(ld), ck_sent(vt, ck), 1, ex)
        k(f"""s_and_b32 s26, s3, {OPT['rh']-1}
s_lshl_b32 s26, s26, 2
s_add_u32 s26, s26, s22
s_mul_i32 s26, s26, {PP}
s_add_u32 s26, s26, {hex(hpg(layer))}
v_mul_f32 v{n1}, s27, v{st+2}
v_exp_f32 v{n1}, v{n1}
v_and_b32 v{old+3}, 0xffff0000, v{old+1}
v_lshlrev_b32 v{old+2}, 16, v{old+1}
v_add_f32 v{n1}, 1.0, v{n1}
v_and_b32 v{old+1}, 0xffff0000, v{old}
v_lshlrev_b32 v{old}, 16, v{old}
v_rcp_f32 v{n1}, v{n1}
s_mov_b64 exec, s[54:55]""")
        if layer == 2:
            k(f's_mov_b32 s36, {hex(KEY2 + 64)}')
            gather(k, f'{name}_gd', f'buffer_load_dword v{fg}, v{vl}, s[4:7], s36 offen {SC}', ck_tag(0, [fg]), 1, 's[54:55]')
        ld = [f'buffer_load_dwordx4 {vr(Af+4*kap,4)}, v{vw}, s[4:7], s26 offen offset:{256*kap} {SC}' for kap in range(14)]
        hp = OPT['hpre'] if layer == 1 else OPT['hpre2']
        if hp: k(f's_sleep {hp}')
        gather(k, f'{name}_gh{layer}', '\n'.join(ld), ck_sent(vt, range(Af, Af+56, 2)), OPT['hsleep'])
        k.stamp(5 + 6*(layer-1))
        for kap in range(14):
            d = vr(D+4*(kap&1), 4)
            k(f'v_mfma_f32_16x16x32_bf16 {d}, {vr(Fr+4*kap,4)}, {vr(Af+4*kap,4)}, {d if kap > 1 else 0}')
        k(f's_lshl_b32 s36, s23, 2\ns_mul_i32 s37, s22, {8*PP}\ns_add_u32 s36, s36, s37\ns_add_u32 s36, s36, {hex(PG)}\ns_cmp_ge_u32 s22, {max(OPT["ru"]//8,1) if layer == 1 else 1}')
        for r in range(4): k(f'v_add_f32 v{D+r}, v{D+r}, v{D+4+r}')
        k(f"""s_mov_b64 exec, s[54:55]
ds_write_b128 v{vlw}, {vr(D,4)} offset:{RED+128}
s_waitcnt lgkmcnt(0)
s_barrier
s_cbranch_scc1 {name}_cn{layer}""")
        if layer == 1: k(f's_mov_b64 exec, s[62:63]\nds_read_b128 {vr(D,4)}, v{vtr} offset:{RED+128}')
        for i in range(1, 4): k(f'ds_read_b128 {vr(R_+4*i,4)}, v{vtr} offset:{RED+128+128*i}')
        for w in range(1, 4):
            k(f's_waitcnt lgkmcnt({3-w})')
            for r in range(4): k(f'v_add_f32 v{D+r}, v{D+r}, v{R_+4*w+r}')
        if layer == 2:
            for r in range(4): k(f'v_fma_f32 v{D+r}, v{D+r}, v{n1}, v{old+r}')
            k(f"""v_cvt_pk_bf16_f32 v{m1}, v{D}, v{D+1}
v_cvt_pk_bf16_f32 v{m2}, v{D+2}, v{D+3}
buffer_store_dwordx2 {vr(m1,2)}, v{vo}, s[8:11], s23 offen""")
        else:
            for r in range(4): k(f'v_mul_f32 v{D+r}, v{D+r}, v{n1}')
            for i in range(max(OPT['ru']//32, 1)):
                if i: k(f's_add_u32 s36, s36, {32*PP}')
                k(f'buffer_store_dwordx4 {vr(D,4)}, v{vo}, s[4:7], s36 offen {SC}')
        k.lab(f'{name}_cn{layer}')
        k('s_mov_b64 exec, -1')
        if OPT['prio']: k('s_setprio 0')
        k.stamp(6 + 6*(layer-1))
    k.endpgm()

CPF = '''s_getpc_b64 s[62:63]
v_lshlrev_b32 v2, 7, v0
v_min_u32 v2, CODE_END, v2
global_load_dword v239, v2, s[62:63]'''
def build(name):
    k = K(name); k.kidx = 0
    k.stamp(0)
    k(f"""s_load_dwordx2 s[32:33], s[0:1], 0
s_load_dwordx2 s[30:31], s[0:1], 96
s_load_dwordx8 s[44:51], s[0:1], 48
s_load_dwordx2 s[58:59], s[0:1], 80
{CPF if OPT['cpf'] else ''}
v_lshrrev_b32 v1, 6, v0
s_sub_u32 s3, s2, {NMAIN}
v_readfirstlane_b32 s22, v1
s_cbranch_scc0 L_ffn""")
    k.dbgsel = [(0,0),(1,2),(2,3),(3,4),(4,6),(5,8),(6,9),(7,10),(8,12),(9,15),(10,16)]
    main_role(k, 'M')
    k.dbgsel = [(11,2),(12,3),(13,6),(14,9),(15,16)]
    k.lab('L_ffn')
    k(f's_cmp_ge_u32 s3, {NFFN}\ns_cbranch_scc1 F_end')
    k('s_memrealtime s[96:97]')
    ffn_role(k, 'F')
    k.lab('F_end'); k('s_endpgm')
    k(f'.set CODE_END, F_end - {name} - 64')
    return k

def emit(k, grid, lds, path, aslist):
    hdr = open('cdna_kernels/' + NAME + '.s.ref').read().split('\n')
    out = [l for l in hdr if l.startswith(';') and '@launch' not in l and 'Override launch' not in l and 'grid=ceil' not in l]
    out.append(f'; @launch {"kernel="+k.name+" " if aslist else ""}grid=({grid},1,1) block=(256,1,1) lds={lds}')
    out.append('.amdgcn_target "amdgcn-amd-amdhsa--gfx950"\n.text')
    out.append(f'.globl {k.name}\n.p2align 8\n.type {k.name},@function\n{k.name}:')
    L = k.L
    if OPT['now']:
        i0 = L.index('L_ffn:')
        def keep(l):
            if 's[12:15]' in l or 's[16:19]' in l:
                return not (OPT['now'] == 1 or (OPT['now'] == 2 and 'x4' in l) or (OPT['now'] == 3 and 'x4' not in l))
            return True
        L = L[:i0] + [l for l in L[i0:] if keep(l)]
    out += fix_hazards(L)
    out.append('.section .rodata,"a"')
    nv = 256; assert k.maxv <= 240
    out.append(f""".p2align 6
.amdhsa_kernel {k.name}
  .amdhsa_next_free_vgpr {nv}
  .amdhsa_next_free_sgpr 102
  .amdhsa_accum_offset {nv}
  .amdhsa_group_segment_fixed_size 0
  .amdhsa_kernarg_size 104
  .amdhsa_user_sgpr_count 2
  .amdhsa_user_sgpr_kernarg_segment_ptr 1
  .amdhsa_system_sgpr_workgroup_id_x 1
.end_amdhsa_kernel""")
    open(path, 'w').write('\n'.join(out) + '\n')

if __name__ == '__main__':
    for a in sys.argv[2:]:
        if a == 'stamp': K.STAMP = True
        elif a == 'list': pass
        elif a == 'dbg': K.STAMP = True; K.DBG = True
        else:
            kk, vv = a.split('='); OPT[kk] = int(vv)
    K.NST = 17
    k = build(NAME + '_kernel')
    print('vgprs', k.maxv, 'instrs', len(k.L))
    emit(k, NMAIN + NFFN, 57344 + 2304, sys.argv[1], 'list' in sys.argv or 'stamp' in sys.argv)
```

```python
import sys, struct
from asmlib import *
from gen import fl, srd, red_half, merge, unpack_direct, unpack_mirror, DPP, NAME, PITCH
Q1, Q2, U1, U2 = 0x000000, 0x210000, 0x320000, 0x430000
X2, XP = 0x540000, 1152
KEY1, KEY2 = 0x780000, 0x790000
H1, H2, UPD = 0x7B0000, 0x7B4000, 0x7B8000
HU, EPOCH = 0x7C0000, 0x7C1000
WS_BYTES = 0x10000000
SC = 'sc0 sc1'
NMAIN, NFFN = 257, 248
KR1, KR2 = 0x800000, 0x940000
def krs(): return (257*OPT['kp'] + 127)//128*128 + 128*(1 - ((257*OPT['kp'] + 127)//128) % 2)
PG, PP = 0xA80000, 4352
def hpg(layer): return PG + PP*(OPT['ru'] + (layer-1)*4*OPT['rh'])
OPT = dict(wk='XAXBXCXD', pad=0, al=2, tq1=0, tu1=0, tq2=130, p256=0, dsk=1, hpre2=14, u256=60, upre=400, osc=0, usleep=0, hsleep=0, hu=1, hdel=6, pk=0, pgap=5, ek=1, pu=0, kp=16, kr=4, kx=1, ru=16, rh=8, ro=1, ro5=1, qdel=10, sleep=0, fsleep=0, gsleep=4, nf=2, pref=1, drain=1, pre=0, cpf=1, fdel=8, odel=0, hpre=26, tp=400, tc=400, nfc=2, ns=2, now=0, w256=20, prio=1)
L_U, L_Q, L_KEY, L_UD, L_X, L_KT, L_TR, L_OLD = 0, 4096, 8192, 8448, 12544, 21760, 23808, 32000
XOR4 = ('quad_perm:[1,0,3,2]', 'quad_perm:[2,3,0,1]', 'row_half_mirror', 'row_mirror')

def gather(k, lab, loads, check, sleep=0, restore='-1', first=True):
    k('s_mov_b32 s37, 0x10000')
    if not first: k(f's_branch {lab}c')
    elif sleep: k(f's_branch {lab}')
    if sleep:
        k.lab(f'{lab}s'); k(f's_sleep {sleep}')
    k.lab(lab)
    k(loads)
    if not first: k.lab(f'{lab}c')
    k(f's_sub_u32 s37, s37, 1\ns_waitcnt vmcnt(0)'); k(check)
    k(f's_cbranch_scc1 {lab}x\ns_mov_b64 exec, vcc\ns_cbranch_vccnz {lab}{"s" if sleep else ""}')
    k.lab(f'{lab}x')
    k(f's_mov_b64 exec, {restore}')
def pgather(k, lab, loads, check, fin, np_, nl, gap):
    k('s_mov_b32 s37, 0x4000')
    for j in range(np_):
        k(loads(j))
        if j < np_ - 1 and gap: k(f's_sleep {gap}')
    k.lab(lab)
    for j in range(np_):
        k(f's_waitcnt vmcnt({(np_-1)*nl})'); k(check(j))
        k(f's_cbranch_vccz {lab}f{j}'); k(loads(j))
    k(f's_sub_u32 s37, s37, 1\ns_cbranch_scc0 {lab}\ns_waitcnt vmcnt(0)')
    for j in range(np_):
        k.lab(f'{lab}f{j}'); k(fin(j))
        if j < np_ - 1: k(f's_branch {lab}x')
    k.lab(f'{lab}x')
def ck_tag(t, regs):
    if len(regs) == 1: return f'v_cmp_ne_u32 vcc, s40, v{regs[0]}'
    o = [f'v_bitop3_b32 v{t}, v{regs[0]}, v{regs[1]}, s40 bitop3:0x7e']
    o += [f'v_bitop3_b32 v{t}, v{t}, v{r}, s40 bitop3:0xf6' for r in regs[2:]]
    return '\n'.join(o + [f'v_cmp_ne_u32 vcc, 0, v{t}'])
def ck_sent(t, regs, val='-1'):
    regs = list(regs); o = []
    if len(regs) % 2 == 0: o.append(f'v_max_u32 v{t}, v{regs[0]}, v{regs[1]}'); regs = regs[2:]
    else: o.append(f'v_max3_u32 v{t}, v{regs[0]}, v{regs[1]}, v{regs[2]}'); regs = regs[3:]
    for i in range(0, len(regs), 2): o.append(f'v_max3_u32 v{t}, v{t}, v{regs[i]}, v{regs[i+1]}')
    return '\n'.join(o + [f'v_cmp_eq_u32 vcc, {val}, v{t}'])
def poll_keys(k, name, layer, vky, fg, fx, t, sleep, sid, regs=0, early=0):
    KEY = KR1 if layer == 1 else KR2
    k(f's_and_b32 s36, {sid}, {OPT["kr"]-1}\ns_mul_i32 s36, s36, {krs()}\ns_add_u32 s36, s36, {hex(KEY)}\ns_add_u32 s38, s36, {256*OPT["kp"]}')
    if regs:
        pgather(k, f'{name}_pp{layer}', lambda j: f'buffer_load_dwordx3 {vr(regs+8*j,3)}, v{vky}, s[4:7], s36 offen {SC}\nbuffer_load_dwordx2 {vr(regs+8*j+4,2)}, off, s[4:7], s38 {SC}',
                lambda j: ck_tag(t, [regs+8*j, regs+8*j+4]), lambda j: f'v_mov_b32 v{fg+1}, v{regs+8*j+1}\nv_mov_b32 v{fg+2}, v{regs+8*j+2}\nv_mov_b32 v{fx+1}, v{regs+8*j+5}', OPT['pk'], 2, OPT['pgap'])
        return
    lx = f'buffer_load_dwordx2 {vr(fx,2)}, off, s[4:7], s38 {SC}'
    lk = f'buffer_load_dwordx3 {vr(fg,3)}, v{vky}, s[4:7], s36 offen {SC}'
    if early == 1: k(lx + '\n' + lk); return
    if early == 2: k(ck_tag(t, [fg, fx]) + f'\ns_cbranch_vccz {name}_pz{layer}')
    k(lx)
    gather(k, f'{name}_pk{layer}', f'buffer_load_dwordx3 {vr(fg,3)}, v{vky}, s[4:7], s36 offen {SC}', ck_tag(t, [fg]), sleep)
    gather(k, f'{name}_px{layer}', lx, ck_tag(t, [fx]), sleep, first=False)
    if early == 2: k.lab(f'{name}_pz{layer}')
def sel_decode(k, layer, rows):
    k(f"""s_and_b32 s42, s56, 0x73f
s_and_b32 s43, s57, 0x73f
s_cmp_eq_u32 s42, s43
s_cselect_b32 s36, 64, 0
s_add_u32 s43, s43, s36
s_mul_i32 s42, s42, {XP}
s_mul_i32 s43, s43, {XP}
s_add_u32 s42, s42, {hex(X2 + (layer-1)*128*XP)}
s_add_u32 s43, s43, {hex(X2 + (layer-1)*128*XP)}""")
    if rows:
        for r in (56, 57):
            k(f's_and_b32 s36, s{r}, 2047\ns_sub_u32 s37, 2048, s36\ns_bitcmp1_b32 s{r}, 11\ns_cselect_b32 s{r}, s37, s36')

def wait_until(k, lab, T):
    k(f's_mov_b32 s37, 64\n{lab}:\ns_memrealtime s[98:99]\ns_sub_u32 s37, s37, 1\ns_cbranch_scc1 {lab}x\ns_waitcnt lgkmcnt(0)\ns_sub_u32 s98, s98, s96\ns_cmp_ge_u32 s98, {T}\ns_cbranch_scc1 {lab}x\ns_sleep 2\ns_branch {lab}\n{lab}x:')
def walk(k, c):
    if OPT['pad'] and c in OPT['wk']:
        k(f's_mov_b64 exec, 0\ns_cmp_eq_u32 s22, 1\ns_cbranch_scc1 {c}W1\ns_cmp_eq_u32 s22, 2\ns_cbranch_scc1 {c}W2\ns_cmp_eq_u32 s22, 3\ns_cbranch_scc1 {c}W3\ns_branch {c}W0\nWRET{c}:\ns_mov_b64 exec, -1')
def trickle(k, l0, l1):
    ns = OPT['ns']
    if ns == 1: k(f'{l0}\n{l1}')
    elif ns == 2: k(f'{l0}\ns_waitcnt vmcnt(0)\n{l1}')
    else:
        n = ns // 2; w = 64 // n
        for l in (l0, l1):
            for i in range(n):
                m = ((1 << w) - 1) << (w*i)
                k(f's_mov_b32 exec_lo, {hex(m & 0xffffffff)}\ns_mov_b32 exec_hi, {hex(m >> 32)}\n{l}\ns_waitcnt vmcnt(0)')
        k('s_mov_b64 exec, -1')
    k('s_waitcnt vmcnt(0)')
def top2_merge(k, m1, m2, n1, n2):
    k(f'v_max_u32 v{m2}, v{m2}, v{n2}\nv_med3_u32 v{m2}, v{m1}, v{m2}, v{n1}\nv_max_u32 v{m1}, v{m1}, v{n1}')
def top2_row(k, m1, m2, n1, n2):
    for m in XOR4:
        k(f'v_mov_b32_dpp v{n1}, v{m1} {m} {DPP}\nv_mov_b32_dpp v{n2}, v{m2} {m} {DPP}')
        top2_merge(k, m1, m2, n1, n2)
def top2_wave(k, m1, m2, n1, n2):
    top2_row(k, m1, m2, n1, n2)
    for sw in ('v_permlane16_swap_b32', 'v_permlane32_swap_b32'):
        k(f'v_mov_b32 v{n1}, v{m1}\nv_mov_b32 v{n2}, v{m2}\n{sw} v{m1}, v{n1}\n{sw} v{m2}, v{n2}')
        top2_merge(k, m1, m2, n1, n2)

def twiddle(k, re, im, c_, s_, t0, t1, dst):
    k(f'''v_mul_f32 v{t0}, v{re}, v{c_}
v_mul_f32 v{t1}, v{im}, v{c_}
v_fmac_f32 v{t0}, v{im}, v{s_}
v_fma_f32 v{t1}, -v{re}, v{s_}, v{t1}
v_cvt_pk_f16_f32 v{dst}, v{t0}, v{t1}''')

def main_role(k, name):
    k.nv = 1
    V = k.v
    vl = V(); vn = V(); vg = V(); vch = V(); vod = V(); vom = V(); vom0 = V(); vp = V(); vt = V(); vt2 = V()
    vfa = V(); bpf = V(); vqw = V(); bpm = V(); vra = V(); vrb = V(); vsg = V(); sw = V()
    va = V(); vst = V(); xa = V(6); vq1 = V(); vq2 = V(); vqr = V(); vqr2 = V()
    fg = V(4, 4); fx = V(2, 2)
    a = V(8); b = V(8); wa = V(8); wb = V(8)
    RB1 = V(16, 4); RTW = V(16); RB2 = V(4, 4)
    CB1 = V(32, 4); CTW = V(16); CA2 = V(16, 4)
    T0 = V(0, 4)
    xd = V(4, 4); xm = V(4, 4); wd = V(4, 4); wm = V(4, 4); cl = V(4, 4); xm0 = V(); wm0 = V()
    k(f'''s_lshr_b32 s20, s2, 3
s_and_b32 s21, s2, 7
s_cmp_eq_u32 s20, 0
s_cselect_b32 s26, s21, 0
s_cmp_ge_u32 s26, 4
s_cselect_b32 s20, 32, s20
s_cselect_b32 s26, 4, 0
s_sub_u32 s21, s21, s26
s_cmp_eq_u32 s2, 256
s_cselect_b32 s20, 0, s20
s_cselect_b32 s21, 4, s21
s_cselect_b32 s60, s22, 0
s_lshl_b32 s23, s21, 2
s_add_u32 s23, s23, s22
s_lshl_b32 s23, s23, 6
s_add_u32 s23, s23, s20
s_sub_u32 s24, 2048, s23
s_and_b32 s24, s24, 2047
s_lshl_b32 s28, s23, 10
s_lshl_b32 s29, s24, 10
v_and_b32 v{vn}, 15, v0
v_bfe_u32 v{vg}, v0, 4, 2
v_lshl_add_u32 v{vch}, v{vn}, 2, v{vg}
v_lshlrev_b32 v{vod}, 4, v{vch}
v_sub_u32 v{vom}, 1008, v{vod}
v_sub_u32 v{vom0}, 1024, v{vod}
v_and_b32 v{vom0}, 1023, v{vom0}
s_lshr_b32 s36, s2, 1
s_mul_i32 s36, s36, {PITCH}
s_bitcmp1_b32 s2, 0
s_cselect_b32 s37, 4096, 0
s_add_u32 s36, s36, s37
s_cmp_eq_u32 s2, 256
s_cselect_b32 s36, 8192, s36
s_cselect_b32 s37, {PITCH-128}, 0
s_add_u32 s36, s36, {hex(U1)}
v_lshlrev_b32 v{vfa}, 4, v0
v_lshrrev_b32 v{vt}, 3, v0
v_mad_u32_u24 v{vt}, v{vt}, s37, v{vfa}
v_mov_b32 v{cl}, -1
v_mov_b32 v{cl+1}, -1
v_mov_b32 v{cl+2}, -1
v_mov_b32 v{cl+3}, -1
s_mov_b32 s6, {hex(WS_BYTES)}
s_mov_b32 s7, 0x20000
s_mov_b32 s10, {hex(2048*1024)}
s_mov_b32 s11, 0x20000
s_waitcnt lgkmcnt(0)''')
    k.stamp(1)
    k('s_mov_b32 s8, s32\ns_mov_b32 s9, s33')
    k(f'''buffer_load_dwordx4 {vr(xd,4)}, v{vod}, s[8:11], s28 offen
buffer_load_dwordx4 {vr(xm,4)}, v{vom}, s[8:11], s29 offen
buffer_load_ushort v{xm0}, v{vom0}, s[8:11], s29 offen
s_mov_b32 s4, s30
s_mov_b32 s5, s31
buffer_store_dwordx4 {vr(cl,4)}, v{vt}, s[4:7], s36 offen {SC}
s_add_u32 s38, s30, {hex(EPOCH)}
s_addc_u32 s39, s31, 0
s_load_dword s40, s[38:39], 0''')
    srd(k, 12, 44, 1024); srd(k, 16, 58, 2048*1024)
    k(f'''buffer_load_dwordx4 {vr(wd,4)}, v{vod}, s[12:15], 0 offen
buffer_load_dwordx4 {vr(wm,4)}, v{vom}, s[12:15], 0 offen
buffer_load_ushort v{wm0}, v{vom0}, s[12:15], 0 offen
v_and_b32 v{vl}, 63, v0
s_cmp_lg_u32 s2, 256
s_cbranch_scc1 {name}_clr2
s_add_u32 s36, s36, {32*PITCH}
buffer_store_dwordx4 {vr(cl,4)}, v{vt}, s[4:7], s36 offen {SC}
s_add_u32 s36, s36, {32*PITCH}
buffer_store_dwordx4 {vr(cl,4)}, v{vt}, s[4:7], s36 offen {SC}
s_add_u32 s36, s36, {32*PITCH}
buffer_store_dwordx4 {vr(cl,4)}, v{vt}, s[4:7], s36 offen {SC}
{name}_clr2:
s_lshl_b32 s25, s21, 10
s_lshl_b32 s26, s20, 4
s_add_u32 s25, s25, s26
s_sub_u32 s27, 8192, s25
s_lshl_b32 s26, s21, 4
s_add_u32 s36, s26, 8192
s_sub_u32 s37, {8192+116}, s26
s_cmp_eq_u32 s20, 0
s_cselect_b32 s25, s36, s25
s_cselect_b32 s27, s37, s27
s_cmp_ge_u32 s22, 2
s_cselect_b32 s25, s27, s25
v_and_b32 v{vp}, 127, v0
v_mul_u32_u24 v{vp}, {PITCH}, v{vp}
s_lshl_b32 s61, s2, 12
s_add_u32 s61, s61, {hex(Q2)}
s_bfe_u32 s37, s2, 0x40004
s_and_b32 s36, s2, 7
s_lshl_b32 s36, s36, 4
s_add_u32 s3, s37, s36
s_mul_i32 s41, s3, {PITCH}
s_bfe_u32 s26, s2, 0x10003
s_lshl_b32 s26, s26, 5
s_lshr_b32 s37, s22, 1
s_lshl_b32 s37, s37, 4
s_add_u32 s26, s26, s37
s_and_b32 s27, s22, 1
v_add_u32 v{vt}, s26, v{vn}
v_lshl_add_u32 v{vt2}, s27, 2, v{vg}
v_lshlrev_b32 v{vst}, 10, v{vt2}
v_lshl_add_u32 v{vst}, v{vt}, 4, v{vst}
v_cmp_eq_u32 vcc, 0, v{vt}
v_lshlrev_b32 v{vt2}, 4, v{vt2}
v_add_u32 v{vt2}, 8192, v{vt2}
v_cndmask_b32 v{vst}, v{vst}, v{vt2}, vcc
s_cmp_lg_u32 s2, 256
s_cbranch_scc1 {name}_clr3
buffer_store_dwordx4 {vr(cl,4)}, v{vfa}, s[4:7], s61 offen {SC}
{name}_clr3:''')
    def lane_of(dst, chreg):
        k(f'v_and_b32 v{vt2}, 3, v{chreg}\nv_and_b32 v{dst}, 60, v{chreg}\nv_lshl_add_u32 v{dst}, v{vt2}, 6, v{dst}')
    k(f'''v_cmp_lt_u32 s[44:45], 31, v{vch}
v_add_u32 v{vt}, 1, v{vch}
v_cndmask_b32 v{vt}, v{vch}, v{vt}, s[44:45]
v_and_b32 v{vt}, 63, v{vt}
v_cmp_eq_u32 vcc, 0, v{vt}
v_cndmask_b32 v{vt}, v{vt}, 32, vcc''')
    lane_of(bpf, vt)
    k(f'''v_sub_u32 v{vt}, 95, v{vch}
v_cndmask_b32 v{vt}, v{vch}, v{vt}, s[44:45]
s_lshl_b32 s36, s22, 2
s_sub_u32 s37, {L_Q+12}, s36
s_add_u32 s36, s36, {L_Q}
v_mov_b32 v{vt2}, s36
v_mov_b32 v{vqw}, s37
v_cndmask_b32 v{vqw}, v{vt2}, v{vqw}, s[44:45]
v_lshl_add_u32 v{vqw}, v{vt}, 6, v{vqw}
v_add_u32 v{vt}, 1, v{vch}
v_and_b32 v{vt}, 63, v{vt}''')
    lane_of(bpm, vt)
    k(f'''v_and_b32 v{vt}, 2, v0
v_lshlrev_b32 v{vt}, 10, v{vt}
v_and_b32 v{vt2}, 1, v0
v_lshl_add_u32 v{vt}, v{vt2}, 3, v{vt}
v_and_b32 v{vt2}, 252, v0
v_lshl_add_u32 v{vqr}, v{vt2}, 2, v{vt}''')

    def stats_and_out(mode):
        k.nv = T0 + 24
        sa = V(); qa = V(); sb = V(); qb = V(); ra = V(); rb = V()
        for (S_, Q_, base, R_, W_) in ((sa, qa, a, ra, wa), (sb, qb, b, rb, wb)):
            k(f'v_add_f32 v{S_}, v{base}, v{base+1}\nv_mul_f32 v{Q_}, v{base}, v{base}')
            if mode != 1: k(f'v_mul_f32 v{R_}, v{base}, v{W_}')
            for i in range(1, 8):
                if i > 1: k(f'v_add_f32 v{S_}, v{S_}, v{base+i}')
                k(f'v_fmac_f32 v{Q_}, v{base+i}, v{base+i}')
                if mode != 1: k(f'v_fmac_f32 v{R_}, v{base+i}, v{W_+i}')
        merge(k, sa, sb); merge(k, qa, qb)
        if mode != 1: merge(k, ra, rb)
        red_half(k, [sa, qa] + ([ra] if mode != 1 else []))
        k(f'''v_mul_f32 v{sa}, {fl(1/512)}, v{sa}
v_mul_f32 v{qa}, {fl(1/512)}, v{qa}
v_fma_f32 v{qa}, -v{sa}, v{sa}, v{qa}
v_max_f32 v{qa}, 0, v{qa}
v_add_f32 v{qb}, {fl(1e-5)}, v{qa}
v_rsq_f32 v{qb}, v{qb}''')
        if mode == 1: zc = qb
        else:
            st = V(4, 4); one = V(); nb = V(); zc = V()
            k(f'''v_add_f32 v{one}, 1.0, v{qb}
v_fma_f32 v{ra}, -v{sa}, v{sw}, v{ra}
v_mul_f32 v{nb}, v{sa}, v{qb}
v_mul_f32 v{qa}, v{qa}, v{one}
v_rcp_f32 v{st+1}, v{one}
v_mul_f32 v{qa}, v{qa}, v{one}
v_mul_f32 v{st+2}, v{ra}, v{qb}
v_add_f32 v{qa}, {fl(1e-5)}, v{qa}
v_mov_b32 v{st}, v{sa}
v_rsq_f32 v{st+3}, v{qa}
v_mul_f32 v{st+1}, v{st+1}, v{qb}
v_readlane_b32 s48, v{one}, 16
v_readlane_b32 s49, v{one}, 48
v_readlane_b32 s50, v{nb}, 16
v_readlane_b32 s51, v{nb}, 48
v_mul_f32 v{zc}, v{st+3}, v{one}''')
        pk = V(4, 4)
        fv = V(8); t0 = V(); t1 = V()
        def qcomp():
            k(f'''v_mul_f32 v{sb}, v{sa}, v{zc}
v_readlane_b32 s52, v{zc}, 16
v_readlane_b32 s53, v{zc}, 48
v_readlane_b32 s54, v{sb}, 16
v_readlane_b32 s55, v{sb}, 48''')
            k(f'v_mov_b32 v{vt}, s54\nv_add_f32 v{vt}, s55, v{vt}')
            for i in range(8):
                k(f'v_fma_f32 v{fv+i}, v{a+i}, s52, -v{vt}\nv_fmac_f32 v{fv+i}, s53, v{b+i}')
                if i == 0: k(f'ds_bpermute_b32 v{fv}, v{bpf}, v{fv}')
            def sel(dst, i):
                if i == 4: return fv + 4
                k(f'v_cndmask_b32 v{dst}, v{fv+i}, v{fv+8-i}, s[44:45]'); return dst
            for i in (1, 2, 3):
                lo = sel(t0, 2*i); hi = sel(t1, 2*i+1)
                k(f'v_cvt_pk_f16_f32 v{pk+i}, v{lo}, v{hi}')
            hi = sel(t1, 1)
            k(f'''ds_write2_b32 v{vqw}, v{pk+2}, v{pk+3} offset0:8 offset1:12
s_waitcnt lgkmcnt(1)
v_cvt_pk_f16_f32 v{pk}, v{fv}, v{hi}
ds_write2_b32 v{vqw}, v{pk}, v{pk+1} offset0:0 offset1:4''')
        if mode == 1 or (mode == 3 and not OPT['ro']): qcomp()
        if mode != 1 and OPT['hu'] == 2: headsup(mode // 2)
        if mode != 1:
            k(f'''v_and_b32 v{vt}, 32, v0
v_ashrrev_i32 v{one}, 31, v{st+2}
v_lshl_add_u32 v{vt}, v{vt}, 6, s23
v_or_b32 v{one}, 0x80000000, v{one}
v_lshrrev_b32 v{vt2}, 3, v0
v_xor_b32 v{one}, v{one}, v{st+2}
v_and_b32 v{vt2}, 60, v{vt2}
v_and_b32 v{one}, 0xfffff000, v{one}
s_cmp_eq_u32 s23, s24
s_cselect_b32 s36, 0, 0x10000
v_or_b32 v{one}, v{one}, v{vt}
s_cmp_lg_u32 s60, 0
s_cbranch_scc1 {name}_nokey{mode}
s_mov_b32 exec_lo, 0x10000
s_mov_b32 exec_hi, s36
ds_write_b32 v{vt2}, v{one} offset:{L_KEY}
s_mov_b64 exec, -1
{name}_nokey{mode}:''')
        if mode == 1:
            p2 = V(4, 4)
            k(f'''s_lshl_b32 s38, s2, 13
s_add_u32 s39, s38, 4096
v_mov_b32 v{p2+2}, s40
v_mov_b32 v{p2+3}, s40
s_waitcnt vmcnt(0) lgkmcnt(0)
v_mov_b32 v{pk+2}, s40
v_mov_b32 v{pk+3}, s40
s_barrier
ds_read_b64 {vr(pk,2)}, v{vqr} offset:{L_Q}
ds_read_b64 {vr(p2,2)}, v{vqr} offset:{L_Q+1024}
s_waitcnt lgkmcnt(1)
buffer_store_dwordx4 {vr(pk,4)}, v{vfa}, s[4:7], s38 offen {SC}
s_waitcnt lgkmcnt(0)
buffer_store_dwordx4 {vr(p2,4)}, v{vfa}, s[4:7], s39 offen {SC}''')
            return
        o1 = V(4, 4); o2 = V(4, 4); b0 = V(); n1 = V(); n2 = V()
        layer = mode // 2
        def resid():
            k(f'v_mov_b32 v{vt}, s50\nv_mov_b32 v{vt2}, s51')
            for i in range(8):
                k(f'v_fma_f32 v{b+i}, v{b+i}, s49, -v{vt2}')
                if i == 0: k(f'ds_bpermute_b32 v{b0}, v{bpm}, v{b}')
            for i in range(8): k(f'v_fma_f32 v{a+i}, v{a+i}, s48, -v{vt}')
            for i in range(4): k(f'v_cvt_pk_bf16_f32 v{o1+i}, v{a+2*i}, v{a+2*i+1}')
            for i in range(1, 4): k(f'v_cvt_pk_bf16_f32 v{o2+i}, v{b+8-2*i}, v{b+7-2*i}')
            k(f'''s_lshl_b32 s36, s22, 11
v_add_u32 v{vt}, s36, v{vod}
v_add_u32 v{vt2}, s36, v{vom}
ds_write_b128 v{vt}, {vr(o1,4)} offset:{L_TR}
v_lshl_add_u32 v{vt}, v{vl}, 4, s36
s_waitcnt lgkmcnt(1)
v_cvt_pk_bf16_f32 v{o2}, v{b0}, v{b+7}
ds_write_b128 v{vt2}, {vr(o2,4)} offset:{L_TR+1024}
v_lshlrev_b32 v{b0}, 4, v{vl}
ds_read_b128 {vr(o1,4)}, v{vt} offset:{L_TR}
ds_read_b128 {vr(o2,4)}, v{vt} offset:{L_TR+1024}''')
        if mode == 5 and not OPT['ro5']: resid()
        kv = V()
        kslot = 's_mov_b32 s39, s2' if not OPT['kx'] else 's_and_b32 s39, s2, 7\ns_lshl_b32 s39, s39, 5\ns_bfe_u32 s37, s2, 0x50003\ns_add_u32 s39, s39, s37\ns_and_b32 s37, s2, 256\ns_add_u32 s39, s39, s37'
        kex = {1: 's_mov_b64 exec, 1', 2: 's_mov_b64 exec, 3', 4: 's_mov_b64 exec, 15', 8: 's_mov_b64 exec, 0xff', 16: 's_mov_b64 exec, 0xff00ff', 32: 's_mov_b32 exec_lo, 0xff00ff\ns_mov_b32 exec_hi, 0xff00ff'}[min(OPT['kr'], 32)]
        k(f'''v_lshlrev_b32 v{vt}, 2, v{vn}
v_mov_b32 v{fg+2}, 0
v_mov_b32 v{fg}, s40
s_lshl_b32 s38, s2, 7
s_add_u32 s38, s38, {hex(KEY2)}
{kslot}
s_mul_i32 s39, s39, {OPT['kp']}
s_add_u32 s39, s39, {hex(KR1 if mode == 3 else KR2)}
s_mul_i32 s37, s22, {32*krs()}
s_add_u32 s39, s39, s37
v_lshrrev_b32 v{kv}, 1, v{vl}
v_and_b32 v{kv}, 24, v{kv}
v_and_or_b32 v{kv}, v{vl}, 7, v{kv}
v_mul_u32_u24 v{kv}, {krs()}, v{kv}
s_waitcnt lgkmcnt(0)
s_barrier
ds_read_b32 v{fg+1}, v{vt} offset:{L_KEY}''')
        q2st = f'ds_read_b128 {vr(pk,4)}, v{vqr2} offset:{L_Q}\ns_waitcnt lgkmcnt(0)\nbuffer_store_dwordx4 {vr(pk,4)}, v{vfa}, s[4:7], s61 offen {SC}'
        if mode == 3 and not OPT['ro']: k(q2st)
        else: k('s_waitcnt lgkmcnt(0)')
        for m in XOR4[:3]:
            k(f'v_mov_b32_dpp v{n1}, v{fg+1} {m} {DPP}\nv_mov_b32_dpp v{n2}, v{fg+2} {m} {DPP}')
            top2_merge(k, fg+1, fg+2, n1, n2)
        k(f'''s_cmp_ge_u32 s22, {max(OPT['kr']//32, 1)}
s_cbranch_scc1 {name}_nopub{mode}
{kex}
buffer_store_dwordx4 {vr(fg,4)}, v{kv}, s[4:7], s39 offen {SC}
s_mov_b64 exec, -1
{name}_nopub{mode}:''')
        k.stamp(5 if mode == 3 else 11)
        if OPT['hu'] == 1: headsup(layer)
        if mode == 3 and OPT['upre']: k(f's_lshr_b32 s36, s2, 8\ns_mul_i32 s36, s36, {OPT["u256"]}\ns_memrealtime s[96:97]\ns_waitcnt lgkmcnt(0)\ns_sub_u32 s96, s96, s36')
        if OPT['dsk']:
            assert OPT['ro'] and OPT['ro5']
            k(f's_cmp_lg_u32 s60, 0\ns_cbranch_scc1 {name}_cd{mode}1')
        if mode == 3 and OPT['ro']: qcomp()
        k(f'v_readfirstlane_b32 s52, v{fg+1}\nv_readfirstlane_b32 s53, v{fg+2}')
        if mode == 3 or OPT['ro5']: resid()
        k(f'''s_and_b32 s36, s23, 0x73f
s_mul_i32 s36, s36, {XP}
s_add_u32 s36, s36, {hex(X2 + (layer-1)*128*XP)}
s_mov_b32 s54, 0
s_waitcnt lgkmcnt(0)''')
        for sl in range(2):
            k(f'''s_and_b32 s37, s{52+sl}, 2047
s_cmp_lg_u32 s37, s23
s_cbranch_scc1 {name}_cd{mode}{sl}
s_bitcmp1_b32 s{52+sl}, 11
s_cbranch_scc1 {name}_cb{mode}{sl}
buffer_store_dwordx4 {vr(o1,4)}, v{b0}, s[4:7], s36 offen {SC}
s_mov_b64 exec, 0x10000
s_bitset1_b32 s54, 0
s_branch {name}_cs{mode}{sl}
{name}_cb{mode}{sl}:
buffer_store_dwordx4 {vr(o2,4)}, v{b0}, s[4:7], s36 offen {SC}
s_mov_b32 exec_lo, 0
s_mov_b32 exec_hi, 0x10000
s_bitset1_b32 s54, 1
{name}_cs{mode}{sl}:
buffer_store_dwordx4 {vr(st,4)}, off, s[4:7], s36 offset:1024 {SC}
s_mov_b64 exec, -1
{name}_cd{mode}{sl}:''')
            if sl == 0: k(f's_add_u32 s36, s36, {64*XP}')
        if mode == 3 and OPT['ro']:
            k('s_barrier')
            if OPT['qdel']: k(f's_sleep {OPT["qdel"]}')
            k(q2st)
        if mode == 5 and not OPT['osc']:
            k(f'''s_cmp_eq_u32 s23, s24
s_cselect_b32 s55, 1, 3
s_cmp_lg_u32 s60, 0
s_cbranch_scc1 {name}_noout
s_andn2_b32 s36, s55, s54
s_and_b32 s55, s55, s54''')
            for ph, sr, fl_ in ((0, 's36', OPT.get('ofl', '')), (1, 's55', SC)):
                if ph and OPT['odel']: k(f's_sleep {OPT["odel"]}')
                for i, (o, so) in enumerate(((o1, 's28'), (o2, 's29'))):
                    k(f's_bitcmp1_b32 {sr}, {i}\ns_cbranch_scc0 {name}_o{ph}{i}\nbuffer_store_dwordx4 {vr(o,4)}, v{b0}, s[16:19], {so} offen {fl_}\n{name}_o{ph}{i}:')
            k.lab(f'{name}_noout')
        elif mode == 5:
            if OPT['odel']: k(f's_sleep {OPT["odel"]}')
            k(f'''s_cmp_lg_u32 s60, 0
s_cbranch_scc1 {name}_noout
buffer_store_dwordx4 {vr(o1,4)}, v{b0}, s[16:19], s28 offen {SC}
s_cmp_eq_u32 s23, s24
s_cbranch_scc1 {name}_noout
buffer_store_dwordx4 {vr(o2,4)}, v{b0}, s[16:19], s29 offen {SC}
{name}_noout:''')

    def predelay():
        if OPT['drain']: k('s_waitcnt vmcnt(0)')
        if OPT['pre']: k(f's_sleep {OPT["pre"]}')
    def headsup(layer):
        k(f'''s_lshr_b32 s36, s2, 3
s_or_b32 s36, s36, s22
s_cbranch_scc1 {name}_hu{layer}
s_lshl_b32 s36, s2, 7
s_add_u32 s36, s36, {hex(HU + 1024*(layer-1))}
v_mov_b32 v{vt}, s40
s_mov_b64 exec, 1
buffer_store_dword v{vt}, off, s[4:7], s36 {SC}
s_mov_b64 exec, -1
{name}_hu{layer}:''')

    def col_consts():
        k.nv = T0 + 24
        fk = V(); fgf = V(); c = V(); s = V(); ang = V(); f1 = V(); f2 = V()
        def xaddr(dst, sh, nxt):
            k(f'''v_lshrrev_b32 v{vt}, {sh+3}, v0
v_mul_u32_u24 v{vt}, 144, v{vt}
v_bfe_u32 v{vt2}, v0, {sh}, 3
v_lshl_add_u32 v{vt}, v{vt2}, 4, v{vt}
v_and_b32 v{vt2}, {1 << (sh-1)}, v0
v_cmp_ne_u32 s[38:39], 0, v{vt2}
v_sub_u32 v{vt2}, 9328, v{vt}
v_mov_b32 v{c}, {1152*(4 >> sh)}
v_mov_b32 v{s}, {-1152*(4 >> sh)}
v_cndmask_b32 v{dst+1}, v{vt}, v{vt2}, s[38:39]
v_cndmask_b32 v{c}, v{c}, v{s}, s[38:39]
v_lshrrev_b32 v{s}, 6, v{vt}
v_add_u32 v{vt2}, 4544, v{vt}
v_cmp_eq_u32 vcc, 1, v{s}
v_cndmask_b32 v{vt}, v{vt}, v{vt2}, vcc
v_sub_u32 v{vt2}, 9328, v{vt}
v_sub_u32 v{dst}, 116, v{vt}
v_cmp_eq_u32 vcc, 0, v{s}
v_cndmask_b32 v{vt2}, v{vt2}, v{dst}, vcc
v_cndmask_b32 v{dst}, v{vt}, v{vt2}, s[38:39]''')
            if sh == 2: k(f'v_and_b32 v{vt}, 1, v0\nv_lshl_add_u32 v{dst}, v{vt}, 3, v{dst}\nv_lshl_add_u32 v{dst+1}, v{vt}, 3, v{dst+1}')
            k(f'v_add_u32 v{dst}, {L_X}, v{dst}')
            for i in range(nxt): k(f'v_add_u32 v{dst+1+i}, v{dst+max(i,1)}, v{c}')
        xaddr(xa, 2, 3); xaddr(xa+4, 1, 1)
        k(f'''v_lshrrev_b32 v{vt}, 2, v0
v_and_b32 v{vt2}, 3, v0
v_lshlrev_b32 v{vt}, 13, v{vt}
v_lshl_add_u32 v{vq1}, v{vt2}, 4, v{vt}
v_lshrrev_b32 v{vt}, 1, v0
v_and_b32 v{vt2}, 1, v0
v_lshlrev_b32 v{vqr2}, 4, v{vt}
v_lshl_add_u32 v{vqr2}, v{vt2}, 11, v{vqr2}
v_lshlrev_b32 v{vt}, 12, v{vt}
v_lshl_add_u32 v{vq2}, v{vt2}, 4, v{vt}
v_mul_u32_u24 v{va}, 144, v{vn}
v_lshl_add_u32 v{va}, v{vg}, 5, v{va}
v_add_u32 v{vt}, s26, v{vn}
v_cvt_f32_u32 v{fk}, v{vt}
v_cvt_f32_u32 v{fgf}, v{vg}
v_mul_f32 v{f1}, {fl(1/64)}, v{fk}
v_add_f32 v{f2}, v{f1}, v{f1}
v_mul_f32 v{vt2}, {fl(16.0)}, v{fgf}
v_mul_f32 v{vt2}, v{vt2}, v{f1}''')
        for hi in range(2):
            k(f'v_add_f32 v{ang}, v{vt2}, v{f1}' if hi else f'v_mov_b32 v{ang}, v{vt2}')
            for half in range(2):
                for r in range(4):
                    if half or r: k(f'v_add_f32 v{ang}, v{ang}, v{f2}')
                    o = CB1 + 16*hi + 8*half
                    k(f'v_cos_f32 v{c}, v{ang}\nv_sin_f32 v{s}, v{ang}\nv_cvt_pk_f16_f32 v{o+r}, v{c}, v{s}\nv_cvt_pk_f16_f32 v{o+4+r}, -v{s}, v{c}')
        k(f'''v_mul_f32 v{f1}, {fl(1/2048)}, v{fk}
v_mul_f32 v{fgf}, 4.0, v{fgf}
s_mov_b32 s38, {fl(0.125)}
s_mov_b32 s39, {fl(13.0)}
v_mul_f32 v{ang}, v{fgf}, v{f1}''')
        for T in range(2):
            for r in range(4):
                if r: k(f'v_add_f32 v{ang}, v{ang}, v{f1}')
                elif T: k(f'v_fmac_f32 v{ang}, s39, v{f1}')
                k(f'v_cos_f32 v{c}, v{ang}\nv_sin_f32 v{s}, v{ang}\nv_mul_f32 v{CTW+8*T+2*r}, s38, v{c}\nv_mul_f32 v{CTW+8*T+2*r+1}, s38, v{s}')
        k(f'''v_lshl_add_u32 v{vt}, s27, 4, v{vn}
v_cvt_f32_u32 v{fk}, v{vt}
v_mul_f32 v{f1}, {fl(1/32)}, v{fk}
v_mul_f32 v{ang}, v{fgf}, v{f1}''')
        for T in range(2):
            for r in range(4):
                if r: k(f'v_add_f32 v{ang}, v{ang}, v{f1}')
                elif T: k(f'v_fmac_f32 v{ang}, s39, v{f1}')
                o = CA2 + 4*T
                k(f'v_cos_f32 v{c}, v{ang}\nv_sin_f32 v{s}, v{ang}\nv_cvt_pk_f16_f32 v{o+r}, v{c}, v{s}\nv_cvt_pk_f16_f32 v{o+8+r}, -v{s}, v{c}')

    def col_phase(tag, Qo, Uo):
        k.nv = T0
        X = V(32, 4); D1 = V(16, 4); Bd = V(8, 4); D2 = V(8, 4)
        G = X
        if Qo == Q2:
            k(f'''s_and_b32 s36, s20, 31
s_cbranch_scc1 {name}_nospec
s_xor_b32 s36, s20, 32
s_lshl_b32 s36, s36, 4
s_add_u32 s36, s36, {hex(U1+16)}''')
            gather(k, f'{name}_gsp', f'buffer_load_dword v{G}, v{vp}, s[4:7], s36 offen {SC}', f'v_cmp_eq_u32 vcc, -1, v{G}')
            k(f's_barrier\n{name}_nospec:')
        if Qo == Q1: walk(k, 'XA')
        predelay()
        tq = OPT['tq1'] if Qo == Q1 else OPT['tq2']
        if tq: wait_until(k, f'{name}_wq{tag}', tq)
        if Qo == Q1:
            k(f's_lshl_b32 s48, s3, 6')
            for i in range(1, 5): k(f's_add_u32 s{48+i}, s48, {hex(64*8192*i)}')
            ld = [f'buffer_load_dwordx3 {vr(G+4*i,3)}, v{vq1}, s[4:7], s{48+i} offen {SC}' for i in range(4)]
            lx = f'buffer_load_dwordx3 {vr(G+16,3)}, off, s[4:7], s52 {SC}'; cx = ck_tag(vt, [G+18])
            k(f's_cmp_lg_u32 s22, 3\ns_cbranch_scc1 {name}_e1{tag}\n{lx}\n{name}_e1{tag}:')
            gather(k, f'{name}_gq1', '\n'.join(ld), ck_tag(vt, [G+4*i+2 for i in range(4)]), OPT['sleep'])
            k.stamp(tag)
            k(f'ds_write2_b32 v{xa}, v{G}, v{G+1} offset0:0 offset1:1')
            for i in range(1, 4): k(f'ds_write_b64 v{xa+i}, {vr(G+4*i,2)} offset:{L_X}')
        else:
            k(f's_lshl_b32 s48, s3, 5\ns_add_u32 s48, s48, {hex(Q2)}')
            for i in range(1, 3): k(f's_add_u32 s{48+i}, s48, {hex(128*4096*i)}')
            ld = [f'buffer_load_dwordx4 {vr(G+4*i,4)}, v{vq2}, s[4:7], s{48+i} offen {SC}' for i in range(2)]
            lx = f'buffer_load_dword v{G+16}, off, s[4:7], s50 {SC}'; cx = f'v_cmp_eq_u32 vcc, -1, v{G+16}'
            k(f's_cmp_lg_u32 s22, 3\ns_cbranch_scc1 {name}_e1{tag}\n{lx}\n{name}_e1{tag}:')
            gather(k, f'{name}_gq2', '\n'.join(ld), ck_sent(vt, [G, G+4]), OPT['sleep'])
            k.stamp(tag)
            k(f'''ds_write2_b32 v{xa+4}, v{G}, v{G+1} offset0:0 offset1:1
ds_write2_b32 v{xa+4}, v{G+2}, v{G+3} offset0:2 offset1:3
ds_write_b128 v{xa+5}, {vr(G+4,4)} offset:{L_X}''')
        k(f's_cmp_lg_u32 s22, 3\ns_cbranch_scc1 {name}_e2{tag}')
        gather(k, f'{name}_gx{tag}', lx, cx, OPT['sleep'], '1', first=False)
        k(f'''ds_write_b32 v{va}, v{G+16} offset:{L_X+64}
s_mov_b64 exec, -1
{name}_e2{tag}:
''')
        if Qo == Q2 and OPT['ek']:
            k(f'v_mul_u32_u24 v{vt2}, {OPT["kp"]}, v0')
            poll_keys(k, name, 1, vt2, fg, fx, vt, 1, 's2', early=1)
        k(f'''s_cmp_eq_u32 s2, 256
s_waitcnt lgkmcnt(0)
s_barrier
s_cbranch_scc1 {name}_cx{tag}''')
        for T in range(2):
            for hi in range(2):
                for half in range(2):
                    q = T + 2*hi
                    k(f'ds_read_b128 {vr(X+16*T+8*hi+4*half,4)}, v{va} offset:{L_X + 16*half + 144*16*q}')
        for T in range(2):
            for kap in range(4):
                k(f's_waitcnt lgkmcnt({7-4*T-kap})')
                for z in range(2):
                    d = vr(D1+8*T+4*z, 4)
                    k(f'v_mfma_f32_16x16x32_f16 {d}, {vr(X+16*T+4*kap,4)}, {vr(CB1+8*kap+4*z,4)}, {d if kap else 0}')
        for T in range(2):
            for r in range(4):
                twiddle(k, D1+8*T+r, D1+8*T+4+r, CTW+8*T+2*r, CTW+8*T+2*r+1, vt, vt2, Bd+4*T+r)
            for z in range(2):
                d = vr(D2+4*z, 4)
                k(f'v_mfma_f32_16x16x32_f16 {d}, {vr(CA2+8*z+4*T,4)}, {vr(Bd+4*T,4)}, {d if T else 0}')
        k(f's_add_u32 s36, s41, {hex(Uo)}\ns_waitcnt vmcnt(0)')
        for r in range(4): k(f'v_cvt_pk_f16_f32 v{X+r}, v{D2+r}, v{D2+4+r}')
        k(f'buffer_store_dwordx4 {vr(X,4)}, v{vst}, s[4:7], s36 offen {SC}')
        if Qo == Q1:
            for r in range(4): k(f'v_mov_b32 v{X+4+r}, -1')
            k(f's_add_u32 s37, s41, {hex(U2)}\nbuffer_store_dwordx4 {vr(X+4,4)}, v{vst}, s[4:7], s37 offen {SC}')
        k(f's_branch {name}_cy{tag}\n{name}_cx{tag}:\ns_sleep {OPT["w256"]}\ns_waitcnt vmcnt(0)\n{name}_cy{tag}:')

    def row_consts():
        k.nv = T0 + 24
        fe = V(); fgf = V(); c = V(); s = V(); ang = V(); f1 = V()
        k(f'''v_lshrrev_b32 v{vt}, 2, v{vn}
v_and_b32 v{vt2}, 3, v{vn}
v_lshl_add_u32 v{vt}, v{vt}, 3, v{vt2}
v_cvt_f32_u32 v{fe}, v{vt}
v_lshlrev_b32 v{vt}, 2, v{vg}
v_cvt_f32_u32 v{fgf}, v{vt}
s_mov_b32 s36, {fl(1/32)}
s_mov_b32 s37, {fl(0.25)}''')
        for h in range(2):
            if h: k(f'v_add_f32 v{fe}, 4.0, v{fe}')
            k(f'v_mul_f32 v{f1}, s36, v{fe}\nv_mul_f32 v{ang}, v{fgf}, v{f1}')
            for r in range(4):
                if r: k(f'v_add_f32 v{ang}, v{ang}, v{f1}')
                k(f'v_cos_f32 v{c}, v{ang}\nv_sin_f32 v{s}, v{ang}\nv_mul_f32 v{vt}, {fl(1/16)}, v{ang}')
                if r & 1: k(f'v_add_f32 v{vt}, s37, v{vt}')
                k(f'''v_cvt_pk_f16_f32 v{RB1+8*h+r}, v{c}, v{s}
v_cvt_pk_f16_f32 v{RB1+8*h+4+r}, -v{s}, v{c}
v_cos_f32 v{c}, v{vt}
v_sin_f32 v{s}, v{vt}
v_mul_f32 v{RTW+8*h+2*r}, s37, v{c}
v_mul_f32 v{RTW+8*h+2*r+1}, s37, v{s}''')
        k(f'v_cvt_f32_u32 v{f1}, v{vn}\nv_mul_f32 v{f1}, {fl(1/16)}, v{f1}\nv_mul_f32 v{ang}, v{fgf}, v{f1}')
        for r in range(4):
            if r: k(f'v_add_f32 v{ang}, v{ang}, v{f1}')
            k(f'v_cos_f32 v{c}, v{ang}\nv_sin_f32 v{s}, v{ang}\nv_cvt_pk_f16_f32 v{RB2+r}, v{c}, v{s}')
        k(f'''v_lshrrev_b32 v{vt}, 1, v{vn}
v_lshl_add_u32 v{vt}, v{vg}, 5, v{vt}
s_lshl_b32 s36, s22, 2
s_sub_u32 s37, {2048+12}, s36
s_cmp_eq_u32 s23, 0
s_cselect_b32 s37, s36, s37
s_cmp_eq_u32 s25, {8192+116}
s_cselect_b32 s21, 0, -1
v_lshl_add_u32 v{vra}, v{vt}, 4, s36
v_lshl_add_u32 v{vrb}, v{vt}, 4, s37
v_and_b32 v{vt}, 1, v0
v_cmp_eq_u32 s[46:47], 1, v{vt}
v_mov_b32 v{vt}, 0xbc003c00
v_mov_b32 v{vt2}, 0x3c00bc00
v_cndmask_b32 v{vsg}, v{vt}, v{vt2}, s[46:47]''')

    def u_load(tag, Uo, ug):
        k(f's_add_u32 s38, s25, {hex(Uo)}')
        if tag == 'a': predelay()
        if tag == 'a' and OPT['tu1']: wait_until(k, f'{name}_wu1', OPT['tu1'])
        gather(k, f'{name}_gu{tag}', f'buffer_load_dwordx4 {vr(ug,4)}, v{vp}, s[4:7], s38 offen {SC}', f'v_and_b32 v{ug+3}, s21, v{ug+3}\n' + ck_sent(vt, range(ug, ug+4)), OPT['sleep'])
        k(f'ds_write_b128 v{vfa}, {vr(ug,4)} offset:{L_U}')
    def u_read(u1, u2, extra=''):
        k(f'''s_waitcnt lgkmcnt(0)
s_barrier
{extra}
ds_read2_b32 {vr(u1,2)}, v{vra} offset0:0 offset1:32
ds_read2_b32 {vr(u2,2)}, v{vrb} offset0:0 offset1:32
ds_read2_b32 {vr(u1+2,2)}, v{vra} offset0:64 offset1:96
ds_read2_b32 {vr(u2+2,2)}, v{vrb} offset0:64 offset1:96
s_waitcnt lgkmcnt(0)''')
        for r in range(4): k(f'v_pk_fma_f16 v{u1+r}, v{u2+r}, v{vsg}, v{u1+r}')
    def hid_dft(u1):
        D1 = V(16, 4); A2 = V(8, 4); D2 = V(8, 4)
        for h in range(2):
            for z in range(2):
                k(f'v_mfma_f32_16x16x32_f16 {vr(D1+8*h+4*z,4)}, {vr(u1,4)}, {vr(RB1+8*h+4*z,4)}, 0')
        k(f'v_cvt_f32_f16 v{vt2}, v{u1}\ns_mov_b32 s54, {fl(16.0)}\nv_readlane_b32 s52, v{vt2}, 0')
        for h in range(2):
            for r in range(4):
                twiddle(k, D1+8*h+r, D1+8*h+4+r, RTW+8*h+2*r, RTW+8*h+2*r+1, vt, vt2, A2+4*h+r)
            k(f'v_mfma_f32_16x16x32_f16 {vr(D2+4*h,4)}, {vr(A2+4*h,4)}, {vr(RB2,4)}, 0')
        k(f'''v_readlane_b32 s53, v{D2}, 0
v_mov_b32 v{vt2}, s52
v_mul_f32 v{vt2}, -4.0, v{vt2}
v_mov_b32 v{vt}, s53
v_mul_f32 v{vt}, {fl(-16.0)}, v{vt}
v_add_f32 v{vt2}, v{vt2}, v{vt}''')
        for i in range(8):
            k(f'''v_fma_f32 v{D2+i}, v{D2+i}, s54, v{vt2 if i & 1 else vt}
v_add_f32 v{a+i}, v{a+i}, v{D2+i}
v_add_f32 v{b+i}, v{b+i}, v{D2+i}''')

    k(f'v_mov_b32 v{vt}, 0\nv_lshlrev_b32 v{vt2}, 2, v{vn}\nds_write_b32 v{vt2}, v{vt} offset:{L_KEY}')
    col_consts()
    if OPT['prio']: k(f's_cmp_lg_u32 s60, 0\ns_cbranch_scc1 {name}_pr\ns_setprio 2\n{name}_pr:')
    if OPT['p256']: k(f's_cmp_lg_u32 s2, 256\ns_cbranch_scc1 {name}_pr2\ns_setprio 3\n{name}_pr2:')
    k('s_waitcnt vmcnt(4) lgkmcnt(0)\ns_mul_i32 s40, s40, 0x9e3779b1\ns_add_u32 s40, s40, 0x7f4a7c15')
    k.stamp(2)
    unpack_direct(k, a, xd); unpack_mirror(k, b, xm, xm0)
    stats_and_out(1)
    k.stamp(3)
    k(f'''s_mul_i32 s36, s23, {XP}
s_add_u32 s36, s36, {hex(X2)}
buffer_store_dwordx4 {vr(cl,4)}, v{vfa}, s[4:7], s61 offen {SC}
v_lshlrev_b32 v{vt}, 4, v{vl}
buffer_store_dwordx4 {vr(cl,4)}, v{vt}, s[4:7], s36 offen {SC}
s_mov_b64 exec, 1
buffer_store_dwordx4 {vr(cl,4)}, off, s[4:7], s36 offset:1024 {SC}
s_mov_b64 exec, -1
s_sub_u32 s36, s2, 8
s_cmp_ge_u32 s36, {OPT['ru'] + 8*OPT['rh']}
s_cbranch_scc1 {name}_clr4
s_mul_i32 s36, s36, {PP}
s_add_u32 s36, s36, {hex(PG)}
buffer_store_dwordx4 {vr(cl,4)}, v{vfa}, s[4:7], s36 offen {SC}
{name}_clr4:''')
    unpack_direct(k, wa, wd); unpack_mirror(k, wb, wm, wm0)
    row_consts()
    k(f'v_add_f32 v{sw}, v{wa}, v{wa+1}')
    for i in range(2, 8): k(f'v_add_f32 v{sw}, v{sw}, v{wa+i}')
    k(f'v_mov_b32 v{vt}, v{sw}'); merge(k, sw, vt); red_half(k, [sw])
    k.stamp(7)
    col_phase(4, Q1, U1)
    k.stamp(6)
    k.nv = T0
    u1 = V(4, 4); u2 = V(4, 4)
    u_load('a', U1, u1)
    k.stamp(8)
    if not OPT['hu']: headsup(1)
    u_read(u1, u2)
    if OPT['dsk']: k(f's_cmp_lg_u32 s60, 0\ns_cbranch_scc1 {name}_nokey3')
    hid_dft(u1)
    stats_and_out(3)
    k.stamp(9)
    k.lab('WENDA')
    col_phase(10, Q2, U2)
    k.stamp(12)
    k.nv = T0
    u1 = V(4, 4); u2 = V(4, 4)
    OA = V(16, 4); up = V(16, 4); m1 = V(); m2 = V(); n1 = V(); n2 = V(); cs = V(4); vo = V(2); vup = V()
    k(f'v_mul_u32_u24 v{vup}, {OPT["kp"]}, v0')
    poll_keys(k, name, 1, vup, fg, fx, vt, 1, 's2', early=2*OPT['ek'])
    k(f'v_lshrrev_b32 v{vt}, 1, v{vfa}\nv_mov_b32 v{fg}, v{fg+2}\nds_write_b64 v{vt}, {vr(fg,2)} offset:{L_KT}\ns_waitcnt lgkmcnt(0)\ns_barrier')
    k(f'v_lshlrev_b32 v{vt}, 4, v{vl}\nds_read_b128 {vr(OA,4)}, v{vt} offset:{L_KT}\nds_read_b128 {vr(OA+4,4)}, v{vt} offset:{L_KT+1024}\ns_waitcnt lgkmcnt(0)')
    k(f'v_mov_b32 v{m1}, v{OA+1}\nv_mov_b32 v{m2}, v{OA}')
    for i in (2, 4, 6): top2_merge(k, m1, m2, OA+i+1, OA+i)
    top2_wave(k, m1, m2, n1, n2)
    k(f'v_med3_u32 v{m2}, v{m1}, v{m2}, v{fx+1}\nv_max_u32 v{m1}, v{m1}, v{fx+1}')
    k(f'''s_mov_b32 s36, {L_UD}
v_readfirstlane_b32 s56, v{m1}
v_readfirstlane_b32 s57, v{m2}
v_lshlrev_b32 v{vo}, 7, v{vg}
v_lshl_add_u32 v{vo}, v{vn}, 1, v{vo}
v_sub_u32 v{vo+1}, 928, v{vo}
v_cmp_eq_u32 vcc, 0, v{vl}
v_mov_b32 v{n1}, 512
v_add_u32 v{n2}, 96, v{vo+1}
v_cndmask_b32 v{n1}, v{vo}, v{n1}, vcc
v_and_b32 v{n2}, 1023, v{n2}
v_lshrrev_b32 v{vup}, 3, v0
v_lshlrev_b32 v{vup}, 7, v{vup}
v_and_b32 v{vt}, 3, v0
v_lshl_add_u32 v{vup}, v{vt}, 5, v{vup}
v_and_b32 v{vt}, 4, v0
v_add3_u32 v{vup}, v{vup}, v{vt}, s36''')
    sel_decode(k, 1, True)
    k(f'''s_cmp_ge_u32 s22, 2
s_cselect_b32 s36, s43, s42
v_lshrrev_b32 v{m1}, 1, v{vfa}
v_and_b32 v{m2}, 1023, v{m1}''')
    ld = [f'buffer_load_dwordx4 {vr(up+4*j,4)}, off, s[4:7], s{42+j} offset:1024 {SC}' for j in range(2)]
    ld.append(f'buffer_load_dwordx2 {vr(up+8,2)}, v{m2}, s[4:7], s36 offen {SC}')
    gather(k, f'{name}_go', '\n'.join(ld), ck_sent(vt, [up, up+4, up+8]), 1)
    k(f'ds_write_b64 v{m1}, {vr(up+8,2)} offset:{L_OLD}')
    for i in range(16): k(f'v_mov_b32 v{OA+i}, 0')
    k('s_waitcnt lgkmcnt(0)\ns_barrier')
    for j in range(2):
        o = L_OLD + 1024*j
        k(f'ds_read_u16_d16_hi v{OA+8*j}, v{n1} offset:{o}')
        for r in range(1, 4): k(f'ds_read_u16_d16_hi v{OA+8*j+r}, v{vo} offset:{o+32*r}')
        k(f'ds_read_u16_d16_hi v{OA+8*j+4}, v{n2} offset:{o}')
        for r in range(1, 4): k(f'ds_read_u16_d16_hi v{OA+8*j+4+r}, v{vo+1} offset:{o+96-32*r}')
    k(f'''s_mul_i32 s36, s56, s23
s_mul_i32 s37, s57, s23
s_and_b32 s36, s36, 2047
s_and_b32 s37, s37, 2047
v_cvt_f32_u32 v{cs}, s36
v_cvt_f32_u32 v{cs+2}, s37
v_mul_f32 v{cs}, {fl(1/2048)}, v{cs}
v_mul_f32 v{cs+2}, {fl(1/2048)}, v{cs+2}
v_sin_f32 v{cs+1}, v{cs}
v_sin_f32 v{cs+3}, v{cs+2}
v_cos_f32 v{cs}, v{cs}
v_cos_f32 v{cs+2}, v{cs+2}''')
    for i in range(4): k(f'v_mul_f32 v{cs+i}, {fl(0.25)}, v{cs+i}')
    OB = V(16)
    k('s_waitcnt lgkmcnt(0)')
    for j in range(2):
        for i in range(8):
            o = OA + 8*j + i
            k(f'v_sub_f32 v{OB+8*j+i}, v{o}, v{up+4*j}\nv_mul_f32 v{OB+8*j+i}, v{OB+8*j+i}, v{up+4*j+3}')
    for r in (vo, vo+1, n1, n2): k(f'v_lshlrev_b32 v{r}, 2, v{r}')
    k.stamp(13)
    if OPT['al'] > 1: k(f's_branch {name}_al3\n.p2align 12\n{name}_al3:')
    k(f's_and_b32 s39, s2, {OPT["ru"]-1}\ns_mul_i32 s39, s39, {PP}\ns_add_u32 s39, s39, {hex(PG)}')
    pr = 240
    lu = lambda j: f'buffer_load_dwordx4 {vr(pr+4*j,4)}, v{vfa}, s[4:7], s39 offen {SC}'
    cu = lambda j: ck_sent(vt, range(pr+4*j, pr+4*j+4))
    wu = lambda j: f'ds_write2_b32 v{vup}, v{pr+4*j}, v{pr+4*j+1} offset0:0 offset1:2\nds_write2_b32 v{vup}, v{pr+4*j+2}, v{pr+4*j+3} offset0:4 offset1:6'
    if not OPT['upre']: k(lu(0))
    u_load('b', U2, u1)
    k.stamp(14)
    if OPT['pu']:
        k(cu(0) + f'\ns_cbranch_vccz {name}_gupf0')
        pgather(k, f'{name}_gup', lu, cu, wu, OPT['pu'], 1, OPT['pgap'])
    else:
        walk(k, 'XB')
        if OPT['upre']: wait_until(k, f'{name}_wu', OPT['upre'])
        gather(k, f'{name}_gup', lu(0), cu(0), OPT['usleep'], first=bool(OPT['upre']))
        k(wu(0))
    if not OPT['hu']: headsup(2)
    rd = [f'ds_read_b64 {vr(up,2)}, v{n1} offset:{L_UD}'] + [f'ds_read_b64 {vr(up+2*r,2)}, v{vo} offset:{L_UD+128*r}' for r in range(1, 4)]
    rd += [f'ds_read_b64 {vr(up+8,2)}, v{n2} offset:{L_UD}'] + [f'ds_read_b64 {vr(up+8+2*r,2)}, v{vo+1} offset:{L_UD+384-128*r}' for r in range(1, 4)]
    u_read(u1, u2, '\n'.join(rd))
    k.stamp(15)
    for i in range(8): k(f'v_add_f32 v{OA+i}, v{OA+i}, v{up+2*i}\nv_add_f32 v{OA+8+i}, v{OA+8+i}, v{up+2*i+1}')
    sa, qa, sb, qb = m1, m2, n1, n2
    for (S_, Q_, base) in ((sa, qa, OA), (sb, qb, OA+8)):
        k(f'v_add_f32 v{S_}, v{base}, v{base+1}\nv_mul_f32 v{Q_}, v{base}, v{base}')
        for i in range(1, 8):
            if i > 1: k(f'v_add_f32 v{S_}, v{S_}, v{base+i}')
            k(f'v_fmac_f32 v{Q_}, v{base+i}, v{base+i}')
    merge(k, sa, sb); merge(k, qa, qb)
    red_half(k, [sa, qa])
    k(f'''v_mul_f32 v{sa}, {fl(1/512)}, v{sa}
v_mul_f32 v{qa}, {fl(1/512)}, v{qa}
v_fma_f32 v{qa}, -v{sa}, v{sa}, v{qa}
v_max_f32 v{qa}, 0, v{qa}
v_add_f32 v{qa}, {fl(1e-5)}, v{qa}
v_rsq_f32 v{qa}, v{qa}
v_cmp_eq_u32 vcc, 0, v{vl}
v_mul_f32 v{sa}, v{sa}, v{qa}
v_readlane_b32 s48, v{qa}, 16
v_readlane_b32 s49, v{qa}, 48
v_readlane_b32 s50, v{sa}, 16
v_readlane_b32 s51, v{sa}, 48''')
    for j in range(2):
        A_ = OA + 8*j; B_ = OB + 8*j
        for i in range(8): k(f'v_fma_f32 v{A_+i}, v{A_+i}, s{48+j}, -v{B_+i}')
        k(f'v_cndmask_b32 v{A_+4}, v{A_+4}, v{A_}, vcc\nv_mov_b32 v{vt}, s{50+j}')
        for i in range(4):
            k(f'v_add_f32 v{B_+i}, v{A_+i}, v{A_+4+i}\nv_sub_f32 v{B_+4+i}, v{A_+i}, v{A_+4+i}\nv_fma_f32 v{B_+i}, v{vt}, -2.0, v{B_+i}')
    for i in range(4):
        k(f'''v_mul_f32 v{OB+i}, v{OB+i}, v{cs}
v_mul_f32 v{OB+4+i}, v{OB+4+i}, v{cs+1}
v_fmac_f32 v{OB+i}, v{OB+8+i}, v{cs+2}
v_fmac_f32 v{OB+4+i}, v{OB+12+i}, v{cs+3}
v_cndmask_b32 v{vt}, v{OB+i}, v{OB+4+i}, s[46:47]
v_cndmask_b32 v{vt2}, -v{OB+4+i}, v{OB+i}, s[46:47]
v_cvt_pk_f16_f32 v{vt}, v{vt}, v{vt2}
v_pk_add_f16 v{u1+i}, v{u1+i}, v{vt}''')
    k(f'''s_cmp_eq_u32 s56, s23
s_cselect_b32 s36, 1, 0
s_cmp_eq_u32 s56, s24
s_cselect_b32 s37, 1, 0
s_cmp_eq_u32 s57, s23
s_cselect_b32 s38, 1, 0
s_cmp_eq_u32 s57, s24
s_cselect_b32 s39, 1, 0
s_or_b32 s48, s36, s37
s_or_b32 s49, s38, s39
s_or_b32 s48, s48, s49
s_cbranch_scc0 {name}_noown
v_lshlrev_b32 v{m1}, 2, v{vod}
v_sub_u32 v{m2}, {4096-56}, v{m1}
v_lshlrev_b32 v{n1}, 2, v{vom0}
v_cvt_f32_u32 v{cs}, s36
v_cvt_f32_u32 v{cs+1}, s37
v_cvt_f32_u32 v{cs+2}, s38
v_cvt_f32_u32 v{cs+3}, s39''')
    for i in range(4): k(f'ds_read_b128 {vr(OA+4*i,4)}, v{m1} offset:{L_UD+16*i}')
    k(f'ds_read_b64 {vr(up,2)}, v{n1} offset:{L_UD}')
    for i in range(1, 8): k(f'ds_read_b64 {vr(up+2*i,2)}, v{m2} offset:{L_UD+56-8*i}')
    k('s_waitcnt lgkmcnt(0)')
    for i in range(8):
        for (row, src, o) in ((a, OA, 0), (b, up, 1)):
            k(f'v_fmac_f32 v{row+i}, v{src+2*i}, v{cs+o}\nv_fmac_f32 v{row+i}, v{src+2*i+1}, v{cs+2+o}')
    k.lab(f'{name}_noown')
    k.nv = T0 + 8
    if OPT['dsk']: k(f's_cmp_lg_u32 s60, 0\ns_cbranch_scc1 {name}_nokey5')
    hid_dft(u1)
    stats_and_out(5)
    k.lab('WENDB')
    k(f'''s_or_b32 s36, s2, s22
s_cbranch_scc1 {name}_noep
v_mov_b32 v{vt}, s40
v_mov_b32 v{vt2}, 0
s_mov_b32 s36, {hex(EPOCH)}
buffer_store_dword v{vt}, v{vt2}, s[4:7], s36 offen {SC}''')
    k.lab(f'{name}_noep')
    k(f'''s_cmp_lg_u32 s22, 0
s_waitcnt vmcnt(0)
s_barrier
s_cbranch_scc1 {name}_fin
s_mov_b64 exec, 1
buffer_store_dword v{fg}, off, s[4:7], s38 offset:64 {SC}
{name}_fin:''')
    k.endpgm()


def ffn_role(k, name):
    k.nv = 1
    V = k.v
    vl = V(); vn = V(); vg = V(); vt = V(); vt2 = V(); vw = V(); vtr = V(); vlw = V(); vky = V(); vo = V(); vro = V()
    fg = V(4, 4); fx = V(2, 2); m1 = V(2, 2); m2 = m1 + 1; n1 = V(); n2 = V(); old = V(4, 2)
    st = V(4, 4); Fr = V(56, 4); Wt = V(56, 4); Af = Wt; D = V(8, 4); R_ = V(32, 4); CS = V(8, 4)
    RED = 57344
    NF = OPT['nf']
    k(f"""v_and_b32 v{vl}, 63, v0
v_and_b32 v{vn}, 15, v0
v_bfe_u32 v{vg}, v0, 4, 2
v_mul_u32_u24 v{vky}, {OPT['kp']}, v0
s_and_b32 s20, s3, 7
s_bfe_u32 s21, s3, 0x20003
v_lshrrev_b32 v{vt}, 1, v{vl}
v_and_b32 v{vt2}, 1, v{vl}
v_cmp_eq_u32 s[52:53], 1, v{vt2}
v_lshlrev_b32 v{vt2}, 4, v{vt2}
v_lshlrev_b32 v{vtr}, 8, v{vg}
v_lshl_add_u32 v{vtr}, v{vn}, 3, v{vtr}
v_lshlrev_b32 v{vlw}, 4, v{vl}
v_cmp_gt_u32 s[54:55], 2, v{vn}
s_lshl_b32 s61, s20, 7
s_add_u32 s61, s61, {hex(HU)}
s_mov_b32 s27, {fl(-1.4426950408889634)}
s_waitcnt lgkmcnt(0)
s_add_u32 s38, s30, {hex(EPOCH)}
s_addc_u32 s39, s31, 0
s_load_dword s40, s[38:39], 0""")
    k.stamp(1)
    srd(k, 4, 30, WS_BYTES); srd(k, 8, 58, 2048*1024)
    if OPT['fdel']: k(f's_sleep {OPT["fdel"]}')
    k(f's_cmp_ge_u32 s3, 128\ns_cbranch_scc1 {name}_cons')

    def select(layer, role):
        nm = f'{name}_{role}'
        gather(k, f'{nm}_g{layer}', f'buffer_load_dword v{fg}, off, s[4:7], s61 offset:{1024*(layer-1)} {SC}', ck_tag(0, [fg]), OPT['gsleep'])
        if OPT['hdel']: k(f's_sleep {OPT["hdel"]}')
        poll_keys(k, nm, layer, vky, fg, fx, vt, OPT['fsleep'], 's3', regs=R_ if OPT['pk'] else 0)
        if OPT['prio']: k('s_setprio 3')
        k.stamp(3 + 6*(layer-1))
        k(f'v_mov_b32 v{m1}, v{fg+1}\nv_mov_b32 v{m2}, v{fg+2}')
        top2_row(k, m1, m2, n1, n2)
        k(f"""v_lshrrev_b32 v{vt}, 4, v0
v_lshlrev_b32 v{vt}, 3, v{vt}
v_lshlrev_b32 v{vt2}, 3, v{vn}
ds_write_b64 v{vt}, {vr(m1,2)} offset:{RED}
s_waitcnt lgkmcnt(0)
s_barrier
ds_read_b64 {vr(m1,2)}, v{vt2} offset:{RED}
s_waitcnt lgkmcnt(0)""")
        top2_row(k, m1, m2, n1, n2)
        k(f"""v_med3_u32 v{m2}, v{m1}, v{m2}, v{fx+1}
v_max_u32 v{m1}, v{m1}, v{fx+1}
v_and_b32 v{n2}, 0x73f, v{m2}
v_and_b32 v{n1}, 0x73f, v{m1}
v_add_u32 v{vt}, 64, v{n2}
v_cmp_eq_u32 vcc, v{n1}, v{n2}
s_mov_b32 s36, {hex(X2 + (layer-1)*128*XP)}
v_cndmask_b32 v{n2}, v{n2}, v{vt}, vcc
v_cndmask_b32 v{n1}, v{n1}, v{n2}, s[52:53]
v_mul_u32_u24 v{vro}, {XP}, v{n1}""")
        k.stamp(4 + 6*(layer-1))
    def prefetch(rows_per_wave, pitch):
        if OPT['pref'] == 2:
            k(f'v_lshlrev_b32 v{vo}, 6, v{vl}\ns_lshr_b32 s36, s23, 3\ns_add_u32 s36, s36, s22\ns_mul_i32 s36, s36, {128*rows_per_wave}')
            return
        k(f"""v_mul_u32_u24 v{vo}, 3, v{vt2}
v_add_u32 v{vo}, v{vo}, v{vw}
s_lshl_b32 s36, s21, 2
s_add_u32 s36, s36, s22
s_mul_i32 s36, s36, {rows_per_wave*pitch}
s_andn2_b32 s37, s23, 127
s_add_u32 s36, s36, s37""")

    k(f"""s_lshr_b32 s23, s3, 5
s_lshl_b32 s23, s23, 3
s_add_u32 s23, s23, s20
s_cmp_ge_u32 s23, 28
s_cbranch_scc1 {name}_end
s_lshl_b32 s23, s23, 7
s_lshl_b32 s24, s21, 5
s_add_u32 s23, s23, s24
s_mul_i32 s24, s22, {128*3584}
s_add_u32 s24, s24, s23
s_mov_b32 s25, 3584
v_mad_u32_u24 v{vw}, v{vt}, s25, v{vt2}""")
    srd(k, 12, 46, 512*3584); srd(k, 16, 48, 512*3584)
    if OPT['pref']:
        prefetch(32, 3584)
        trickle(k, f'buffer_load_dword v{Wt}, v{vo}, s[12:15], s36 offen', f'buffer_load_dword v{Wt+1}, v{vo}, s[16:19], s36 offen')
        k.stamp(7)
        wait_until(k, f'{name}_wp', OPT['tp'])
        k.stamp(8)
    for kap in range(4):
        k(f'buffer_load_dwordx4 {vr(Wt+4*kap,4)}, v{vw}, s[12:15], s24 offen\ns_waitcnt vmcnt({NF-1})')
        k(f'buffer_load_dwordx4 {vr(Wt+16+4*kap,4)}, v{vw}, s[16:19], s24 offen\ns_waitcnt vmcnt({NF-1})')
        if kap < 3: k(f's_add_u32 s24, s24, {32*3584}')
    k(f"""s_lshl_b32 s25, s22, 13
v_add_u32 v{vtr}, s25, v{vtr}
v_add_u32 v{vlw}, s25, v{vlw}
s_waitcnt vmcnt(0)""")
    for i in range(8): k(f'ds_write_b128 v{vlw}, {vr(Wt+4*i,4)} offset:{1024*i}')
    k('s_waitcnt lgkmcnt(0)\ns_mul_i32 s40, s40, 0x9e3779b1\ns_add_u32 s40, s40, 0x7f4a7c15')
    for i in range(8):
        for u in range(2): k(f'ds_read_b64_tr_b16 {vr(Fr+4*i+2*u,2)}, v{vtr} offset:{1024*i+128*u}')
    for i in range(16): k(f'v_mov_b32 v{Af+i}, 0x3f803f80')
    k(f"""v_lshlrev_b32 v{vo}, 5, v{vn}
v_lshl_add_u32 v{vo}, v{vg}, 3, v{vo}
v_lshlrev_b32 v{vtr}, 6, v{vn}
v_lshl_add_u32 v{vtr}, v{vg}, 4, v{vtr}
s_lshl_b32 s26, s22, 8
v_add_u32 v{vlw}, s26, v{vtr}
v_lshl_add_u32 v{vw}, v{vg}, 4, s26
s_lshr_b32 s23, s23, 5
s_mul_i32 s24, s23, 2341
s_lshr_b32 s24, s24, 16
s_mul_i32 s24, s24, {PP - 28*128}
s_lshl_b32 s23, s23, 7
s_add_u32 s23, s23, s24
s_mul_i32 s24, s22, {32*PP}
s_add_u32 s23, s23, s24
v_and_b32 v{vo}, 63, v{vo}
v_lshrrev_b32 v{vt}, 1, v{vn}
v_mul_u32_u24 v{vt}, {4*PP}, v{vt}
v_add_u32 v{vo}, v{vo}, v{vt}
v_and_b32 v{vtr}, 127, v{vtr}
v_cmp_gt_u32 s[62:63], {2*min(OPT['rh'],8)}, v{vn}
s_waitcnt lgkmcnt(0)""")
    for kap in range(4):
        for mat in range(2):
            d = vr(CS+4*mat, 4)
            k(f'v_mfma_f32_16x16x32_bf16 {d}, {vr(Fr+16*mat+4*kap,4)}, {vr(Af,4)}, {d if kap else 0}')
    k.stamp(2)
    walk(k, 'XC')
    for layer in (1, 2):
        select(layer, 'p')
        k(f'v_add_u32 v{vt2}, v{vro}, v{vw}\ns_mov_b64 exec, s[54:55]')
        ld = [f'buffer_load_dwordx4 {vr(Af+4*kap,4)}, v{vt2}, s[4:7], s36 offen offset:{64*kap} {SC}' for kap in range(4)]
        ld.append(f'buffer_load_dwordx2 {vr(st,2)}, v{vro}, s[4:7], s36 offen offset:1024 {SC}')
        gather(k, f'{name}_gr{layer}', '\n'.join(ld), ck_sent(vt, [st] + [Af+4*i for i in range(4)]))
        k.stamp(5 + 6*(layer-1))
        for i in range(8): k(f'v_mul_f32 v{D+i}, -v{CS+i}, v{st}')
        for kap in range(4):
            for mat in range(2):
                d = vr(D+4*mat, 4)
                k(f'v_mfma_f32_16x16x32_bf16 {d}, {vr(Fr+16*mat+4*kap,4)}, {vr(Af+4*kap,4)}, {d}')
        k(f"""s_mov_b64 exec, s[54:55]
s_add_u32 s36, s23, {hex(hpg(layer))}
s_cmp_ge_u32 s22, {max(OPT['rh']//8,1)}
ds_write_b128 v{vlw}, {vr(D,4)} offset:{RED+128}
ds_write_b128 v{vlw}, {vr(D+4,4)} offset:{RED+128+128}
s_mov_b64 exec, -1
v_mov_b32_dpp v{n1}, v{st+1} row_newbcast:0 row_mask:0xf bank_mask:0xf
v_mov_b32_dpp v{n2}, v{st+1} row_newbcast:1 row_mask:0xf bank_mask:0xf
s_mov_b64 exec, s[62:63]
v_cndmask_b32 v{n2}, v{n1}, v{n2}, s[52:53]
v_mul_f32 v{n1}, s27, v{n2}
v_mul_f32 v{n2}, v{n2}, v{n2}
s_waitcnt lgkmcnt(0)
s_barrier
s_cbranch_scc1 {name}_pn{layer}""")
        for i in range(2): k(f'ds_read_b128 {vr(D+4*i,4)}, v{vtr} offset:{RED+128+128*i}')
        for i in range(2, 8): k(f'ds_read_b128 {vr(R_+4*i,4)}, v{vtr} offset:{RED+128+128*i}')
        for w in range(1, 4):
            k(f's_waitcnt lgkmcnt({6-2*w})')
            for i in range(8): k(f'v_add_f32 v{D+i}, v{D+i}, v{R_+8*w+i}')
        for r in range(4): k(f'v_mul_f32 v{R_+r}, v{n1}, v{D+r}')
        for r in range(4): k(f'v_exp_f32 v{R_+r}, v{R_+r}\nv_mul_f32 v{D+r}, v{D+r}, v{D+4+r}')
        for r in range(4): k(f'v_add_f32 v{R_+r}, 1.0, v{R_+r}')
        for r in range(4): k(f'v_rcp_f32 v{R_+r}, v{R_+r}\nv_mul_f32 v{D+r}, v{D+r}, v{n2}')
        for r in range(4): k(f'v_mul_f32 v{D+r}, v{D+r}, v{R_+r}')
        k(f"""v_cvt_pk_bf16_f32 v{m1}, v{D}, v{D+1}
v_cvt_pk_bf16_f32 v{m2}, v{D+2}, v{D+3}
buffer_store_dwordx2 {vr(m1,2)}, v{vo}, s[4:7], s36 offen {SC}""")
        k.lab(f'{name}_pn{layer}')
        k('s_mov_b64 exec, -1')
        if OPT['prio']: k('s_setprio 0')
        k.stamp(6 + 6*(layer-1))
    k.endpgm()
    k.lab('WENDC')
    k.lab(f'{name}_cons')
    k(f"""s_lshl_b32 s23, s20, 7
s_lshl_b32 s24, s21, 5
s_add_u32 s23, s23, s24
s_mul_i32 s24, s22, {448*1024}
s_add_u32 s24, s24, s23
v_lshl_add_u32 v{vw}, v{vt}, 10, v{vt2}""")
    srd(k, 12, 50, 1792*1024)
    k(f'''s_cmp_lt_u32 s3, 160
s_cbranch_scc1 {name}_cons2
s_sub_u32 s36, s3, 160
s_lshr_b32 s36, s36, 3
s_lshl_b32 s36, s36, 2
s_add_u32 s36, s36, s22
s_mul_i32 s36, s36, {41*1024}
s_lshl_b32 s37, s20, 7
s_add_u32 s36, s36, s37
s_add_u32 s37, s36, {21*1024}
v_mul_u32_u24 v{vo}, 3, v{vt2}
v_add_u32 v{vo}, v{vo}, v{vw}
''')
    trickle(k, f'buffer_load_dword v{Wt}, v{vo}, s[12:15], s36 offen', f'buffer_load_dword v{Wt+1}, v{vo}, s[12:15], s37 offen')
    k('s_endpgm')
    if OPT['al']: k('.p2align 12')
    k.lab(f'{name}_cons2')
    wait_until(k, f'{name}_wc', OPT['tc'])
    k.stamp(8)
    NF = OPT['nfc']
    for kap in range(14):
        k(f'buffer_load_dwordx4 {vr(Wt+4*kap,4)}, v{vw}, s[12:15], s24 offen\ns_waitcnt vmcnt({NF-1})')
        if kap < 13: k(f's_add_u32 s24, s24, {32*1024}')
    k(f"""s_mul_i32 s25, s22, {14*1024}
v_add_u32 v{vtr}, s25, v{vtr}
v_add_u32 v{vlw}, s25, v{vlw}
s_waitcnt vmcnt(0)""")
    for i in range(14): k(f'ds_write_b128 v{vlw}, {vr(Wt+4*i,4)} offset:{1024*i}')
    k('s_waitcnt lgkmcnt(0)\ns_mul_i32 s40, s40, 0x9e3779b1\ns_add_u32 s40, s40, 0x7f4a7c15')
    for i in range(14):
        for u in range(2): k(f'ds_read_b64_tr_b16 {vr(Fr+4*i+2*u,2)}, v{vtr} offset:{1024*i+128*u}')
    for i in range(56): k(f'v_mov_b32 v{Af+i}, 0')
    k(f"""v_lshrrev_b32 v{vt}, 1, v{vg}
v_and_b32 v{vt2}, 1, v{vg}
v_lshlrev_b32 v{vw}, 7, v{vt}
v_lshl_add_u32 v{vw}, v{vt2}, 4, v{vw}
v_lshl_add_u32 v{vw}, v{vn}, 5, v{vw}
s_waitcnt lgkmcnt(0)
v_lshlrev_b32 v{vtr}, 6, v{vn}
v_lshl_add_u32 v{vtr}, v{vg}, 4, v{vtr}
s_lshl_b32 s26, s22, 7
v_add_u32 v{vlw}, s26, v{vtr}
v_and_b32 v{vtr}, 127, v{vtr}
v_lshrrev_b32 v{vt}, 1, v{vn}
v_mul_u32_u24 v{vt}, {PP}, v{vt}
v_add_u32 v{vo}, v{vtr}, v{vt}
v_cmp_gt_u32 s[62:63], {2*min(OPT['ru'],8)}, v{vn}""")
    k.stamp(2)
    walk(k, 'XD')
    for layer in (1, 2):
        select(layer, 'c')
        ex = 's[54:55]' if layer == 2 else '-1'
        k(f's_mov_b64 exec, {ex}')
        ld = [f'buffer_load_dwordx4 {vr(st,4)}, v{vro}, s[4:7], s36 offen offset:1024 {SC}']; ck = [st, st+2]
        if layer == 2:
            k(f"""v_cndmask_b32 v{m1}, v{m1}, v{m2}, s[52:53]
s_add_u32 s38, s36, s23
v_lshl_add_u32 v{vt2}, v{vg}, 3, v{vro}
v_and_b32 v{n1}, 2047, v{m1}
v_sub_u32 v{n2}, 2048, v{n1}
v_and_b32 v{vt}, 2048, v{m1}
v_cmp_ne_u32 vcc, 0, v{vt}
v_and_b32 v{vl}, 63, v{n1}
v_cndmask_b32 v{vo}, v{n1}, v{n2}, vcc
v_lshlrev_b32 v{vo}, 10, v{vo}
v_lshl_add_u32 v{vo}, v{vg}, 3, v{vo}
v_cmp_eq_u32 vcc, 32, v{vl}
v_lshlrev_b32 v{vl}, 3, v{vl}
v_cndmask_b32 v{vl}, v{vl}, 4, vcc
v_lshrrev_b32 v{n2}, 8, v{n1}
v_add_u32 v{vl}, v{vl}, v{n2}
v_mov_b32 v{n2}, 256
v_cmp_eq_u32 vcc, 0x400, v{n1}
v_cndmask_b32 v{vl}, v{vl}, v{n2}, vcc
v_lshlrev_b32 v{vl}, 7, v{vl}""")
            ld.append(f'buffer_load_dwordx2 {vr(old,2)}, v{vt2}, s[4:7], s38 offen {SC}'); ck += [old, old+1]
        gather(k, f'{name}_gs{layer}', '\n'.join(ld), ck_sent(vt, ck), 1, ex)
        k(f"""s_and_b32 s26, s3, {OPT['rh']-1}
s_lshl_b32 s26, s26, 2
s_add_u32 s26, s26, s22
s_mul_i32 s26, s26, {PP}
s_add_u32 s26, s26, {hex(hpg(layer))}
v_mul_f32 v{n1}, s27, v{st+2}
v_exp_f32 v{n1}, v{n1}
v_and_b32 v{old+3}, 0xffff0000, v{old+1}
v_lshlrev_b32 v{old+2}, 16, v{old+1}
v_add_f32 v{n1}, 1.0, v{n1}
v_and_b32 v{old+1}, 0xffff0000, v{old}
v_lshlrev_b32 v{old}, 16, v{old}
v_rcp_f32 v{n1}, v{n1}
s_mov_b64 exec, s[54:55]""")
        if layer == 2:
            k(f's_mov_b32 s36, {hex(KEY2 + 64)}')
            gather(k, f'{name}_gd', f'buffer_load_dword v{fg}, v{vl}, s[4:7], s36 offen {SC}', ck_tag(0, [fg]), 1, 's[54:55]')
        ld = [f'buffer_load_dwordx4 {vr(Af+4*kap,4)}, v{vw}, s[4:7], s26 offen offset:{256*kap} {SC}' for kap in range(14)]
        hp = OPT['hpre'] if layer == 1 else OPT['hpre2']
        if hp: k(f's_sleep {hp}')
        gather(k, f'{name}_gh{layer}', '\n'.join(ld), ck_sent(vt, range(Af, Af+56, 2)), OPT['hsleep'])
        k.stamp(5 + 6*(layer-1))
        for kap in range(14):
            d = vr(D+4*(kap&1), 4)
            k(f'v_mfma_f32_16x16x32_bf16 {d}, {vr(Fr+4*kap,4)}, {vr(Af+4*kap,4)}, {d if kap > 1 else 0}')
        k(f's_lshl_b32 s36, s23, 2\ns_mul_i32 s37, s22, {8*PP}\ns_add_u32 s36, s36, s37\ns_add_u32 s36, s36, {hex(PG)}\ns_cmp_ge_u32 s22, {max(OPT["ru"]//8,1) if layer == 1 else 1}')
        for r in range(4): k(f'v_add_f32 v{D+r}, v{D+r}, v{D+4+r}')
        k(f"""s_mov_b64 exec, s[54:55]
ds_write_b128 v{vlw}, {vr(D,4)} offset:{RED+128}
s_waitcnt lgkmcnt(0)
s_barrier
s_cbranch_scc1 {name}_cn{layer}""")
        if layer == 1: k(f's_mov_b64 exec, s[62:63]\nds_read_b128 {vr(D,4)}, v{vtr} offset:{RED+128}')
        for i in range(1, 4): k(f'ds_read_b128 {vr(R_+4*i,4)}, v{vtr} offset:{RED+128+128*i}')
        for w in range(1, 4):
            k(f's_waitcnt lgkmcnt({3-w})')
            for r in range(4): k(f'v_add_f32 v{D+r}, v{D+r}, v{R_+4*w+r}')
        if layer == 2:
            for r in range(4): k(f'v_fma_f32 v{D+r}, v{D+r}, v{n1}, v{old+r}')
            k(f"""v_cvt_pk_bf16_f32 v{m1}, v{D}, v{D+1}
v_cvt_pk_bf16_f32 v{m2}, v{D+2}, v{D+3}
buffer_store_dwordx2 {vr(m1,2)}, v{vo}, s[8:11], s23 offen""")
        else:
            for r in range(4): k(f'v_mul_f32 v{D+r}, v{D+r}, v{n1}')
            for i in range(max(OPT['ru']//32, 1)):
                if i: k(f's_add_u32 s36, s36, {32*PP}')
                k(f'buffer_store_dwordx4 {vr(D,4)}, v{vo}, s[4:7], s36 offen {SC}')
        k.lab(f'{name}_cn{layer}')
        k('s_mov_b64 exec, -1')
        if OPT['prio']: k('s_setprio 0')
        k.stamp(6 + 6*(layer-1))
    k.endpgm()

CPF = '''s_getpc_b64 s[62:63]
v_lshlrev_b32 v2, 7, v0
v_min_u32 v2, CODE_END, v2
global_load_dword v239, v2, s[62:63]'''
def build(name):
    k = K(name); k.kidx = 0
    k.stamp(0)
    k(f"""s_load_dwordx2 s[32:33], s[0:1], 0
s_load_dwordx2 s[30:31], s[0:1], 96
s_load_dwordx8 s[44:51], s[0:1], 48
s_load_dwordx2 s[58:59], s[0:1], 80
s_memrealtime s[96:97]
{CPF if OPT['cpf'] else ''}
v_lshrrev_b32 v1, 6, v0
s_sub_u32 s3, s2, {NMAIN}
v_readfirstlane_b32 s22, v1
s_cbranch_scc0 L_ffn""")
    k.dbgsel = [(0,0),(1,2),(2,3),(3,4),(4,6),(5,8),(6,9),(7,10),(8,12),(9,15),(10,16)]
    main_role(k, 'M')
    k.dbgsel = [(11,2),(12,3),(13,6),(14,9),(15,16)]
    if OPT['al']: k('.p2align 12')
    k.lab('L_ffn')
    k(f's_cmp_ge_u32 s3, {NFFN}\ns_cbranch_scc1 F_end')
    ffn_role(k, 'F')
    k.lab('WENDD'); k.lab('F_end'); k('s_endpgm')
    k(f'.set CODE_END, F_end - {name} - 64')
    return k

def emit(k, grid, lds, path, aslist):
    hdr = open('cdna_kernels/' + NAME + '.s.ref').read().split('\n')
    out = [l for l in hdr if l.startswith(';') and '@launch' not in l and 'Override launch' not in l and 'grid=ceil' not in l]
    out.append(f'; @launch {"kernel="+k.name+" " if aslist else ""}grid=({grid},1,1) block=(256,1,1) lds={lds}')
    out.append('.amdgcn_target "amdgcn-amd-amdhsa--gfx950"\n.text')
    out.append(f'.globl {k.name}\n.p2align 8\n.type {k.name},@function\n{k.name}:')
    L = k.L
    if OPT['now']:
        i0 = L.index('L_ffn:')
        def keep(l):
            if 's[12:15]' in l or 's[16:19]' in l:
                return not (OPT['now'] == 1 or (OPT['now'] == 2 and 'x4' in l) or (OPT['now'] == 3 and 'x4' not in l))
            return True
        L = L[:i0] + [l for l in L[i0:] if keep(l)]
    T = fix_hazards(L)
    if OPT['pad']:
        o = []; ch = None; n = 0; hold = False; cnt = {}
        for l in T:
            t = l.strip()
            if t.startswith('WEND'): ch = None
            isins = not t.endswith(':') and not t.startswith('.')
            if ch and isins and not hold and n >= OPT['pad']:
                o.append(f'{ch}P{cnt[ch]}:'); o.append(f'  s_cbranch_execz {ch}P{cnt[ch]+1}'); cnt[ch] += 1; n = 0
            if t.startswith('s_mov_b64 exec,'): hold = t.endswith('vcc') or t.endswith(', 0')
            if t.startswith('WRET'): ch = t[4:-1]; cnt[ch] = 0; n = 0
            o.append(l); n += isins
        for ch, c in cnt.items():
            o = [f'  s_cbranch_execz WRET{ch}' if l.endswith(f' {ch}P{c}') else l for l in o]
            for w in range(4): o = [l.replace(f'{ch}W{w}', f'{ch}P{w*c//4}') for l in o]
        print('pads', cnt); T = o
    out += T
    out.append('.section .rodata,"a"')
    nv = 256; assert k.maxv <= 240
    out.append(f""".p2align 6
.amdhsa_kernel {k.name}
  .amdhsa_next_free_vgpr {nv}
  .amdhsa_next_free_sgpr 102
  .amdhsa_accum_offset {nv}
  .amdhsa_group_segment_fixed_size 0
  .amdhsa_kernarg_size 104
  .amdhsa_user_sgpr_count 2
  .amdhsa_user_sgpr_kernarg_segment_ptr 1
  .amdhsa_system_sgpr_workgroup_id_x 1
.end_amdhsa_kernel""")
    open(path, 'w').write('\n'.join(out) + '\n')

if __name__ == '__main__':
    for a in sys.argv[2:]:
        if a == 'stamp': K.STAMP = True
        elif a == 'list': pass
        elif a == 'dbg': K.STAMP = True; K.DBG = True
        else:
            kk, vv = a.split('='); OPT[kk] = vv if kk == 'wk' else int(vv)
    K.NST = 17
    k = build(NAME + '_kernel')
    print('vgprs', k.maxv, 'instrs', len(k.L))
    emit(k, NMAIN + NFFN, 57344 + 2304, sys.argv[1], 'list' in sys.argv or 'stamp' in sys.argv)
```

```python
import sys, struct
from asmlib import *
from gen import fl, srd, red_half, merge, unpack_direct, unpack_mirror, DPP, NAME, PITCH
Q1, Q2, U1, U2 = 0x000000, 0x210000, 0x320000, 0x430000
X2, XP = 0x540000, 1152
KEY1, KEY2 = 0x780000, 0x790000
H1, H2, UPD = 0x7B0000, 0x7B4000, 0x7B8000
HU, EPOCH = 0x7C0000, 0x7C1000
WS_BYTES = 0x10000000
SC = 'sc0 sc1'
NMAIN, NFFN = 257, 248
KR1, KR2 = 0x800000, 0x940000
def krs(): return (257*OPT['kp'] + 127)//128*128 + 128*(1 - ((257*OPT['kp'] + 127)//128) % 2)
PG, PP = 0xA80000, 4352
def hpg(layer): return PG + PP*(OPT['ru'] + (layer-1)*4*OPT['rh'])
OPT = dict(stub=0, wk='XAXBXCXD', pad=0, al=2, tq1=0, tu1=0, tq2=130, p256=0, dsk=1, hpre2=14, u256=60, upre=400, osc=0, usleep=0, hsleep=0, hu=1, hdel=6, pk=0, pgap=5, ek=1, pu=0, kp=16, kr=4, kx=1, ru=16, rh=8, ro=1, ro5=1, qdel=10, sleep=0, fsleep=0, gsleep=4, nf=2, pref=1, drain=1, pre=0, cpf=1, fdel=0, odel=0, hpre=26, tp=300, tc=300, nfc=2, ns=2, now=0, w256=20, prio=1)
L_U, L_Q, L_KEY, L_UD, L_X, L_KT, L_TR, L_OLD = 0, 4096, 8192, 8448, 12544, 21760, 23808, 32000
XOR4 = ('quad_perm:[1,0,3,2]', 'quad_perm:[2,3,0,1]', 'row_half_mirror', 'row_mirror')

def gather(k, lab, loads, check, sleep=0, restore='-1', first=True):
    k('s_mov_b32 s37, 0x10000')
    if not first: k(f's_branch {lab}c')
    elif sleep: k(f's_branch {lab}')
    if sleep:
        k.lab(f'{lab}s'); k(f's_sleep {sleep}')
    k.lab(lab)
    k(loads)
    if not first: k.lab(f'{lab}c')
    k(f's_sub_u32 s37, s37, 1\ns_waitcnt vmcnt(0)'); k(check)
    k(f's_cbranch_scc1 {lab}x\ns_mov_b64 exec, vcc\ns_cbranch_vccnz {lab}{"s" if sleep else ""}')
    k.lab(f'{lab}x')
    k(f's_mov_b64 exec, {restore}')
def pgather(k, lab, loads, check, fin, np_, nl, gap):
    k('s_mov_b32 s37, 0x4000')
    for j in range(np_):
        k(loads(j))
        if j < np_ - 1 and gap: k(f's_sleep {gap}')
    k.lab(lab)
    for j in range(np_):
        k(f's_waitcnt vmcnt({(np_-1)*nl})'); k(check(j))
        k(f's_cbranch_vccz {lab}f{j}'); k(loads(j))
    k(f's_sub_u32 s37, s37, 1\ns_cbranch_scc0 {lab}\ns_waitcnt vmcnt(0)')
    for j in range(np_):
        k.lab(f'{lab}f{j}'); k(fin(j))
        if j < np_ - 1: k(f's_branch {lab}x')
    k.lab(f'{lab}x')
def ck_tag(t, regs):
    if len(regs) == 1: return f'v_cmp_ne_u32 vcc, s40, v{regs[0]}'
    o = [f'v_bitop3_b32 v{t}, v{regs[0]}, v{regs[1]}, s40 bitop3:0x7e']
    o += [f'v_bitop3_b32 v{t}, v{t}, v{r}, s40 bitop3:0xf6' for r in regs[2:]]
    return '\n'.join(o + [f'v_cmp_ne_u32 vcc, 0, v{t}'])
def ck_sent(t, regs, val='-1'):
    regs = list(regs); o = []
    if len(regs) % 2 == 0: o.append(f'v_max_u32 v{t}, v{regs[0]}, v{regs[1]}'); regs = regs[2:]
    else: o.append(f'v_max3_u32 v{t}, v{regs[0]}, v{regs[1]}, v{regs[2]}'); regs = regs[3:]
    for i in range(0, len(regs), 2): o.append(f'v_max3_u32 v{t}, v{t}, v{regs[i]}, v{regs[i+1]}')
    return '\n'.join(o + [f'v_cmp_eq_u32 vcc, {val}, v{t}'])
def poll_keys(k, name, layer, vky, fg, fx, t, sleep, sid, regs=0, early=0):
    KEY = KR1 if layer == 1 else KR2
    k(f's_and_b32 s36, {sid}, {OPT["kr"]-1}\ns_mul_i32 s36, s36, {krs()}\ns_add_u32 s36, s36, {hex(KEY)}\ns_add_u32 s38, s36, {256*OPT["kp"]}')
    if regs:
        pgather(k, f'{name}_pp{layer}', lambda j: f'buffer_load_dwordx3 {vr(regs+8*j,3)}, v{vky}, s[4:7], s36 offen {SC}\nbuffer_load_dwordx2 {vr(regs+8*j+4,2)}, off, s[4:7], s38 {SC}',
                lambda j: ck_tag(t, [regs+8*j, regs+8*j+4]), lambda j: f'v_mov_b32 v{fg+1}, v{regs+8*j+1}\nv_mov_b32 v{fg+2}, v{regs+8*j+2}\nv_mov_b32 v{fx+1}, v{regs+8*j+5}', OPT['pk'], 2, OPT['pgap'])
        return
    lx = f'buffer_load_dwordx2 {vr(fx,2)}, off, s[4:7], s38 {SC}'
    lk = f'buffer_load_dwordx3 {vr(fg,3)}, v{vky}, s[4:7], s36 offen {SC}'
    if early == 1: k(lx + '\n' + lk); return
    if early == 2: k(ck_tag(t, [fg, fx]) + f'\ns_cbranch_vccz {name}_pz{layer}')
    k(lx)
    gather(k, f'{name}_pk{layer}', f'buffer_load_dwordx3 {vr(fg,3)}, v{vky}, s[4:7], s36 offen {SC}', ck_tag(t, [fg]), sleep)
    gather(k, f'{name}_px{layer}', lx, ck_tag(t, [fx]), sleep, first=False)
    if early == 2: k.lab(f'{name}_pz{layer}')
def sel_decode(k, layer, rows):
    k(f"""s_and_b32 s42, s56, 0x73f
s_and_b32 s43, s57, 0x73f
s_cmp_eq_u32 s42, s43
s_cselect_b32 s36, 64, 0
s_add_u32 s43, s43, s36
s_mul_i32 s42, s42, {XP}
s_mul_i32 s43, s43, {XP}
s_add_u32 s42, s42, {hex(X2 + (layer-1)*128*XP)}
s_add_u32 s43, s43, {hex(X2 + (layer-1)*128*XP)}""")
    if rows:
        for r in (56, 57):
            k(f's_and_b32 s36, s{r}, 2047\ns_sub_u32 s37, 2048, s36\ns_bitcmp1_b32 s{r}, 11\ns_cselect_b32 s{r}, s37, s36')

def wait_until(k, lab, T):
    k(f's_mov_b32 s37, 64\n{lab}:\ns_memrealtime s[98:99]\ns_sub_u32 s37, s37, 1\ns_cbranch_scc1 {lab}x\ns_waitcnt lgkmcnt(0)\ns_sub_u32 s98, s98, s96\ns_cmp_ge_u32 s98, {T}\ns_cbranch_scc1 {lab}x\ns_sleep 2\ns_branch {lab}\n{lab}x:')
def walk(k, c):
    if OPT['pad'] and c in OPT['wk']:
        k(f's_mov_b64 exec, 0\ns_cmp_eq_u32 s22, 1\ns_cbranch_scc1 {c}W1\ns_cmp_eq_u32 s22, 2\ns_cbranch_scc1 {c}W2\ns_cmp_eq_u32 s22, 3\ns_cbranch_scc1 {c}W3\ns_branch {c}W0\nWRET{c}:\ns_mov_b64 exec, -1')
def trickle(k, l0, l1):
    ns = OPT['ns']
    if ns == 1: k(f'{l0}\n{l1}')
    elif ns == 2: k(f'{l0}\ns_waitcnt vmcnt(0)\n{l1}')
    else:
        n = ns // 2; w = 64 // n
        for l in (l0, l1):
            for i in range(n):
                m = ((1 << w) - 1) << (w*i)
                k(f's_mov_b32 exec_lo, {hex(m & 0xffffffff)}\ns_mov_b32 exec_hi, {hex(m >> 32)}\n{l}\ns_waitcnt vmcnt(0)')
        k('s_mov_b64 exec, -1')
    k('s_waitcnt vmcnt(0)')
def top2_merge(k, m1, m2, n1, n2):
    k(f'v_max_u32 v{m2}, v{m2}, v{n2}\nv_med3_u32 v{m2}, v{m1}, v{m2}, v{n1}\nv_max_u32 v{m1}, v{m1}, v{n1}')
def top2_row(k, m1, m2, n1, n2):
    for m in XOR4:
        k(f'v_mov_b32_dpp v{n1}, v{m1} {m} {DPP}\nv_mov_b32_dpp v{n2}, v{m2} {m} {DPP}')
        top2_merge(k, m1, m2, n1, n2)
def top2_wave(k, m1, m2, n1, n2):
    top2_row(k, m1, m2, n1, n2)
    for sw in ('v_permlane16_swap_b32', 'v_permlane32_swap_b32'):
        k(f'v_mov_b32 v{n1}, v{m1}\nv_mov_b32 v{n2}, v{m2}\n{sw} v{m1}, v{n1}\n{sw} v{m2}, v{n2}')
        top2_merge(k, m1, m2, n1, n2)

def twiddle(k, re, im, c_, s_, t0, t1, dst):
    k(f'''v_mul_f32 v{t0}, v{re}, v{c_}
v_mul_f32 v{t1}, v{im}, v{c_}
v_fmac_f32 v{t0}, v{im}, v{s_}
v_fma_f32 v{t1}, -v{re}, v{s_}, v{t1}
v_cvt_pk_f16_f32 v{dst}, v{t0}, v{t1}''')

def main_role(k, name):
    k.nv = 1
    V = k.v
    vl = V(); vn = V(); vg = V(); vch = V(); vod = V(); vom = V(); vom0 = V(); vp = V(); vt = V(); vt2 = V()
    vfa = V(); bpf = V(); vqw = V(); bpm = V(); vra = V(); vrb = V(); vsg = V(); sw = V()
    va = V(); vst = V(); xa = V(6); vq1 = V(); vq2 = V(); vqr = V(); vqr2 = V()
    fg = V(4, 4); fx = V(2, 2)
    a = V(8); b = V(8); wa = V(8); wb = V(8)
    RB1 = V(16, 4); RTW = V(16); RB2 = V(4, 4)
    CB1 = V(32, 4); CTW = V(16); CA2 = V(16, 4)
    T0 = V(0, 4)
    xd = V(4, 4); xm = V(4, 4); wd = V(4, 4); wm = V(4, 4); cl = V(4, 4); xm0 = V(); wm0 = V()
    k(f'''s_lshr_b32 s20, s2, 3
s_and_b32 s21, s2, 7
s_cmp_eq_u32 s20, 0
s_cselect_b32 s26, s21, 0
s_cmp_ge_u32 s26, 4
s_cselect_b32 s20, 32, s20
s_cselect_b32 s26, 4, 0
s_sub_u32 s21, s21, s26
s_cmp_eq_u32 s2, 256
s_cselect_b32 s20, 0, s20
s_cselect_b32 s21, 4, s21
s_cselect_b32 s60, s22, 0
s_lshl_b32 s23, s21, 2
s_add_u32 s23, s23, s22
s_lshl_b32 s23, s23, 6
s_add_u32 s23, s23, s20
s_sub_u32 s24, 2048, s23
s_and_b32 s24, s24, 2047
s_lshl_b32 s28, s23, 10
s_lshl_b32 s29, s24, 10
v_and_b32 v{vn}, 15, v0
v_bfe_u32 v{vg}, v0, 4, 2
v_lshl_add_u32 v{vch}, v{vn}, 2, v{vg}
v_lshlrev_b32 v{vod}, 4, v{vch}
v_sub_u32 v{vom}, 1008, v{vod}
v_sub_u32 v{vom0}, 1024, v{vod}
v_and_b32 v{vom0}, 1023, v{vom0}
s_lshr_b32 s36, s2, 1
s_mul_i32 s36, s36, {PITCH}
s_bitcmp1_b32 s2, 0
s_cselect_b32 s37, 4096, 0
s_add_u32 s36, s36, s37
s_cmp_eq_u32 s2, 256
s_cselect_b32 s36, 8192, s36
s_cselect_b32 s37, {PITCH-128}, 0
s_add_u32 s36, s36, {hex(U1)}
v_lshlrev_b32 v{vfa}, 4, v0
v_lshrrev_b32 v{vt}, 3, v0
v_mad_u32_u24 v{vt}, v{vt}, s37, v{vfa}
v_mov_b32 v{cl}, -1
v_mov_b32 v{cl+1}, -1
v_mov_b32 v{cl+2}, -1
v_mov_b32 v{cl+3}, -1
s_mov_b32 s6, {hex(WS_BYTES)}
s_mov_b32 s7, 0x20000
s_mov_b32 s10, {hex(2048*1024)}
s_mov_b32 s11, 0x20000
s_waitcnt lgkmcnt(0)''')
    k.stamp(1)
    k('s_mov_b32 s8, s32\ns_mov_b32 s9, s33')
    k(f'''buffer_load_dwordx4 {vr(xd,4)}, v{vod}, s[8:11], s28 offen
buffer_load_dwordx4 {vr(xm,4)}, v{vom}, s[8:11], s29 offen
buffer_load_ushort v{xm0}, v{vom0}, s[8:11], s29 offen
s_mov_b32 s4, s30
s_mov_b32 s5, s31
buffer_store_dwordx4 {vr(cl,4)}, v{vt}, s[4:7], s36 offen {SC}
s_add_u32 s38, s30, {hex(EPOCH)}
s_addc_u32 s39, s31, 0
s_load_dword s40, s[38:39], 0''')
    srd(k, 12, 44, 1024); srd(k, 16, 58, 2048*1024)
    k(f'''buffer_load_dwordx4 {vr(wd,4)}, v{vod}, s[12:15], 0 offen
buffer_load_dwordx4 {vr(wm,4)}, v{vom}, s[12:15], 0 offen
buffer_load_ushort v{wm0}, v{vom0}, s[12:15], 0 offen
v_and_b32 v{vl}, 63, v0
s_cmp_lg_u32 s2, 256
s_cbranch_scc1 {name}_clr2
s_add_u32 s36, s36, {32*PITCH}
buffer_store_dwordx4 {vr(cl,4)}, v{vt}, s[4:7], s36 offen {SC}
s_add_u32 s36, s36, {32*PITCH}
buffer_store_dwordx4 {vr(cl,4)}, v{vt}, s[4:7], s36 offen {SC}
s_add_u32 s36, s36, {32*PITCH}
buffer_store_dwordx4 {vr(cl,4)}, v{vt}, s[4:7], s36 offen {SC}
{name}_clr2:
s_lshl_b32 s25, s21, 10
s_lshl_b32 s26, s20, 4
s_add_u32 s25, s25, s26
s_sub_u32 s27, 8192, s25
s_lshl_b32 s26, s21, 4
s_add_u32 s36, s26, 8192
s_sub_u32 s37, {8192+116}, s26
s_cmp_eq_u32 s20, 0
s_cselect_b32 s25, s36, s25
s_cselect_b32 s27, s37, s27
s_cmp_ge_u32 s22, 2
s_cselect_b32 s25, s27, s25
v_and_b32 v{vp}, 127, v0
v_mul_u32_u24 v{vp}, {PITCH}, v{vp}
s_lshl_b32 s61, s2, 12
s_add_u32 s61, s61, {hex(Q2)}
s_bfe_u32 s37, s2, 0x40004
s_and_b32 s36, s2, 7
s_lshl_b32 s36, s36, 4
s_add_u32 s3, s37, s36
s_mul_i32 s41, s3, {PITCH}
s_bfe_u32 s26, s2, 0x10003
s_lshl_b32 s26, s26, 5
s_lshr_b32 s37, s22, 1
s_lshl_b32 s37, s37, 4
s_add_u32 s26, s26, s37
s_and_b32 s27, s22, 1
v_add_u32 v{vt}, s26, v{vn}
v_lshl_add_u32 v{vt2}, s27, 2, v{vg}
v_lshlrev_b32 v{vst}, 10, v{vt2}
v_lshl_add_u32 v{vst}, v{vt}, 4, v{vst}
v_cmp_eq_u32 vcc, 0, v{vt}
v_lshlrev_b32 v{vt2}, 4, v{vt2}
v_add_u32 v{vt2}, 8192, v{vt2}
v_cndmask_b32 v{vst}, v{vst}, v{vt2}, vcc
s_cmp_lg_u32 s2, 256
s_cbranch_scc1 {name}_clr3
buffer_store_dwordx4 {vr(cl,4)}, v{vfa}, s[4:7], s61 offen {SC}
{name}_clr3:''')
    def lane_of(dst, chreg):
        k(f'v_and_b32 v{vt2}, 3, v{chreg}\nv_and_b32 v{dst}, 60, v{chreg}\nv_lshl_add_u32 v{dst}, v{vt2}, 6, v{dst}')
    k(f'''v_cmp_lt_u32 s[44:45], 31, v{vch}
v_add_u32 v{vt}, 1, v{vch}
v_cndmask_b32 v{vt}, v{vch}, v{vt}, s[44:45]
v_and_b32 v{vt}, 63, v{vt}
v_cmp_eq_u32 vcc, 0, v{vt}
v_cndmask_b32 v{vt}, v{vt}, 32, vcc''')
    lane_of(bpf, vt)
    k(f'''v_sub_u32 v{vt}, 95, v{vch}
v_cndmask_b32 v{vt}, v{vch}, v{vt}, s[44:45]
s_lshl_b32 s36, s22, 2
s_sub_u32 s37, {L_Q+12}, s36
s_add_u32 s36, s36, {L_Q}
v_mov_b32 v{vt2}, s36
v_mov_b32 v{vqw}, s37
v_cndmask_b32 v{vqw}, v{vt2}, v{vqw}, s[44:45]
v_lshl_add_u32 v{vqw}, v{vt}, 6, v{vqw}
v_add_u32 v{vt}, 1, v{vch}
v_and_b32 v{vt}, 63, v{vt}''')
    lane_of(bpm, vt)
    k(f'''v_and_b32 v{vt}, 2, v0
v_lshlrev_b32 v{vt}, 10, v{vt}
v_and_b32 v{vt2}, 1, v0
v_lshl_add_u32 v{vt}, v{vt2}, 3, v{vt}
v_and_b32 v{vt2}, 252, v0
v_lshl_add_u32 v{vqr}, v{vt2}, 2, v{vt}''')

    def stats_and_out(mode):
        k.nv = T0 + 24
        sa = V(); qa = V(); sb = V(); qb = V(); ra = V(); rb = V()
        for (S_, Q_, base, R_, W_) in ((sa, qa, a, ra, wa), (sb, qb, b, rb, wb)):
            k(f'v_add_f32 v{S_}, v{base}, v{base+1}\nv_mul_f32 v{Q_}, v{base}, v{base}')
            if mode != 1: k(f'v_mul_f32 v{R_}, v{base}, v{W_}')
            for i in range(1, 8):
                if i > 1: k(f'v_add_f32 v{S_}, v{S_}, v{base+i}')
                k(f'v_fmac_f32 v{Q_}, v{base+i}, v{base+i}')
                if mode != 1: k(f'v_fmac_f32 v{R_}, v{base+i}, v{W_+i}')
        merge(k, sa, sb); merge(k, qa, qb)
        if mode != 1: merge(k, ra, rb)
        red_half(k, [sa, qa] + ([ra] if mode != 1 else []))
        k(f'''v_mul_f32 v{sa}, {fl(1/512)}, v{sa}
v_mul_f32 v{qa}, {fl(1/512)}, v{qa}
v_fma_f32 v{qa}, -v{sa}, v{sa}, v{qa}
v_max_f32 v{qa}, 0, v{qa}
v_add_f32 v{qb}, {fl(1e-5)}, v{qa}
v_rsq_f32 v{qb}, v{qb}''')
        if mode == 1: zc = qb
        else:
            st = V(4, 4); one = V(); nb = V(); zc = V()
            k(f'''v_add_f32 v{one}, 1.0, v{qb}
v_fma_f32 v{ra}, -v{sa}, v{sw}, v{ra}
v_mul_f32 v{nb}, v{sa}, v{qb}
v_mul_f32 v{qa}, v{qa}, v{one}
v_rcp_f32 v{st+1}, v{one}
v_mul_f32 v{qa}, v{qa}, v{one}
v_mul_f32 v{st+2}, v{ra}, v{qb}
v_add_f32 v{qa}, {fl(1e-5)}, v{qa}
v_mov_b32 v{st}, v{sa}
v_rsq_f32 v{st+3}, v{qa}
v_mul_f32 v{st+1}, v{st+1}, v{qb}
v_readlane_b32 s48, v{one}, 16
v_readlane_b32 s49, v{one}, 48
v_readlane_b32 s50, v{nb}, 16
v_readlane_b32 s51, v{nb}, 48
v_mul_f32 v{zc}, v{st+3}, v{one}''')
        pk = V(4, 4)
        fv = V(8); t0 = V(); t1 = V()
        def qcomp():
            k(f'''v_mul_f32 v{sb}, v{sa}, v{zc}
v_readlane_b32 s52, v{zc}, 16
v_readlane_b32 s53, v{zc}, 48
v_readlane_b32 s54, v{sb}, 16
v_readlane_b32 s55, v{sb}, 48''')
            k(f'v_mov_b32 v{vt}, s54\nv_add_f32 v{vt}, s55, v{vt}')
            for i in range(8):
                k(f'v_fma_f32 v{fv+i}, v{a+i}, s52, -v{vt}\nv_fmac_f32 v{fv+i}, s53, v{b+i}')
                if i == 0: k(f'ds_bpermute_b32 v{fv}, v{bpf}, v{fv}')
            def sel(dst, i):
                if i == 4: return fv + 4
                k(f'v_cndmask_b32 v{dst}, v{fv+i}, v{fv+8-i}, s[44:45]'); return dst
            for i in (1, 2, 3):
                lo = sel(t0, 2*i); hi = sel(t1, 2*i+1)
                k(f'v_cvt_pk_f16_f32 v{pk+i}, v{lo}, v{hi}')
            hi = sel(t1, 1)
            k(f'''ds_write2_b32 v{vqw}, v{pk+2}, v{pk+3} offset0:8 offset1:12
s_waitcnt lgkmcnt(1)
v_cvt_pk_f16_f32 v{pk}, v{fv}, v{hi}
ds_write2_b32 v{vqw}, v{pk}, v{pk+1} offset0:0 offset1:4''')
        if mode == 1 or (mode == 3 and not OPT['ro']): qcomp()
        if mode != 1 and OPT['hu'] == 2: headsup(mode // 2)
        if mode != 1:
            k(f'''v_and_b32 v{vt}, 32, v0
v_ashrrev_i32 v{one}, 31, v{st+2}
v_lshl_add_u32 v{vt}, v{vt}, 6, s23
v_or_b32 v{one}, 0x80000000, v{one}
v_lshrrev_b32 v{vt2}, 3, v0
v_xor_b32 v{one}, v{one}, v{st+2}
v_and_b32 v{vt2}, 60, v{vt2}
v_and_b32 v{one}, 0xfffff000, v{one}
s_cmp_eq_u32 s23, s24
s_cselect_b32 s36, 0, 0x10000
v_or_b32 v{one}, v{one}, v{vt}
s_cmp_lg_u32 s60, 0
s_cbranch_scc1 {name}_nokey{mode}
s_mov_b32 exec_lo, 0x10000
s_mov_b32 exec_hi, s36
ds_write_b32 v{vt2}, v{one} offset:{L_KEY}
s_mov_b64 exec, -1
{name}_nokey{mode}:''')
        if mode == 1:
            p2 = V(4, 4)
            k(f'''s_lshl_b32 s38, s2, 13
s_add_u32 s39, s38, 4096
v_mov_b32 v{p2+2}, s40
v_mov_b32 v{p2+3}, s40
s_waitcnt vmcnt(0) lgkmcnt(0)
v_mov_b32 v{pk+2}, s40
v_mov_b32 v{pk+3}, s40
s_barrier
ds_read_b64 {vr(pk,2)}, v{vqr} offset:{L_Q}
ds_read_b64 {vr(p2,2)}, v{vqr} offset:{L_Q+1024}
s_waitcnt lgkmcnt(1)
buffer_store_dwordx4 {vr(pk,4)}, v{vfa}, s[4:7], s38 offen {SC}
s_waitcnt lgkmcnt(0)
buffer_store_dwordx4 {vr(p2,4)}, v{vfa}, s[4:7], s39 offen {SC}''')
            return
        o1 = V(4, 4); o2 = V(4, 4); b0 = V(); n1 = V(); n2 = V()
        layer = mode // 2
        def resid():
            k(f'v_mov_b32 v{vt}, s50\nv_mov_b32 v{vt2}, s51')
            for i in range(8):
                k(f'v_fma_f32 v{b+i}, v{b+i}, s49, -v{vt2}')
                if i == 0: k(f'ds_bpermute_b32 v{b0}, v{bpm}, v{b}')
            for i in range(8): k(f'v_fma_f32 v{a+i}, v{a+i}, s48, -v{vt}')
            for i in range(4): k(f'v_cvt_pk_bf16_f32 v{o1+i}, v{a+2*i}, v{a+2*i+1}')
            for i in range(1, 4): k(f'v_cvt_pk_bf16_f32 v{o2+i}, v{b+8-2*i}, v{b+7-2*i}')
            k(f'''s_lshl_b32 s36, s22, 11
v_add_u32 v{vt}, s36, v{vod}
v_add_u32 v{vt2}, s36, v{vom}
ds_write_b128 v{vt}, {vr(o1,4)} offset:{L_TR}
v_lshl_add_u32 v{vt}, v{vl}, 4, s36
s_waitcnt lgkmcnt(1)
v_cvt_pk_bf16_f32 v{o2}, v{b0}, v{b+7}
ds_write_b128 v{vt2}, {vr(o2,4)} offset:{L_TR+1024}
v_lshlrev_b32 v{b0}, 4, v{vl}
ds_read_b128 {vr(o1,4)}, v{vt} offset:{L_TR}
ds_read_b128 {vr(o2,4)}, v{vt} offset:{L_TR+1024}''')
        if mode == 5 and not OPT['ro5']: resid()
        kv = V()
        kslot = 's_mov_b32 s39, s2' if not OPT['kx'] else 's_and_b32 s39, s2, 7\ns_lshl_b32 s39, s39, 5\ns_bfe_u32 s37, s2, 0x50003\ns_add_u32 s39, s39, s37\ns_and_b32 s37, s2, 256\ns_add_u32 s39, s39, s37'
        kex = {1: 's_mov_b64 exec, 1', 2: 's_mov_b64 exec, 3', 4: 's_mov_b64 exec, 15', 8: 's_mov_b64 exec, 0xff', 16: 's_mov_b64 exec, 0xff00ff', 32: 's_mov_b32 exec_lo, 0xff00ff\ns_mov_b32 exec_hi, 0xff00ff'}[min(OPT['kr'], 32)]
        k(f'''v_lshlrev_b32 v{vt}, 2, v{vn}
v_mov_b32 v{fg+2}, 0
v_mov_b32 v{fg}, s40
s_lshl_b32 s38, s2, 7
s_add_u32 s38, s38, {hex(KEY2)}
{kslot}
s_mul_i32 s39, s39, {OPT['kp']}
s_add_u32 s39, s39, {hex(KR1 if mode == 3 else KR2)}
s_mul_i32 s37, s22, {32*krs()}
s_add_u32 s39, s39, s37
v_lshrrev_b32 v{kv}, 1, v{vl}
v_and_b32 v{kv}, 24, v{kv}
v_and_or_b32 v{kv}, v{vl}, 7, v{kv}
v_mul_u32_u24 v{kv}, {krs()}, v{kv}
s_waitcnt lgkmcnt(0)
s_barrier
ds_read_b32 v{fg+1}, v{vt} offset:{L_KEY}''')
        q2st = f'ds_read_b128 {vr(pk,4)}, v{vqr2} offset:{L_Q}\ns_waitcnt lgkmcnt(0)\nbuffer_store_dwordx4 {vr(pk,4)}, v{vfa}, s[4:7], s61 offen {SC}'
        if mode == 3 and not OPT['ro']: k(q2st)
        else: k('s_waitcnt lgkmcnt(0)')
        for m in XOR4[:3]:
            k(f'v_mov_b32_dpp v{n1}, v{fg+1} {m} {DPP}\nv_mov_b32_dpp v{n2}, v{fg+2} {m} {DPP}')
            top2_merge(k, fg+1, fg+2, n1, n2)
        k(f'''s_cmp_ge_u32 s22, {max(OPT['kr']//32, 1)}
s_cbranch_scc1 {name}_nopub{mode}
{kex}
buffer_store_dwordx4 {vr(fg,4)}, v{kv}, s[4:7], s39 offen {SC}
s_mov_b64 exec, -1
{name}_nopub{mode}:''')
        k.stamp(5 if mode == 3 else 11)
        if OPT['hu'] == 1: headsup(layer)
        if mode == 3 and OPT['upre']: k(f's_lshr_b32 s36, s2, 8\ns_mul_i32 s36, s36, {OPT["u256"]}\ns_memrealtime s[96:97]\ns_waitcnt lgkmcnt(0)\ns_sub_u32 s96, s96, s36')
        if OPT['dsk']:
            assert OPT['ro'] and OPT['ro5']
            k(f's_cmp_lg_u32 s60, 0\ns_cbranch_scc1 {name}_cd{mode}1')
        if mode == 3 and OPT['ro']: qcomp()
        k(f'v_readfirstlane_b32 s52, v{fg+1}\nv_readfirstlane_b32 s53, v{fg+2}')
        if mode == 3 or OPT['ro5']: resid()
        k(f'''s_and_b32 s36, s23, 0x73f
s_mul_i32 s36, s36, {XP}
s_add_u32 s36, s36, {hex(X2 + (layer-1)*128*XP)}
s_mov_b32 s54, 0
s_waitcnt lgkmcnt(0)''')
        for sl in range(2):
            k(f'''s_and_b32 s37, s{52+sl}, 2047
s_cmp_lg_u32 s37, s23
s_cbranch_scc1 {name}_cd{mode}{sl}
s_bitcmp1_b32 s{52+sl}, 11
s_cbranch_scc1 {name}_cb{mode}{sl}
buffer_store_dwordx4 {vr(o1,4)}, v{b0}, s[4:7], s36 offen {SC}
s_mov_b64 exec, 0x10000
s_bitset1_b32 s54, 0
s_branch {name}_cs{mode}{sl}
{name}_cb{mode}{sl}:
buffer_store_dwordx4 {vr(o2,4)}, v{b0}, s[4:7], s36 offen {SC}
s_mov_b32 exec_lo, 0
s_mov_b32 exec_hi, 0x10000
s_bitset1_b32 s54, 1
{name}_cs{mode}{sl}:
buffer_store_dwordx4 {vr(st,4)}, off, s[4:7], s36 offset:1024 {SC}
s_mov_b64 exec, -1
{name}_cd{mode}{sl}:''')
            if sl == 0: k(f's_add_u32 s36, s36, {64*XP}')
        if mode == 3 and OPT['ro']:
            k('s_barrier')
            if OPT['qdel']: k(f's_sleep {OPT["qdel"]}')
            k(q2st)
        if mode == 5 and not OPT['osc']:
            k(f'''s_cmp_eq_u32 s23, s24
s_cselect_b32 s55, 1, 3
s_cmp_lg_u32 s60, 0
s_cbranch_scc1 {name}_noout
s_andn2_b32 s36, s55, s54
s_and_b32 s55, s55, s54''')
            for ph, sr, fl_ in ((0, 's36', OPT.get('ofl', '')), (1, 's55', SC)):
                if ph and OPT['odel']: k(f's_sleep {OPT["odel"]}')
                for i, (o, so) in enumerate(((o1, 's28'), (o2, 's29'))):
                    k(f's_bitcmp1_b32 {sr}, {i}\ns_cbranch_scc0 {name}_o{ph}{i}\nbuffer_store_dwordx4 {vr(o,4)}, v{b0}, s[16:19], {so} offen {fl_}\n{name}_o{ph}{i}:')
            k.lab(f'{name}_noout')
        elif mode == 5:
            if OPT['odel']: k(f's_sleep {OPT["odel"]}')
            k(f'''s_cmp_lg_u32 s60, 0
s_cbranch_scc1 {name}_noout
buffer_store_dwordx4 {vr(o1,4)}, v{b0}, s[16:19], s28 offen {SC}
s_cmp_eq_u32 s23, s24
s_cbranch_scc1 {name}_noout
buffer_store_dwordx4 {vr(o2,4)}, v{b0}, s[16:19], s29 offen {SC}
{name}_noout:''')

    def predelay():
        if OPT['drain']: k('s_waitcnt vmcnt(0)')
        if OPT['pre']: k(f's_sleep {OPT["pre"]}')
    def headsup(layer):
        k(f'''s_lshr_b32 s36, s2, 3
s_or_b32 s36, s36, s22
s_cbranch_scc1 {name}_hu{layer}
s_lshl_b32 s36, s2, 7
s_add_u32 s36, s36, {hex(HU + 1024*(layer-1))}
v_mov_b32 v{vt}, s40
s_mov_b64 exec, 1
buffer_store_dword v{vt}, off, s[4:7], s36 {SC}
s_mov_b64 exec, -1
{name}_hu{layer}:''')

    def col_consts():
        k.nv = T0 + 24
        fk = V(); fgf = V(); c = V(); s = V(); ang = V(); f1 = V(); f2 = V()
        def xaddr(dst, sh, nxt):
            k(f'''v_lshrrev_b32 v{vt}, {sh+3}, v0
v_mul_u32_u24 v{vt}, 144, v{vt}
v_bfe_u32 v{vt2}, v0, {sh}, 3
v_lshl_add_u32 v{vt}, v{vt2}, 4, v{vt}
v_and_b32 v{vt2}, {1 << (sh-1)}, v0
v_cmp_ne_u32 s[38:39], 0, v{vt2}
v_sub_u32 v{vt2}, 9328, v{vt}
v_mov_b32 v{c}, {1152*(4 >> sh)}
v_mov_b32 v{s}, {-1152*(4 >> sh)}
v_cndmask_b32 v{dst+1}, v{vt}, v{vt2}, s[38:39]
v_cndmask_b32 v{c}, v{c}, v{s}, s[38:39]
v_lshrrev_b32 v{s}, 6, v{vt}
v_add_u32 v{vt2}, 4544, v{vt}
v_cmp_eq_u32 vcc, 1, v{s}
v_cndmask_b32 v{vt}, v{vt}, v{vt2}, vcc
v_sub_u32 v{vt2}, 9328, v{vt}
v_sub_u32 v{dst}, 116, v{vt}
v_cmp_eq_u32 vcc, 0, v{s}
v_cndmask_b32 v{vt2}, v{vt2}, v{dst}, vcc
v_cndmask_b32 v{dst}, v{vt}, v{vt2}, s[38:39]''')
            if sh == 2: k(f'v_and_b32 v{vt}, 1, v0\nv_lshl_add_u32 v{dst}, v{vt}, 3, v{dst}\nv_lshl_add_u32 v{dst+1}, v{vt}, 3, v{dst+1}')
            k(f'v_add_u32 v{dst}, {L_X}, v{dst}')
            for i in range(nxt): k(f'v_add_u32 v{dst+1+i}, v{dst+max(i,1)}, v{c}')
        xaddr(xa, 2, 3); xaddr(xa+4, 1, 1)
        k(f'''v_lshrrev_b32 v{vt}, 2, v0
v_and_b32 v{vt2}, 3, v0
v_lshlrev_b32 v{vt}, 13, v{vt}
v_lshl_add_u32 v{vq1}, v{vt2}, 4, v{vt}
v_lshrrev_b32 v{vt}, 1, v0
v_and_b32 v{vt2}, 1, v0
v_lshlrev_b32 v{vqr2}, 4, v{vt}
v_lshl_add_u32 v{vqr2}, v{vt2}, 11, v{vqr2}
v_lshlrev_b32 v{vt}, 12, v{vt}
v_lshl_add_u32 v{vq2}, v{vt2}, 4, v{vt}
v_mul_u32_u24 v{va}, 144, v{vn}
v_lshl_add_u32 v{va}, v{vg}, 5, v{va}
v_add_u32 v{vt}, s26, v{vn}
v_cvt_f32_u32 v{fk}, v{vt}
v_cvt_f32_u32 v{fgf}, v{vg}
v_mul_f32 v{f1}, {fl(1/64)}, v{fk}
v_add_f32 v{f2}, v{f1}, v{f1}
v_mul_f32 v{vt2}, {fl(16.0)}, v{fgf}
v_mul_f32 v{vt2}, v{vt2}, v{f1}''')
        for hi in range(2):
            k(f'v_add_f32 v{ang}, v{vt2}, v{f1}' if hi else f'v_mov_b32 v{ang}, v{vt2}')
            for half in range(2):
                for r in range(4):
                    if half or r: k(f'v_add_f32 v{ang}, v{ang}, v{f2}')
                    o = CB1 + 16*hi + 8*half
                    k(f'v_cos_f32 v{c}, v{ang}\nv_sin_f32 v{s}, v{ang}\nv_cvt_pk_f16_f32 v{o+r}, v{c}, v{s}\nv_cvt_pk_f16_f32 v{o+4+r}, -v{s}, v{c}')
        k(f'''v_mul_f32 v{f1}, {fl(1/2048)}, v{fk}
v_mul_f32 v{fgf}, 4.0, v{fgf}
s_mov_b32 s38, {fl(0.125)}
s_mov_b32 s39, {fl(13.0)}
v_mul_f32 v{ang}, v{fgf}, v{f1}''')
        for T in range(2):
            for r in range(4):
                if r: k(f'v_add_f32 v{ang}, v{ang}, v{f1}')
                elif T: k(f'v_fmac_f32 v{ang}, s39, v{f1}')
                k(f'v_cos_f32 v{c}, v{ang}\nv_sin_f32 v{s}, v{ang}\nv_mul_f32 v{CTW+8*T+2*r}, s38, v{c}\nv_mul_f32 v{CTW+8*T+2*r+1}, s38, v{s}')
        k(f'''v_lshl_add_u32 v{vt}, s27, 4, v{vn}
v_cvt_f32_u32 v{fk}, v{vt}
v_mul_f32 v{f1}, {fl(1/32)}, v{fk}
v_mul_f32 v{ang}, v{fgf}, v{f1}''')
        for T in range(2):
            for r in range(4):
                if r: k(f'v_add_f32 v{ang}, v{ang}, v{f1}')
                elif T: k(f'v_fmac_f32 v{ang}, s39, v{f1}')
                o = CA2 + 4*T
                k(f'v_cos_f32 v{c}, v{ang}\nv_sin_f32 v{s}, v{ang}\nv_cvt_pk_f16_f32 v{o+r}, v{c}, v{s}\nv_cvt_pk_f16_f32 v{o+8+r}, -v{s}, v{c}')

    def col_phase(tag, Qo, Uo):
        k.nv = T0
        X = V(32, 4); D1 = V(16, 4); Bd = V(8, 4); D2 = V(8, 4)
        G = X
        if Qo == Q2:
            k(f'''s_and_b32 s36, s20, 31
s_cbranch_scc1 {name}_nospec
s_xor_b32 s36, s20, 32
s_lshl_b32 s36, s36, 4
s_add_u32 s36, s36, {hex(U1+16)}''')
            gather(k, f'{name}_gsp', f'buffer_load_dword v{G}, v{vp}, s[4:7], s36 offen {SC}', f'v_cmp_eq_u32 vcc, -1, v{G}')
            k(f's_barrier\n{name}_nospec:')
        if Qo == Q1: walk(k, 'XA')
        predelay()
        tq = OPT['tq1'] if Qo == Q1 else OPT['tq2']
        if tq: wait_until(k, f'{name}_wq{tag}', tq)
        if Qo == Q1:
            k(f's_lshl_b32 s48, s3, 6')
            for i in range(1, 5): k(f's_add_u32 s{48+i}, s48, {hex(64*8192*i)}')
            ld = [f'buffer_load_dwordx3 {vr(G+4*i,3)}, v{vq1}, s[4:7], s{48+i} offen {SC}' for i in range(4)]
            lx = f'buffer_load_dwordx3 {vr(G+16,3)}, off, s[4:7], s52 {SC}'; cx = ck_tag(vt, [G+18])
            k(f's_cmp_lg_u32 s22, 3\ns_cbranch_scc1 {name}_e1{tag}\n{lx}\n{name}_e1{tag}:')
            gather(k, f'{name}_gq1', '\n'.join(ld), ck_tag(vt, [G+4*i+2 for i in range(4)]), OPT['sleep'])
            k.stamp(tag)
            k(f'ds_write2_b32 v{xa}, v{G}, v{G+1} offset0:0 offset1:1')
            for i in range(1, 4): k(f'ds_write_b64 v{xa+i}, {vr(G+4*i,2)} offset:{L_X}')
        else:
            k(f's_lshl_b32 s48, s3, 5\ns_add_u32 s48, s48, {hex(Q2)}')
            for i in range(1, 3): k(f's_add_u32 s{48+i}, s48, {hex(128*4096*i)}')
            ld = [f'buffer_load_dwordx4 {vr(G+4*i,4)}, v{vq2}, s[4:7], s{48+i} offen {SC}' for i in range(2)]
            lx = f'buffer_load_dword v{G+16}, off, s[4:7], s50 {SC}'; cx = f'v_cmp_eq_u32 vcc, -1, v{G+16}'
            k(f's_cmp_lg_u32 s22, 3\ns_cbranch_scc1 {name}_e1{tag}\n{lx}\n{name}_e1{tag}:')
            gather(k, f'{name}_gq2', '\n'.join(ld), ck_sent(vt, [G, G+4]), OPT['sleep'])
            k.stamp(tag)
            k(f'''ds_write2_b32 v{xa+4}, v{G}, v{G+1} offset0:0 offset1:1
ds_write2_b32 v{xa+4}, v{G+2}, v{G+3} offset0:2 offset1:3
ds_write_b128 v{xa+5}, {vr(G+4,4)} offset:{L_X}''')
        k(f's_cmp_lg_u32 s22, 3\ns_cbranch_scc1 {name}_e2{tag}')
        gather(k, f'{name}_gx{tag}', lx, cx, OPT['sleep'], '1', first=False)
        k(f'''ds_write_b32 v{va}, v{G+16} offset:{L_X+64}
s_mov_b64 exec, -1
{name}_e2{tag}:
''')
        if Qo == Q2 and OPT['ek']:
            k(f'v_mul_u32_u24 v{vt2}, {OPT["kp"]}, v0')
            poll_keys(k, name, 1, vt2, fg, fx, vt, 1, 's2', early=1)
        k(f'''s_cmp_eq_u32 s2, 256
s_waitcnt lgkmcnt(0)
s_barrier
s_cbranch_scc1 {name}_cx{tag}''')
        for T in range(2):
            for hi in range(2):
                for half in range(2):
                    q = T + 2*hi
                    k(f'ds_read_b128 {vr(X+16*T+8*hi+4*half,4)}, v{va} offset:{L_X + 16*half + 144*16*q}')
        for T in range(2):
            for kap in range(4):
                k(f's_waitcnt lgkmcnt({7-4*T-kap})')
                for z in range(2):
                    d = vr(D1+8*T+4*z, 4)
                    k(f'v_mfma_f32_16x16x32_f16 {d}, {vr(X+16*T+4*kap,4)}, {vr(CB1+8*kap+4*z,4)}, {d if kap else 0}')
        for T in range(2):
            for r in range(4):
                twiddle(k, D1+8*T+r, D1+8*T+4+r, CTW+8*T+2*r, CTW+8*T+2*r+1, vt, vt2, Bd+4*T+r)
            for z in range(2):
                d = vr(D2+4*z, 4)
                k(f'v_mfma_f32_16x16x32_f16 {d}, {vr(CA2+8*z+4*T,4)}, {vr(Bd+4*T,4)}, {d if T else 0}')
        k(f's_add_u32 s36, s41, {hex(Uo)}\ns_waitcnt vmcnt(0)')
        for r in range(4): k(f'v_cvt_pk_f16_f32 v{X+r}, v{D2+r}, v{D2+4+r}')
        k(f'buffer_store_dwordx4 {vr(X,4)}, v{vst}, s[4:7], s36 offen {SC}')
        if Qo == Q1:
            for r in range(4): k(f'v_mov_b32 v{X+4+r}, -1')
            k(f's_add_u32 s37, s41, {hex(U2)}\nbuffer_store_dwordx4 {vr(X+4,4)}, v{vst}, s[4:7], s37 offen {SC}')
        k(f's_branch {name}_cy{tag}\n' + ('ST4:\ns_branch ST10\n' if tag == 4 else '') + f'{name}_cx{tag}:\ns_sleep {OPT["w256"]}\ns_waitcnt vmcnt(0)\n{name}_cy{tag}:')

    def row_consts():
        k.nv = T0 + 24
        fe = V(); fgf = V(); c = V(); s = V(); ang = V(); f1 = V()
        k(f'''v_lshrrev_b32 v{vt}, 2, v{vn}
v_and_b32 v{vt2}, 3, v{vn}
v_lshl_add_u32 v{vt}, v{vt}, 3, v{vt2}
v_cvt_f32_u32 v{fe}, v{vt}
v_lshlrev_b32 v{vt}, 2, v{vg}
v_cvt_f32_u32 v{fgf}, v{vt}
s_mov_b32 s36, {fl(1/32)}
s_mov_b32 s37, {fl(0.25)}''')
        for h in range(2):
            if h: k(f'v_add_f32 v{fe}, 4.0, v{fe}')
            k(f'v_mul_f32 v{f1}, s36, v{fe}\nv_mul_f32 v{ang}, v{fgf}, v{f1}')
            for r in range(4):
                if r: k(f'v_add_f32 v{ang}, v{ang}, v{f1}')
                k(f'v_cos_f32 v{c}, v{ang}\nv_sin_f32 v{s}, v{ang}\nv_mul_f32 v{vt}, {fl(1/16)}, v{ang}')
                if r & 1: k(f'v_add_f32 v{vt}, s37, v{vt}')
                k(f'''v_cvt_pk_f16_f32 v{RB1+8*h+r}, v{c}, v{s}
v_cvt_pk_f16_f32 v{RB1+8*h+4+r}, -v{s}, v{c}
v_cos_f32 v{c}, v{vt}
v_sin_f32 v{s}, v{vt}
v_mul_f32 v{RTW+8*h+2*r}, s37, v{c}
v_mul_f32 v{RTW+8*h+2*r+1}, s37, v{s}''')
        k(f'v_cvt_f32_u32 v{f1}, v{vn}\nv_mul_f32 v{f1}, {fl(1/16)}, v{f1}\nv_mul_f32 v{ang}, v{fgf}, v{f1}')
        for r in range(4):
            if r: k(f'v_add_f32 v{ang}, v{ang}, v{f1}')
            k(f'v_cos_f32 v{c}, v{ang}\nv_sin_f32 v{s}, v{ang}\nv_cvt_pk_f16_f32 v{RB2+r}, v{c}, v{s}')
        k(f'''v_lshrrev_b32 v{vt}, 1, v{vn}
v_lshl_add_u32 v{vt}, v{vg}, 5, v{vt}
s_lshl_b32 s36, s22, 2
s_sub_u32 s37, {2048+12}, s36
s_cmp_eq_u32 s23, 0
s_cselect_b32 s37, s36, s37
s_cmp_eq_u32 s25, {8192+116}
s_cselect_b32 s21, 0, -1
v_lshl_add_u32 v{vra}, v{vt}, 4, s36
v_lshl_add_u32 v{vrb}, v{vt}, 4, s37
v_and_b32 v{vt}, 1, v0
v_cmp_eq_u32 s[46:47], 1, v{vt}
v_mov_b32 v{vt}, 0xbc003c00
v_mov_b32 v{vt2}, 0x3c00bc00
v_cndmask_b32 v{vsg}, v{vt}, v{vt2}, s[46:47]''')

    def u_load(tag, Uo, ug):
        k(f's_add_u32 s38, s25, {hex(Uo)}')
        if tag == 'a': predelay()
        if tag == 'a' and OPT['tu1']: wait_until(k, f'{name}_wu1', OPT['tu1'])
        gather(k, f'{name}_gu{tag}', f'buffer_load_dwordx4 {vr(ug,4)}, v{vp}, s[4:7], s38 offen {SC}', f'v_and_b32 v{ug+3}, s21, v{ug+3}\n' + ck_sent(vt, range(ug, ug+4)), OPT['sleep'])
        k(f'ds_write_b128 v{vfa}, {vr(ug,4)} offset:{L_U}')
    def u_read(u1, u2, extra=''):
        k(f'''s_waitcnt lgkmcnt(0)
s_barrier
{extra}
ds_read2_b32 {vr(u1,2)}, v{vra} offset0:0 offset1:32
ds_read2_b32 {vr(u2,2)}, v{vrb} offset0:0 offset1:32
ds_read2_b32 {vr(u1+2,2)}, v{vra} offset0:64 offset1:96
ds_read2_b32 {vr(u2+2,2)}, v{vrb} offset0:64 offset1:96
s_waitcnt lgkmcnt(0)''')
        for r in range(4): k(f'v_pk_fma_f16 v{u1+r}, v{u2+r}, v{vsg}, v{u1+r}')
    def hid_dft(u1):
        D1 = V(16, 4); A2 = V(8, 4); D2 = V(8, 4)
        for h in range(2):
            for z in range(2):
                k(f'v_mfma_f32_16x16x32_f16 {vr(D1+8*h+4*z,4)}, {vr(u1,4)}, {vr(RB1+8*h+4*z,4)}, 0')
        k(f'v_cvt_f32_f16 v{vt2}, v{u1}\ns_mov_b32 s54, {fl(16.0)}\nv_readlane_b32 s52, v{vt2}, 0')
        for h in range(2):
            for r in range(4):
                twiddle(k, D1+8*h+r, D1+8*h+4+r, RTW+8*h+2*r, RTW+8*h+2*r+1, vt, vt2, A2+4*h+r)
            k(f'v_mfma_f32_16x16x32_f16 {vr(D2+4*h,4)}, {vr(A2+4*h,4)}, {vr(RB2,4)}, 0')
        k(f'''v_readlane_b32 s53, v{D2}, 0
v_mov_b32 v{vt2}, s52
v_mul_f32 v{vt2}, -4.0, v{vt2}
v_mov_b32 v{vt}, s53
v_mul_f32 v{vt}, {fl(-16.0)}, v{vt}
v_add_f32 v{vt2}, v{vt2}, v{vt}''')
        for i in range(8):
            k(f'''v_fma_f32 v{D2+i}, v{D2+i}, s54, v{vt2 if i & 1 else vt}
v_add_f32 v{a+i}, v{a+i}, v{D2+i}
v_add_f32 v{b+i}, v{b+i}, v{D2+i}''')

    k(f'v_mov_b32 v{vt}, 0\nv_lshlrev_b32 v{vt2}, 2, v{vn}\nds_write_b32 v{vt2}, v{vt} offset:{L_KEY}')
    col_consts()
    if OPT['prio']: k(f's_cmp_lg_u32 s60, 0\ns_cbranch_scc1 {name}_pr\ns_setprio 2\n{name}_pr:')
    if OPT['p256']: k(f's_cmp_lg_u32 s2, 256\ns_cbranch_scc1 {name}_pr2\ns_setprio 3\n{name}_pr2:')
    k('s_waitcnt vmcnt(4) lgkmcnt(0)\ns_mul_i32 s40, s40, 0x9e3779b1\ns_add_u32 s40, s40, 0x7f4a7c15')
    k.stamp(2)
    unpack_direct(k, a, xd); unpack_mirror(k, b, xm, xm0)
    stats_and_out(1)
    k.stamp(3)
    k(f'''s_mul_i32 s36, s23, {XP}
s_add_u32 s36, s36, {hex(X2)}
buffer_store_dwordx4 {vr(cl,4)}, v{vfa}, s[4:7], s61 offen {SC}
v_lshlrev_b32 v{vt}, 4, v{vl}
buffer_store_dwordx4 {vr(cl,4)}, v{vt}, s[4:7], s36 offen {SC}
s_mov_b64 exec, 1
buffer_store_dwordx4 {vr(cl,4)}, off, s[4:7], s36 offset:1024 {SC}
s_mov_b64 exec, -1
s_sub_u32 s36, s2, 8
s_cmp_ge_u32 s36, {OPT['ru'] + 8*OPT['rh']}
s_cbranch_scc1 {name}_clr4
s_mul_i32 s36, s36, {PP}
s_add_u32 s36, s36, {hex(PG)}
buffer_store_dwordx4 {vr(cl,4)}, v{vfa}, s[4:7], s36 offen {SC}
{name}_clr4:''')
    unpack_direct(k, wa, wd); unpack_mirror(k, wb, wm, wm0)
    row_consts()
    k(f'v_add_f32 v{sw}, v{wa}, v{wa+1}')
    for i in range(2, 8): k(f'v_add_f32 v{sw}, v{sw}, v{wa+i}')
    k(f'v_mov_b32 v{vt}, v{sw}'); merge(k, sw, vt); red_half(k, [sw])
    k.stamp(7)
    col_phase(4, Q1, U1)
    k.stamp(6)
    k.nv = T0
    u1 = V(4, 4); u2 = V(4, 4)
    u_load('a', U1, u1)
    k.stamp(8)
    if not OPT['hu']: headsup(1)
    u_read(u1, u2)
    if OPT['dsk']: k(f's_cmp_lg_u32 s60, 0\ns_cbranch_scc1 {name}_nokey3')
    hid_dft(u1)
    stats_and_out(3)
    k.stamp(9)
    k.lab('WENDA')
    col_phase(10, Q2, U2)
    k.stamp(12)
    k.nv = T0
    u1 = V(4, 4); u2 = V(4, 4)
    OA = V(16, 4); up = V(16, 4); m1 = V(); m2 = V(); n1 = V(); n2 = V(); cs = V(4); vo = V(2); vup = V()
    k(f'v_mul_u32_u24 v{vup}, {OPT["kp"]}, v0')
    poll_keys(k, name, 1, vup, fg, fx, vt, 1, 's2', early=2*OPT['ek'])
    k(f'v_lshrrev_b32 v{vt}, 1, v{vfa}\nv_mov_b32 v{fg}, v{fg+2}\nds_write_b64 v{vt}, {vr(fg,2)} offset:{L_KT}\ns_waitcnt lgkmcnt(0)\ns_barrier')
    k(f'v_lshlrev_b32 v{vt}, 4, v{vl}\nds_read_b128 {vr(OA,4)}, v{vt} offset:{L_KT}\nds_read_b128 {vr(OA+4,4)}, v{vt} offset:{L_KT+1024}\ns_waitcnt lgkmcnt(0)')
    k(f'v_mov_b32 v{m1}, v{OA+1}\nv_mov_b32 v{m2}, v{OA}')
    for i in (2, 4, 6): top2_merge(k, m1, m2, OA+i+1, OA+i)
    top2_wave(k, m1, m2, n1, n2)
    k(f'v_med3_u32 v{m2}, v{m1}, v{m2}, v{fx+1}\nv_max_u32 v{m1}, v{m1}, v{fx+1}')
    k(f'''s_mov_b32 s36, {L_UD}
v_readfirstlane_b32 s56, v{m1}
v_readfirstlane_b32 s57, v{m2}
v_lshlrev_b32 v{vo}, 7, v{vg}
v_lshl_add_u32 v{vo}, v{vn}, 1, v{vo}
v_sub_u32 v{vo+1}, 928, v{vo}
v_cmp_eq_u32 vcc, 0, v{vl}
v_mov_b32 v{n1}, 512
v_add_u32 v{n2}, 96, v{vo+1}
v_cndmask_b32 v{n1}, v{vo}, v{n1}, vcc
v_and_b32 v{n2}, 1023, v{n2}
v_lshrrev_b32 v{vup}, 3, v0
v_lshlrev_b32 v{vup}, 7, v{vup}
v_and_b32 v{vt}, 3, v0
v_lshl_add_u32 v{vup}, v{vt}, 5, v{vup}
v_and_b32 v{vt}, 4, v0
v_add3_u32 v{vup}, v{vup}, v{vt}, s36''')
    sel_decode(k, 1, True)
    k(f'''s_cmp_ge_u32 s22, 2
s_cselect_b32 s36, s43, s42
v_lshrrev_b32 v{m1}, 1, v{vfa}
v_and_b32 v{m2}, 1023, v{m1}''')
    ld = [f'buffer_load_dwordx4 {vr(up+4*j,4)}, off, s[4:7], s{42+j} offset:1024 {SC}' for j in range(2)]
    ld.append(f'buffer_load_dwordx2 {vr(up+8,2)}, v{m2}, s[4:7], s36 offen {SC}')
    gather(k, f'{name}_go', '\n'.join(ld), ck_sent(vt, [up, up+4, up+8]), 1)
    k(f'ds_write_b64 v{m1}, {vr(up+8,2)} offset:{L_OLD}')
    for i in range(16): k(f'v_mov_b32 v{OA+i}, 0')
    k('s_waitcnt lgkmcnt(0)\ns_barrier')
    for j in range(2):
        o = L_OLD + 1024*j
        k(f'ds_read_u16_d16_hi v{OA+8*j}, v{n1} offset:{o}')
        for r in range(1, 4): k(f'ds_read_u16_d16_hi v{OA+8*j+r}, v{vo} offset:{o+32*r}')
        k(f'ds_read_u16_d16_hi v{OA+8*j+4}, v{n2} offset:{o}')
        for r in range(1, 4): k(f'ds_read_u16_d16_hi v{OA+8*j+4+r}, v{vo+1} offset:{o+96-32*r}')
    k(f'''s_mul_i32 s36, s56, s23
s_mul_i32 s37, s57, s23
s_and_b32 s36, s36, 2047
s_and_b32 s37, s37, 2047
v_cvt_f32_u32 v{cs}, s36
v_cvt_f32_u32 v{cs+2}, s37
v_mul_f32 v{cs}, {fl(1/2048)}, v{cs}
v_mul_f32 v{cs+2}, {fl(1/2048)}, v{cs+2}
v_sin_f32 v{cs+1}, v{cs}
v_sin_f32 v{cs+3}, v{cs+2}
v_cos_f32 v{cs}, v{cs}
v_cos_f32 v{cs+2}, v{cs+2}''')
    for i in range(4): k(f'v_mul_f32 v{cs+i}, {fl(0.25)}, v{cs+i}')
    OB = V(16)
    k('s_waitcnt lgkmcnt(0)')
    for j in range(2):
        for i in range(8):
            o = OA + 8*j + i
            k(f'v_sub_f32 v{OB+8*j+i}, v{o}, v{up+4*j}\nv_mul_f32 v{OB+8*j+i}, v{OB+8*j+i}, v{up+4*j+3}')
    for r in (vo, vo+1, n1, n2): k(f'v_lshlrev_b32 v{r}, 2, v{r}')
    k.stamp(13)
    if OPT['al'] > 1: k(f's_branch {name}_al3\nST10:\ns_branch ST3\n.p2align 12\nST3:\ns_branch F_back\n{name}_al3:')
    k(f's_and_b32 s39, s2, {OPT["ru"]-1}\ns_mul_i32 s39, s39, {PP}\ns_add_u32 s39, s39, {hex(PG)}')
    pr = 240
    lu = lambda j: f'buffer_load_dwordx4 {vr(pr+4*j,4)}, v{vfa}, s[4:7], s39 offen {SC}'
    cu = lambda j: ck_sent(vt, range(pr+4*j, pr+4*j+4))
    wu = lambda j: f'ds_write2_b32 v{vup}, v{pr+4*j}, v{pr+4*j+1} offset0:0 offset1:2\nds_write2_b32 v{vup}, v{pr+4*j+2}, v{pr+4*j+3} offset0:4 offset1:6'
    if not OPT['upre']: k(lu(0))
    u_load('b', U2, u1)
    k.stamp(14)
    if OPT['pu']:
        k(cu(0) + f'\ns_cbranch_vccz {name}_gupf0')
        pgather(k, f'{name}_gup', lu, cu, wu, OPT['pu'], 1, OPT['pgap'])
    else:
        walk(k, 'XB')
        if OPT['upre']: wait_until(k, f'{name}_wu', OPT['upre'])
        gather(k, f'{name}_gup', lu(0), cu(0), OPT['usleep'], first=bool(OPT['upre']))
        k(wu(0))
    if not OPT['hu']: headsup(2)
    rd = [f'ds_read_b64 {vr(up,2)}, v{n1} offset:{L_UD}'] + [f'ds_read_b64 {vr(up+2*r,2)}, v{vo} offset:{L_UD+128*r}' for r in range(1, 4)]
    rd += [f'ds_read_b64 {vr(up+8,2)}, v{n2} offset:{L_UD}'] + [f'ds_read_b64 {vr(up+8+2*r,2)}, v{vo+1} offset:{L_UD+384-128*r}' for r in range(1, 4)]
    u_read(u1, u2, '\n'.join(rd))
    k.stamp(15)
    for i in range(8): k(f'v_add_f32 v{OA+i}, v{OA+i}, v{up+2*i}\nv_add_f32 v{OA+8+i}, v{OA+8+i}, v{up+2*i+1}')
    sa, qa, sb, qb = m1, m2, n1, n2
    for (S_, Q_, base) in ((sa, qa, OA), (sb, qb, OA+8)):
        k(f'v_add_f32 v{S_}, v{base}, v{base+1}\nv_mul_f32 v{Q_}, v{base}, v{base}')
        for i in range(1, 8):
            if i > 1: k(f'v_add_f32 v{S_}, v{S_}, v{base+i}')
            k(f'v_fmac_f32 v{Q_}, v{base+i}, v{base+i}')
    merge(k, sa, sb); merge(k, qa, qb)
    red_half(k, [sa, qa])
    k(f'''v_mul_f32 v{sa}, {fl(1/512)}, v{sa}
v_mul_f32 v{qa}, {fl(1/512)}, v{qa}
v_fma_f32 v{qa}, -v{sa}, v{sa}, v{qa}
v_max_f32 v{qa}, 0, v{qa}
v_add_f32 v{qa}, {fl(1e-5)}, v{qa}
v_rsq_f32 v{qa}, v{qa}
v_cmp_eq_u32 vcc, 0, v{vl}
v_mul_f32 v{sa}, v{sa}, v{qa}
v_readlane_b32 s48, v{qa}, 16
v_readlane_b32 s49, v{qa}, 48
v_readlane_b32 s50, v{sa}, 16
v_readlane_b32 s51, v{sa}, 48''')
    for j in range(2):
        A_ = OA + 8*j; B_ = OB + 8*j
        for i in range(8): k(f'v_fma_f32 v{A_+i}, v{A_+i}, s{48+j}, -v{B_+i}')
        k(f'v_cndmask_b32 v{A_+4}, v{A_+4}, v{A_}, vcc\nv_mov_b32 v{vt}, s{50+j}')
        for i in range(4):
            k(f'v_add_f32 v{B_+i}, v{A_+i}, v{A_+4+i}\nv_sub_f32 v{B_+4+i}, v{A_+i}, v{A_+4+i}\nv_fma_f32 v{B_+i}, v{vt}, -2.0, v{B_+i}')
    for i in range(4):
        k(f'''v_mul_f32 v{OB+i}, v{OB+i}, v{cs}
v_mul_f32 v{OB+4+i}, v{OB+4+i}, v{cs+1}
v_fmac_f32 v{OB+i}, v{OB+8+i}, v{cs+2}
v_fmac_f32 v{OB+4+i}, v{OB+12+i}, v{cs+3}
v_cndmask_b32 v{vt}, v{OB+i}, v{OB+4+i}, s[46:47]
v_cndmask_b32 v{vt2}, -v{OB+4+i}, v{OB+i}, s[46:47]
v_cvt_pk_f16_f32 v{vt}, v{vt}, v{vt2}
v_pk_add_f16 v{u1+i}, v{u1+i}, v{vt}''')
    k(f'''s_cmp_eq_u32 s56, s23
s_cselect_b32 s36, 1, 0
s_cmp_eq_u32 s56, s24
s_cselect_b32 s37, 1, 0
s_cmp_eq_u32 s57, s23
s_cselect_b32 s38, 1, 0
s_cmp_eq_u32 s57, s24
s_cselect_b32 s39, 1, 0
s_or_b32 s48, s36, s37
s_or_b32 s49, s38, s39
s_or_b32 s48, s48, s49
s_cbranch_scc0 {name}_noown
v_lshlrev_b32 v{m1}, 2, v{vod}
v_sub_u32 v{m2}, {4096-56}, v{m1}
v_lshlrev_b32 v{n1}, 2, v{vom0}
v_cvt_f32_u32 v{cs}, s36
v_cvt_f32_u32 v{cs+1}, s37
v_cvt_f32_u32 v{cs+2}, s38
v_cvt_f32_u32 v{cs+3}, s39''')
    for i in range(4): k(f'ds_read_b128 {vr(OA+4*i,4)}, v{m1} offset:{L_UD+16*i}')
    k(f'ds_read_b64 {vr(up,2)}, v{n1} offset:{L_UD}')
    for i in range(1, 8): k(f'ds_read_b64 {vr(up+2*i,2)}, v{m2} offset:{L_UD+56-8*i}')
    k('s_waitcnt lgkmcnt(0)')
    for i in range(8):
        for (row, src, o) in ((a, OA, 0), (b, up, 1)):
            k(f'v_fmac_f32 v{row+i}, v{src+2*i}, v{cs+o}\nv_fmac_f32 v{row+i}, v{src+2*i+1}, v{cs+2+o}')
    k.lab(f'{name}_noown')
    k.nv = T0 + 8
    if OPT['dsk']: k(f's_cmp_lg_u32 s60, 0\ns_cbranch_scc1 {name}_nokey5')
    hid_dft(u1)
    stats_and_out(5)
    k.lab('WENDB')
    k(f'''s_or_b32 s36, s2, s22
s_cbranch_scc1 {name}_noep
v_mov_b32 v{vt}, s40
v_mov_b32 v{vt2}, 0
s_mov_b32 s36, {hex(EPOCH)}
buffer_store_dword v{vt}, v{vt2}, s[4:7], s36 offen {SC}''')
    k.lab(f'{name}_noep')
    k(f'''s_cmp_lg_u32 s22, 0
s_waitcnt vmcnt(0)
s_barrier
s_cbranch_scc1 {name}_fin
s_mov_b64 exec, 1
buffer_store_dword v{fg}, off, s[4:7], s38 offset:64 {SC}
{name}_fin:''')
    k.endpgm()


def ffn_role(k, name):
    k.nv = 1
    V = k.v
    vl = V(); vn = V(); vg = V(); vt = V(); vt2 = V(); vw = V(); vtr = V(); vlw = V(); vky = V(); vo = V(); vro = V()
    fg = V(4, 4); fx = V(2, 2); m1 = V(2, 2); m2 = m1 + 1; n1 = V(); n2 = V(); old = V(4, 2)
    st = V(4, 4); Fr = V(56, 4); Wt = V(56, 4); Af = Wt; D = V(8, 4); R_ = V(32, 4); CS = V(8, 4)
    RED = 57344
    NF = OPT['nf']
    k(f"""v_and_b32 v{vl}, 63, v0
v_and_b32 v{vn}, 15, v0
v_bfe_u32 v{vg}, v0, 4, 2
v_mul_u32_u24 v{vky}, {OPT['kp']}, v0
s_and_b32 s20, s3, 7
s_bfe_u32 s21, s3, 0x20003
v_lshrrev_b32 v{vt}, 1, v{vl}
v_and_b32 v{vt2}, 1, v{vl}
v_cmp_eq_u32 s[52:53], 1, v{vt2}
v_lshlrev_b32 v{vt2}, 4, v{vt2}
v_lshlrev_b32 v{vtr}, 8, v{vg}
v_lshl_add_u32 v{vtr}, v{vn}, 3, v{vtr}
v_lshlrev_b32 v{vlw}, 4, v{vl}
v_cmp_gt_u32 s[54:55], 2, v{vn}
s_lshl_b32 s61, s20, 7
s_add_u32 s61, s61, {hex(HU)}
s_mov_b32 s27, {fl(-1.4426950408889634)}
s_waitcnt lgkmcnt(0)
s_add_u32 s38, s30, {hex(EPOCH)}
s_addc_u32 s39, s31, 0
s_load_dword s40, s[38:39], 0""")
    k.stamp(1)
    srd(k, 4, 30, WS_BYTES); srd(k, 8, 58, 2048*1024)
    if OPT['stub']: k('s_branch ST4')
    k.lab('F_back')
    if OPT['fdel']: k(f's_sleep {OPT["fdel"]}')
    k(f's_cmp_ge_u32 s3, 128\ns_cbranch_scc1 {name}_cons')

    def select(layer, role):
        nm = f'{name}_{role}'
        gather(k, f'{nm}_g{layer}', f'buffer_load_dword v{fg}, off, s[4:7], s61 offset:{1024*(layer-1)} {SC}', ck_tag(0, [fg]), OPT['gsleep'])
        if OPT['hdel']: k(f's_sleep {OPT["hdel"]}')
        poll_keys(k, nm, layer, vky, fg, fx, vt, OPT['fsleep'], 's3', regs=R_ if OPT['pk'] else 0)
        if OPT['prio']: k('s_setprio 3')
        k.stamp(3 + 6*(layer-1))
        k(f'v_mov_b32 v{m1}, v{fg+1}\nv_mov_b32 v{m2}, v{fg+2}')
        top2_row(k, m1, m2, n1, n2)
        k(f"""v_lshrrev_b32 v{vt}, 4, v0
v_lshlrev_b32 v{vt}, 3, v{vt}
v_lshlrev_b32 v{vt2}, 3, v{vn}
ds_write_b64 v{vt}, {vr(m1,2)} offset:{RED}
s_waitcnt lgkmcnt(0)
s_barrier
ds_read_b64 {vr(m1,2)}, v{vt2} offset:{RED}
s_waitcnt lgkmcnt(0)""")
        top2_row(k, m1, m2, n1, n2)
        k(f"""v_med3_u32 v{m2}, v{m1}, v{m2}, v{fx+1}
v_max_u32 v{m1}, v{m1}, v{fx+1}
v_and_b32 v{n2}, 0x73f, v{m2}
v_and_b32 v{n1}, 0x73f, v{m1}
v_add_u32 v{vt}, 64, v{n2}
v_cmp_eq_u32 vcc, v{n1}, v{n2}
s_mov_b32 s36, {hex(X2 + (layer-1)*128*XP)}
v_cndmask_b32 v{n2}, v{n2}, v{vt}, vcc
v_cndmask_b32 v{n1}, v{n1}, v{n2}, s[52:53]
v_mul_u32_u24 v{vro}, {XP}, v{n1}""")
        k.stamp(4 + 6*(layer-1))
    def prefetch(rows_per_wave, pitch):
        if OPT['pref'] == 2:
            k(f'v_lshlrev_b32 v{vo}, 6, v{vl}\ns_lshr_b32 s36, s23, 3\ns_add_u32 s36, s36, s22\ns_mul_i32 s36, s36, {128*rows_per_wave}')
            return
        k(f"""v_mul_u32_u24 v{vo}, 3, v{vt2}
v_add_u32 v{vo}, v{vo}, v{vw}
s_lshl_b32 s36, s21, 2
s_add_u32 s36, s36, s22
s_mul_i32 s36, s36, {rows_per_wave*pitch}
s_andn2_b32 s37, s23, 127
s_add_u32 s36, s36, s37""")

    k(f"""s_lshr_b32 s23, s3, 5
s_lshl_b32 s23, s23, 3
s_add_u32 s23, s23, s20
s_cmp_ge_u32 s23, 28
s_cbranch_scc1 {name}_end
s_lshl_b32 s23, s23, 7
s_lshl_b32 s24, s21, 5
s_add_u32 s23, s23, s24
s_mul_i32 s24, s22, {128*3584}
s_add_u32 s24, s24, s23
s_mov_b32 s25, 3584
v_mad_u32_u24 v{vw}, v{vt}, s25, v{vt2}""")
    srd(k, 12, 46, 512*3584); srd(k, 16, 48, 512*3584)
    if OPT['pref']:
        prefetch(32, 3584)
        trickle(k, f'buffer_load_dword v{Wt}, v{vo}, s[12:15], s36 offen', f'buffer_load_dword v{Wt+1}, v{vo}, s[16:19], s36 offen')
        k.stamp(7)
        wait_until(k, f'{name}_wp', OPT['tp'])
        k.stamp(8)
    for kap in range(4):
        k(f'buffer_load_dwordx4 {vr(Wt+4*kap,4)}, v{vw}, s[12:15], s24 offen\ns_waitcnt vmcnt({NF-1})')
        k(f'buffer_load_dwordx4 {vr(Wt+16+4*kap,4)}, v{vw}, s[16:19], s24 offen\ns_waitcnt vmcnt({NF-1})')
        if kap < 3: k(f's_add_u32 s24, s24, {32*3584}')
    k(f"""s_lshl_b32 s25, s22, 13
v_add_u32 v{vtr}, s25, v{vtr}
v_add_u32 v{vlw}, s25, v{vlw}
s_waitcnt vmcnt(0)""")
    for i in range(8): k(f'ds_write_b128 v{vlw}, {vr(Wt+4*i,4)} offset:{1024*i}')
    k('s_waitcnt lgkmcnt(0)\ns_mul_i32 s40, s40, 0x9e3779b1\ns_add_u32 s40, s40, 0x7f4a7c15')
    for i in range(8):
        for u in range(2): k(f'ds_read_b64_tr_b16 {vr(Fr+4*i+2*u,2)}, v{vtr} offset:{1024*i+128*u}')
    for i in range(16): k(f'v_mov_b32 v{Af+i}, 0x3f803f80')
    k(f"""v_lshlrev_b32 v{vo}, 5, v{vn}
v_lshl_add_u32 v{vo}, v{vg}, 3, v{vo}
v_lshlrev_b32 v{vtr}, 6, v{vn}
v_lshl_add_u32 v{vtr}, v{vg}, 4, v{vtr}
s_lshl_b32 s26, s22, 8
v_add_u32 v{vlw}, s26, v{vtr}
v_lshl_add_u32 v{vw}, v{vg}, 4, s26
s_lshr_b32 s23, s23, 5
s_mul_i32 s24, s23, 2341
s_lshr_b32 s24, s24, 16
s_mul_i32 s24, s24, {PP - 28*128}
s_lshl_b32 s23, s23, 7
s_add_u32 s23, s23, s24
s_mul_i32 s24, s22, {32*PP}
s_add_u32 s23, s23, s24
v_and_b32 v{vo}, 63, v{vo}
v_lshrrev_b32 v{vt}, 1, v{vn}
v_mul_u32_u24 v{vt}, {4*PP}, v{vt}
v_add_u32 v{vo}, v{vo}, v{vt}
v_and_b32 v{vtr}, 127, v{vtr}
v_cmp_gt_u32 s[62:63], {2*min(OPT['rh'],8)}, v{vn}
s_waitcnt lgkmcnt(0)""")
    for kap in range(4):
        for mat in range(2):
            d = vr(CS+4*mat, 4)
            k(f'v_mfma_f32_16x16x32_bf16 {d}, {vr(Fr+16*mat+4*kap,4)}, {vr(Af,4)}, {d if kap else 0}')
    k.stamp(2)
    walk(k, 'XC')
    for layer in (1, 2):
        select(layer, 'p')
        k(f'v_add_u32 v{vt2}, v{vro}, v{vw}\ns_mov_b64 exec, s[54:55]')
        ld = [f'buffer_load_dwordx4 {vr(Af+4*kap,4)}, v{vt2}, s[4:7], s36 offen offset:{64*kap} {SC}' for kap in range(4)]
        ld.append(f'buffer_load_dwordx2 {vr(st,2)}, v{vro}, s[4:7], s36 offen offset:1024 {SC}')
        gather(k, f'{name}_gr{layer}', '\n'.join(ld), ck_sent(vt, [st] + [Af+4*i for i in range(4)]))
        k.stamp(5 + 6*(layer-1))
        for i in range(8): k(f'v_mul_f32 v{D+i}, -v{CS+i}, v{st}')
        for kap in range(4):
            for mat in range(2):
                d = vr(D+4*mat, 4)
                k(f'v_mfma_f32_16x16x32_bf16 {d}, {vr(Fr+16*mat+4*kap,4)}, {vr(Af+4*kap,4)}, {d}')
        k(f"""s_mov_b64 exec, s[54:55]
s_add_u32 s36, s23, {hex(hpg(layer))}
s_cmp_ge_u32 s22, {max(OPT['rh']//8,1)}
ds_write_b128 v{vlw}, {vr(D,4)} offset:{RED+128}
ds_write_b128 v{vlw}, {vr(D+4,4)} offset:{RED+128+128}
s_mov_b64 exec, -1
v_mov_b32_dpp v{n1}, v{st+1} row_newbcast:0 row_mask:0xf bank_mask:0xf
v_mov_b32_dpp v{n2}, v{st+1} row_newbcast:1 row_mask:0xf bank_mask:0xf
s_mov_b64 exec, s[62:63]
v_cndmask_b32 v{n2}, v{n1}, v{n2}, s[52:53]
v_mul_f32 v{n1}, s27, v{n2}
v_mul_f32 v{n2}, v{n2}, v{n2}
s_waitcnt lgkmcnt(0)
s_barrier
s_cbranch_scc1 {name}_pn{layer}""")
        for i in range(2): k(f'ds_read_b128 {vr(D+4*i,4)}, v{vtr} offset:{RED+128+128*i}')
        for i in range(2, 8): k(f'ds_read_b128 {vr(R_+4*i,4)}, v{vtr} offset:{RED+128+128*i}')
        for w in range(1, 4):
            k(f's_waitcnt lgkmcnt({6-2*w})')
            for i in range(8): k(f'v_add_f32 v{D+i}, v{D+i}, v{R_+8*w+i}')
        for r in range(4): k(f'v_mul_f32 v{R_+r}, v{n1}, v{D+r}')
        for r in range(4): k(f'v_exp_f32 v{R_+r}, v{R_+r}\nv_mul_f32 v{D+r}, v{D+r}, v{D+4+r}')
        for r in range(4): k(f'v_add_f32 v{R_+r}, 1.0, v{R_+r}')
        for r in range(4): k(f'v_rcp_f32 v{R_+r}, v{R_+r}\nv_mul_f32 v{D+r}, v{D+r}, v{n2}')
        for r in range(4): k(f'v_mul_f32 v{D+r}, v{D+r}, v{R_+r}')
        k(f"""v_cvt_pk_bf16_f32 v{m1}, v{D}, v{D+1}
v_cvt_pk_bf16_f32 v{m2}, v{D+2}, v{D+3}
buffer_store_dwordx2 {vr(m1,2)}, v{vo}, s[4:7], s36 offen {SC}""")
        k.lab(f'{name}_pn{layer}')
        k('s_mov_b64 exec, -1')
        if OPT['prio']: k('s_setprio 0')
        k.stamp(6 + 6*(layer-1))
    k.endpgm()
    k.lab('WENDC')
    k.lab(f'{name}_cons')
    k(f"""s_lshl_b32 s23, s20, 7
s_lshl_b32 s24, s21, 5
s_add_u32 s23, s23, s24
s_mul_i32 s24, s22, {448*1024}
s_add_u32 s24, s24, s23
v_lshl_add_u32 v{vw}, v{vt}, 10, v{vt2}""")
    srd(k, 12, 50, 1792*1024)
    k(f'''s_cmp_lt_u32 s3, 160
s_cbranch_scc1 {name}_cons2
s_sub_u32 s36, s3, 160
s_lshr_b32 s36, s36, 3
s_lshl_b32 s36, s36, 2
s_add_u32 s36, s36, s22
s_mul_i32 s36, s36, {41*1024}
s_lshl_b32 s37, s20, 7
s_add_u32 s36, s36, s37
s_add_u32 s37, s36, {21*1024}
v_mul_u32_u24 v{vo}, 3, v{vt2}
v_add_u32 v{vo}, v{vo}, v{vw}
''')
    trickle(k, f'buffer_load_dword v{Wt}, v{vo}, s[12:15], s36 offen', f'buffer_load_dword v{Wt+1}, v{vo}, s[12:15], s37 offen')
    k('s_endpgm')
    if OPT['al']: k('.p2align 12')
    k.lab(f'{name}_cons2')
    wait_until(k, f'{name}_wc', OPT['tc'])
    k.stamp(8)
    NF = OPT['nfc']
    for kap in range(14):
        k(f'buffer_load_dwordx4 {vr(Wt+4*kap,4)}, v{vw}, s[12:15], s24 offen\ns_waitcnt vmcnt({NF-1})')
        if kap < 13: k(f's_add_u32 s24, s24, {32*1024}')
    k(f"""s_mul_i32 s25, s22, {14*1024}
v_add_u32 v{vtr}, s25, v{vtr}
v_add_u32 v{vlw}, s25, v{vlw}
s_waitcnt vmcnt(0)""")
    for i in range(14): k(f'ds_write_b128 v{vlw}, {vr(Wt+4*i,4)} offset:{1024*i}')
    k('s_waitcnt lgkmcnt(0)\ns_mul_i32 s40, s40, 0x9e3779b1\ns_add_u32 s40, s40, 0x7f4a7c15')
    for i in range(14):
        for u in range(2): k(f'ds_read_b64_tr_b16 {vr(Fr+4*i+2*u,2)}, v{vtr} offset:{1024*i+128*u}')
    for i in range(56): k(f'v_mov_b32 v{Af+i}, 0')
    k(f"""v_lshrrev_b32 v{vt}, 1, v{vg}
v_and_b32 v{vt2}, 1, v{vg}
v_lshlrev_b32 v{vw}, 7, v{vt}
v_lshl_add_u32 v{vw}, v{vt2}, 4, v{vw}
v_lshl_add_u32 v{vw}, v{vn}, 5, v{vw}
s_waitcnt lgkmcnt(0)
v_lshlrev_b32 v{vtr}, 6, v{vn}
v_lshl_add_u32 v{vtr}, v{vg}, 4, v{vtr}
s_lshl_b32 s26, s22, 7
v_add_u32 v{vlw}, s26, v{vtr}
v_and_b32 v{vtr}, 127, v{vtr}
v_lshrrev_b32 v{vt}, 1, v{vn}
v_mul_u32_u24 v{vt}, {PP}, v{vt}
v_add_u32 v{vo}, v{vtr}, v{vt}
v_cmp_gt_u32 s[62:63], {2*min(OPT['ru'],8)}, v{vn}""")
    k.stamp(2)
    walk(k, 'XD')
    for layer in (1, 2):
        select(layer, 'c')
        ex = 's[54:55]' if layer == 2 else '-1'
        k(f's_mov_b64 exec, {ex}')
        ld = [f'buffer_load_dwordx4 {vr(st,4)}, v{vro}, s[4:7], s36 offen offset:1024 {SC}']; ck = [st, st+2]
        if layer == 2:
            k(f"""v_cndmask_b32 v{m1}, v{m1}, v{m2}, s[52:53]
s_add_u32 s38, s36, s23
v_lshl_add_u32 v{vt2}, v{vg}, 3, v{vro}
v_and_b32 v{n1}, 2047, v{m1}
v_sub_u32 v{n2}, 2048, v{n1}
v_and_b32 v{vt}, 2048, v{m1}
v_cmp_ne_u32 vcc, 0, v{vt}
v_and_b32 v{vl}, 63, v{n1}
v_cndmask_b32 v{vo}, v{n1}, v{n2}, vcc
v_lshlrev_b32 v{vo}, 10, v{vo}
v_lshl_add_u32 v{vo}, v{vg}, 3, v{vo}
v_cmp_eq_u32 vcc, 32, v{vl}
v_lshlrev_b32 v{vl}, 3, v{vl}
v_cndmask_b32 v{vl}, v{vl}, 4, vcc
v_lshrrev_b32 v{n2}, 8, v{n1}
v_add_u32 v{vl}, v{vl}, v{n2}
v_mov_b32 v{n2}, 256
v_cmp_eq_u32 vcc, 0x400, v{n1}
v_cndmask_b32 v{vl}, v{vl}, v{n2}, vcc
v_lshlrev_b32 v{vl}, 7, v{vl}""")
            ld.append(f'buffer_load_dwordx2 {vr(old,2)}, v{vt2}, s[4:7], s38 offen {SC}'); ck += [old, old+1]
        gather(k, f'{name}_gs{layer}', '\n'.join(ld), ck_sent(vt, ck), 1, ex)
        k(f"""s_and_b32 s26, s3, {OPT['rh']-1}
s_lshl_b32 s26, s26, 2
s_add_u32 s26, s26, s22
s_mul_i32 s26, s26, {PP}
s_add_u32 s26, s26, {hex(hpg(layer))}
v_mul_f32 v{n1}, s27, v{st+2}
v_exp_f32 v{n1}, v{n1}
v_and_b32 v{old+3}, 0xffff0000, v{old+1}
v_lshlrev_b32 v{old+2}, 16, v{old+1}
v_add_f32 v{n1}, 1.0, v{n1}
v_and_b32 v{old+1}, 0xffff0000, v{old}
v_lshlrev_b32 v{old}, 16, v{old}
v_rcp_f32 v{n1}, v{n1}
s_mov_b64 exec, s[54:55]""")
        if layer == 2:
            k(f's_mov_b32 s36, {hex(KEY2 + 64)}')
            gather(k, f'{name}_gd', f'buffer_load_dword v{fg}, v{vl}, s[4:7], s36 offen {SC}', ck_tag(0, [fg]), 1, 's[54:55]')
        ld = [f'buffer_load_dwordx4 {vr(Af+4*kap,4)}, v{vw}, s[4:7], s26 offen offset:{256*kap} {SC}' for kap in range(14)]
        hp = OPT['hpre'] if layer == 1 else OPT['hpre2']
        if hp: k(f's_sleep {hp}')
        gather(k, f'{name}_gh{layer}', '\n'.join(ld), ck_sent(vt, range(Af, Af+56, 2)), OPT['hsleep'])
        k.stamp(5 + 6*(layer-1))
        for kap in range(14):
            d = vr(D+4*(kap&1), 4)
            k(f'v_mfma_f32_16x16x32_bf16 {d}, {vr(Fr+4*kap,4)}, {vr(Af+4*kap,4)}, {d if kap > 1 else 0}')
        k(f's_lshl_b32 s36, s23, 2\ns_mul_i32 s37, s22, {8*PP}\ns_add_u32 s36, s36, s37\ns_add_u32 s36, s36, {hex(PG)}\ns_cmp_ge_u32 s22, {max(OPT["ru"]//8,1) if layer == 1 else 1}')
        for r in range(4): k(f'v_add_f32 v{D+r}, v{D+r}, v{D+4+r}')
        k(f"""s_mov_b64 exec, s[54:55]
ds_write_b128 v{vlw}, {vr(D,4)} offset:{RED+128}
s_waitcnt lgkmcnt(0)
s_barrier
s_cbranch_scc1 {name}_cn{layer}""")
        if layer == 1: k(f's_mov_b64 exec, s[62:63]\nds_read_b128 {vr(D,4)}, v{vtr} offset:{RED+128}')
        for i in range(1, 4): k(f'ds_read_b128 {vr(R_+4*i,4)}, v{vtr} offset:{RED+128+128*i}')
        for w in range(1, 4):
            k(f's_waitcnt lgkmcnt({3-w})')
            for r in range(4): k(f'v_add_f32 v{D+r}, v{D+r}, v{R_+4*w+r}')
        if layer == 2:
            for r in range(4): k(f'v_fma_f32 v{D+r}, v{D+r}, v{n1}, v{old+r}')
            k(f"""v_cvt_pk_bf16_f32 v{m1}, v{D}, v{D+1}
v_cvt_pk_bf16_f32 v{m2}, v{D+2}, v{D+3}
buffer_store_dwordx2 {vr(m1,2)}, v{vo}, s[8:11], s23 offen""")
        else:
            for r in range(4): k(f'v_mul_f32 v{D+r}, v{D+r}, v{n1}')
            for i in range(max(OPT['ru']//32, 1)):
                if i: k(f's_add_u32 s36, s36, {32*PP}')
                k(f'buffer_store_dwordx4 {vr(D,4)}, v{vo}, s[4:7], s36 offen {SC}')
        k.lab(f'{name}_cn{layer}')
        k('s_mov_b64 exec, -1')
        if OPT['prio']: k('s_setprio 0')
        k.stamp(6 + 6*(layer-1))
    k.endpgm()

CPF = '''s_getpc_b64 s[62:63]
v_lshlrev_b32 v2, 7, v0
v_min_u32 v2, CODE_END, v2
global_load_dword v239, v2, s[62:63]'''
def build(name):
    k = K(name); k.kidx = 0
    k.stamp(0)
    k(f"""s_load_dwordx2 s[32:33], s[0:1], 0
s_load_dwordx2 s[30:31], s[0:1], 96
s_load_dwordx8 s[44:51], s[0:1], 48
s_load_dwordx2 s[58:59], s[0:1], 80
s_memrealtime s[96:97]
{CPF if OPT['cpf'] else ''}
v_lshrrev_b32 v1, 6, v0
s_sub_u32 s3, s2, {NMAIN}
v_readfirstlane_b32 s22, v1
s_cbranch_scc0 L_ffn""")
    k.dbgsel = [(0,0),(1,2),(2,3),(3,4),(4,6),(5,8),(6,9),(7,10),(8,12),(9,15),(10,16)]
    main_role(k, 'M')
    k.dbgsel = [(11,2),(12,3),(13,6),(14,9),(15,16)]
    if OPT['al']: k('.p2align 12')
    k.lab('L_ffn')
    k(f's_cmp_ge_u32 s3, {NFFN}\ns_cbranch_scc1 F_end')
    ffn_role(k, 'F')
    k.lab('WENDD'); k.lab('F_end'); k('s_endpgm')
    k(f'.set CODE_END, F_end - {name} - 64')
    return k

def emit(k, grid, lds, path, aslist):
    hdr = open('cdna_kernels/' + NAME + '.s.ref').read().split('\n')
    out = [l for l in hdr if l.startswith(';') and '@launch' not in l and 'Override launch' not in l and 'grid=ceil' not in l]
    out.append(f'; @launch {"kernel="+k.name+" " if aslist else ""}grid=({grid},1,1) block=(256,1,1) lds={lds}')
    out.append('.amdgcn_target "amdgcn-amd-amdhsa--gfx950"\n.text')
    out.append(f'.globl {k.name}\n.p2align 8\n.type {k.name},@function\n{k.name}:')
    L = k.L
    if OPT['now']:
        i0 = L.index('L_ffn:')
        def keep(l):
            if 's[12:15]' in l or 's[16:19]' in l:
                return not (OPT['now'] == 1 or (OPT['now'] == 2 and 'x4' in l) or (OPT['now'] == 3 and 'x4' not in l))
            return True
        L = L[:i0] + [l for l in L[i0:] if keep(l)]
    T = fix_hazards(L)
    if OPT['pad']:
        o = []; ch = None; n = 0; hold = False; cnt = {}
        for l in T:
            t = l.strip()
            if t.startswith('WEND'): ch = None
            isins = not t.endswith(':') and not t.startswith('.')
            if ch and isins and not hold and n >= OPT['pad']:
                o.append(f'{ch}P{cnt[ch]}:'); o.append(f'  s_cbranch_execz {ch}P{cnt[ch]+1}'); cnt[ch] += 1; n = 0
            if t.startswith('s_mov_b64 exec,'): hold = t.endswith('vcc') or t.endswith(', 0')
            if t.startswith('WRET'): ch = t[4:-1]; cnt[ch] = 0; n = 0
            o.append(l); n += isins
        for ch, c in cnt.items():
            o = [f'  s_cbranch_execz WRET{ch}' if l.endswith(f' {ch}P{c}') else l for l in o]
            for w in range(4): o = [l.replace(f'{ch}W{w}', f'{ch}P{w*c//4}') for l in o]
        print('pads', cnt); T = o
    out += T
    out.append('.section .rodata,"a"')
    nv = 256; assert k.maxv <= 240
    out.append(f""".p2align 6
.amdhsa_kernel {k.name}
  .amdhsa_next_free_vgpr {nv}
  .amdhsa_next_free_sgpr 102
  .amdhsa_accum_offset {nv}
  .amdhsa_group_segment_fixed_size 0
  .amdhsa_kernarg_size 104
  .amdhsa_user_sgpr_count 2
  .amdhsa_user_sgpr_kernarg_segment_ptr 1
  .amdhsa_system_sgpr_workgroup_id_x 1
.end_amdhsa_kernel""")
    open(path, 'w').write('\n'.join(out) + '\n')

if __name__ == '__main__':
    for a in sys.argv[2:]:
        if a == 'stamp': K.STAMP = True
        elif a == 'list': pass
        elif a == 'dbg': K.STAMP = True; K.DBG = True
        else:
            kk, vv = a.split('='); OPT[kk] = vv if kk == 'wk' else int(vv)
    K.NST = 17
    k = build(NAME + '_kernel')
    print('vgprs', k.maxv, 'instrs', len(k.L))
    emit(k, NMAIN + NFFN, 57344 + 2304, sys.argv[1], 'list' in sys.argv or 'stamp' in sys.argv)
```
